```python
import torch

def _softmax(x, axis=-1):
    return torch.softmax(x, dim=axis)

def _gelu(x):
    return torch.nn.functional.gelu(x, approximate='tanh')

def _silu(x):
    return torch.nn.functional.silu(x)

def _sigmoid(x):
    return torch.sigmoid(x)

def _layernorm(x, axis=-1, eps=1e-05):
    m = x.mean(dim=axis, keepdim=True)
    v = x.var(dim=axis, keepdim=True, unbiased=False)
    return (x - m) / torch.sqrt(v + eps)

def _scatter_add(tgt, idx, src, axis=0):
    return tgt.clone().index_add_(axis, idx, src)

def _segment_sum(src, seg, n):
    out = torch.zeros((n,) + src.shape[1:], dtype=src.dtype)
    return out.index_add_(0, seg, src)

def _pad(x, pw):
    flat = tuple((v for pair in reversed(pw) for v in pair))
    return torch.nn.functional.pad(x, flat)
kernel_name = 'interleave_layers__memory_aug_recurrent_mem_tr__glu_gated_bilinear__prompt'

def setup_inputs():

    _w = lambda a: (lambda t: t.to(torch.bfloat16) if t.is_floating_point() else t)(torch.as_tensor(a))

    def _A_setup():
        B, S, Dm = (1, 2048, 512)
        H, Dh = (32, 128)
        M, seg = (8, 32)
        seg = min(seg, S)
        S = S // seg * seg
        return {'x': _w((lambda *s: torch.randn(*s, dtype=torch.bfloat16) * 0.05)(B, S, Dm)), 'mem0': _w((lambda *s: torch.randn(*s, dtype=torch.bfloat16) * 0.2)(B, M, Dm)), 'Wq': _w((lambda *s: torch.randn(*s, dtype=torch.bfloat16) * 1.6)(Dm, H, Dh) * Dm ** (-0.5)), 'Wk': _w((lambda *s: torch.randn(*s, dtype=torch.bfloat16) * 1.6)(Dm, H, Dh) * Dm ** (-0.5)), 'Wv': _w((lambda *s: torch.randn(*s, dtype=torch.bfloat16) * 0.2)(Dm, H, Dh) * Dm ** (-0.5)), 'Wo': _w((lambda *s: torch.randn(*s, dtype=torch.bfloat16) * 0.2)(H, Dh, Dm) * (H * Dh) ** (-0.5)), 'seg_len': seg}
    _A_in = _A_setup()

    def _B_setup():
        B, S, D, F = (1, 2048, 512, 1792)
        return {'x': _w((lambda *s: torch.randn(*s, dtype=torch.bfloat16) * 0.05)(B, S, D)), 'w_gate': _w((lambda *s: torch.randn(*s, dtype=torch.bfloat16) * 0.4)(D, F) * D ** (-0.5)), 'w_up': _w((lambda *s: torch.randn(*s, dtype=torch.bfloat16) * 0.4)(D, F) * D ** (-0.5)), 'w_down': _w((lambda *s: torch.randn(*s, dtype=torch.bfloat16) * 0.4)(F, D) * F ** (-0.5))}
    _B_in = _B_setup()
    return {'A_x': _A_in['x'], 'A_mem0': _A_in['mem0'], 'A_Wq': _A_in['Wq'], 'A_Wk': _A_in['Wk'], 'A_Wv': _A_in['Wv'], 'A_Wo': _A_in['Wo'], 'A_seg_len': _A_in['seg_len'], 'B_x': _B_in['x'], 'B_w_gate': _B_in['w_gate'], 'B_w_up': _B_in['w_up'], 'B_w_down': _B_in['w_down']}

def reference(A_x, A_mem0, A_Wq, A_Wk, A_Wv, A_Wo, A_seg_len, B_x, B_w_gate, B_w_up, B_w_down):

    def _A_ref(x, mem0, Wq, Wk, Wv, Wo, seg_len):
        B, S, Dm = x.shape
        H, Dh = (Wq.shape[1], Wq.shape[2])
        M = mem0.shape[1]
        scale = Dh ** (-0.5)
        n_seg = S // seg_len
        L = M + seg_len
        idx = torch.arange(L)
        mask = (idx[:, None] < M) | (idx[:, None] >= idx[None, :])
        mem = mem0
        outs = []
        for s in range(n_seg):
            xs = x[:, s * seg_len:(s + 1) * seg_len, :].clone()
            h = torch.concatenate([mem, xs], axis=1)
            q = torch.einsum('btd,dhe->bhte', h, Wq)
            k = torch.einsum('btd,dhe->bhte', h, Wk)
            v = torch.einsum('btd,dhe->bhte', h, Wv)
            scores = torch.einsum('bhqe,bhke->bhqk', q, k) * scale
            scores = torch.where(mask[None, None], scores, -1000000000.0)
            p = _softmax(scores, axis=-1)
            o = torch.einsum('bhqk,bhke->bhqe', p, v)
            o = torch.einsum('bhte,hed->btd', o, Wo)
            mem = o[:, :M, :].clone()
            outs.append(o[:, M:, :])
        return torch.concatenate(outs, axis=1)

    def _B_ref(x, w_gate, w_up, w_down):
        g = torch.einsum('bsd,df->bsf', x, w_gate)
        u = torch.einsum('bsd,df->bsf', x, w_up)
        h = g * u
        return torch.einsum('bsf,fd->bsd', h, w_down)
    x = A_x
    x = x + _A_ref(_layernorm(x, axis=-1), A_mem0, A_Wq, A_Wk, A_Wv, A_Wo, A_seg_len)
    x = x + _B_ref(_layernorm(x, axis=-1), B_w_gate, B_w_up, B_w_down)
    x = x + _A_ref(_layernorm(x, axis=-1), A_mem0, A_Wq, A_Wk, A_Wv, A_Wo, A_seg_len)
    x = x + _B_ref(_layernorm(x, axis=-1), B_w_gate, B_w_up, B_w_down)
    return x
```

```python
import re, sys

class Asm:
    def __init__(self):
        self.lines = []
        self._uid = 0
    def __call__(self, s=""):
        for l in s.split("\n"):
            l = l.strip()
            if l:
                self.lines.append(l)
    def label(self, name):
        self.lines.append(name + ":")
    def uid(self, p="L"):
        self._uid += 1
        return "%s_%d" % (p, self._uid)
    def nop(self, n):
        while n > 0:
            k = min(n, 16)
            self.lines.append("s_nop %d" % (k - 1))
            n -= k
    def text(self):
        out = []
        for l in self.lines:
            if l.endswith(":") or l.startswith("."):
                out.append(l)
            else:
                out.append("  " + l)
        return "\n".join(out) + "\n"

def vr(b, n=1):
    return "v%d" % b if n == 1 else "v[%d:%d]" % (b, b + n - 1)
def ar(b, n=1):
    return "a%d" % b if n == 1 else "a[%d:%d]" % (b, b + n - 1)
def sr(b, n=1):
    return "s%d" % b if n == 1 else "s[%d:%d]" % (b, b + n - 1)
def ur(b, n=1):
    return vr(b, n) if b < 256 else ar(b - 256, n)

_REG = re.compile(r"^(-|\|)?(abs\()?([vas])(\d+|\[(\d+):(\d+)\])\)?\|?$")
def regs_of(op):
    op = op.strip()
    if op in ("vcc", "vcc_lo", "vcc_hi"):
        return {("vcc", 0)}
    if op in ("exec", "exec_lo", "exec_hi"):
        return {("exec", 0)}
    if op == "m0":
        return {("m0", 0)}
    m = _REG.match(op)
    if not m:
        return set()
    k = m.group(3)
    if m.group(5) is not None:
        return {(k, i) for i in range(int(m.group(5)), int(m.group(6)) + 1)}
    return {(k, int(m.group(4)))}

TRANS = ("v_exp_f32", "v_log_f32", "v_rcp_f32", "v_rsq_f32", "v_sqrt_f32", "v_sin_f32", "v_cos_f32", "v_rcp_iflag_f32")

class I:
    def __init__(self, idx, text):
        self.idx = idx
        self.text = text
        t = text.split(";")[0].split("//")[0].strip()
        parts = t.split(None, 1)
        self.mn = parts[0]
        rest = parts[1] if len(parts) > 1 else ""
        ops = []; cur = ""; d = 0
        for ch in rest:
            if ch in "[(": d += 1
            if ch in "])": d -= 1
            if ch == "," and d == 0:
                ops.append(cur.strip()); cur = ""
            else:
                cur += ch
        if cur.strip(): ops.append(cur.strip())
        self.mods = ""
        if ops:
            l = ops[-1].split(None, 1)
            if len(l) > 1 and not l[0].endswith(":"):
                ops[-1] = l[0]; self.mods = l[1]
        self.ops = ops
        mn = self.mn
        self.kind = "other"
        self.w = set(); self.r = set(); self.srcC = set(); self.srcAB = set(); self.passes = 0
        self.ws = 1
        R = regs_of
        if mn == "s_nop":
            self.kind = "nop"; self.ws = int(ops[0], 0) + 1
        elif mn.startswith("v_mfma") or mn.startswith("v_smfmac"):
            self.kind = "mfma"
            self.w = R(ops[0])
            if mn.startswith("v_smfmac"):
                self.srcC = R(ops[0]); self.srcAB = R(ops[1]) | R(ops[2]) | R(ops[3])
            else:
                self.srcC = R(ops[3]); self.srcAB = R(ops[1]) | R(ops[2])
            self.r = self.srcC | self.srcAB
            self.passes = 8 if "32x32" in mn else 4
            if "4x4x4" in mn: self.passes = 2
        elif mn.startswith("v_"):
            self.kind = "valu"
            base = re.sub(r"_e32$|_e64$|_dpp$|_sdwa$", "", mn)
            self.base = base
            self.trans = base in TRANS
            self.dpp = ("row_" in text) or ("quad_perm" in text) or mn.endswith("_dpp") or ("wave_" in text)
            if base.startswith("v_cmp"):
                self.w = R(ops[0]); srcs = ops[1:]
                if base.startswith("v_cmpx"): self.w |= {("exec", 0)}
            elif base in ("v_permlane32_swap_b32", "v_permlane16_swap_b32"):
                self.w = R(ops[0]) | R(ops[1]); srcs = ops
            elif base in ("v_add_co_u32", "v_sub_co_u32", "v_addc_co_u32", "v_subb_co_u32", "v_subrev_co_u32", "v_div_scale_f32", "v_mad_u64_u32"):
                self.w = R(ops[0]) | R(ops[1]); srcs = ops[2:]
            else:
                self.w = R(ops[0]); srcs = ops[1:]
                if base in ("v_fmac_f32", "v_dot2c_f32_bf16", "v_writelane_b32", "v_pk_fmac_f16") or self.dpp_partial(text):
                    srcs = ops
            for s in srcs: self.r |= R(s)
            if base == "v_cndmask_b32" and len(ops) == 3: self.r |= {("vcc", 0)}
        elif mn.startswith("ds_"):
            if mn.startswith("ds_read") or mn.startswith("ds_bpermute") or mn.startswith("ds_permute") or mn.startswith("ds_swizzle"):
                self.kind = "dsread"; self.w = R(ops[0])
                for s in ops[1:]: self.r |= R(s)
            else:
                self.kind = "dswrite"
                for s in ops: self.r |= R(s)
        elif mn.startswith("global_") or mn.startswith("buffer_"):
            self.kind = "vmem"
            lds = (" lds" in (" " + text)) or ("_lds_" in mn)
            self.lds = lds
            if "load" in mn and not lds:
                self.w = R(ops[0])
                for s in ops[1:]: self.r |= R(s)
                self.kind = "vload"
            elif "atomic" in mn:
                if "sc0" in text and True:
                    self.w = R(ops[0])
                for s in ops: self.r |= R(s)
                self.kind = "vstore"; self.data = set()
            elif "store" in mn:
                for s in ops: self.r |= R(s)
                self.kind = "vstore"
                self.data = R(ops[1]) if mn.startswith("global_") else R(ops[0])
                self.wide = ("x4" in mn) or ("x3" in mn)
            else:
                for s in ops: self.r |= R(s)
                if lds: self.r |= {("m0", 0)}
        elif mn.startswith("s_"):
            self.kind = "salu"
            if mn.startswith("s_cmp") or mn.startswith("s_cbranch") or mn in ("s_branch", "s_waitcnt", "s_barrier", "s_sleep", "s_endpgm", "s_setprio", "s_bitcmp0_b32", "s_bitcmp1_b32"):
                for s in ops: self.r |= R(s)
            else:
                if ops: self.w = R(ops[0])
                for s in ops[1:]: self.r |= R(s)
                if "saveexec" in mn: self.w |= {("exec", 0)}
    def dpp_partial(self, text):
        return ("bank_mask" in text and "bank_mask:0xf" not in text) or ("row_mask" in text and "row_mask:0xf" not in text)

def need(p, c):
    best = (0, "")
    def up(n, why):
        nonlocal best
        if n > best[0]: best = (n, why)
    pv = {x for x in p.w if x[0] in "va"}
    if p.kind == "valu":
        if c.kind == "mfma" and pv & c.r: up(2, "VALU->MFMA operand")
        ps = {x for x in p.w if x[0] in ("s", "vcc")}
        if ps:
            if c.kind in ("vmem", "vload", "vstore") and ps & c.r: up(5, "VALU sgpr->VMEM")
            if c.kind == "valu" and ps & c.r:
                up(2, "VALU sgpr->VALU const")
                if c.base in ("v_readlane_b32", "v_writelane_b32"): up(4, "VALU sgpr->lane select")
        if c.kind == "valu":
            if c.base in ("v_readlane_b32", "v_readfirstlane_b32") and pv & c.r: up(1, "VALU->readlane")
            if p.trans and not c.trans and pv & c.r: up(1, "trans->VALU")
            if c.base.startswith("v_permlane") and pv & c.r: up(2, "VALU->permlane")
            if c.dpp and pv & c.r: up(2, "VALU->DPP")
            if ("exec", 0) in p.w:
                if c.dpp: up(5, "exec->DPP")
                if c.base.startswith("v_permlane") or c.base in ("v_readlane_b32", "v_readfirstlane_b32", "v_writelane_b32"): up(4, "exec->lane op")
        if p.trans and c.kind in ("dswrite", "vstore", "mfma") and pv & c.r: up(1, "trans->use")
        if ("exec", 0) in p.w and c.kind == "mfma": up(4, "exec->mfma")
    if p.kind == "mfma":
        P = p.passes
        n_ab = {2: 5, 4: 8, 8: 12, 16: 20}[P]
        n_c = {2: 4, 4: 6, 8: 10, 16: 18}[P]
        n_war = {2: 1, 4: 3, 8: 7, 16: 15}[P]
        if c.kind == "mfma":
            if p.w & c.srcAB: up(n_ab, "MFMA D->A/B")
            if p.w & c.srcC:
                if not (p.w == c.srcC and p.passes == c.passes): up(n_c, "MFMA D->C partial")
                elif P == 2: up(2, "2pass chain")
            elif p.w & c.w: up(n_c, "MFMA D->D WAW")
        elif c.kind == "valu":
            if p.w & (c.r | c.w): up(n_ab, "MFMA D->VALU")
            if p.srcC & c.w: up(n_war, "MFMA C WAR")
        elif c.kind in ("dswrite", "vstore", "vmem"):
            if p.w & c.r: up(n_ab, "MFMA D->mem read")
        elif c.kind in ("dsread", "vload"):
            if p.w & (c.r | c.w): up(n_ab, "MFMA D->load dst/addr")
    if p.kind == "vstore" and getattr(p, "wide", False):
        if c.kind == "valu" and p.data & c.w: up(2, "wide store WAR")
        elif p.data & c.w: up(1, "wide store WAR")
    if p.kind == "salu" and ("m0", 0) in p.w:
        if c.kind == "vmem" and getattr(c, "lds", False): up(1, "m0->LDS DMA")
    return best

def check_hazards(text, verbose=True, maxd=22):
    raw = [l.strip() for l in text.split("\n")]
    insts = []; labels = {}
    for l in raw:
        l0 = l.split(";")[0].strip()
        if not l0: continue
        if l0.endswith(":"):
            labels[l0[:-1]] = len(insts); continue
        if l0.startswith("."): continue
        insts.append(I(len(insts), l0))
    n = len(insts)
    for x in insts:
        m = re.search(r"offset:(-?\d+)", x.text)
        if m:
            o = int(m.group(1))
            if x.mn.startswith("buffer_") and not (0 <= o < 4096): print("BAD OFFSET", x.text); raise SystemExit(1)
            if x.mn.startswith("global_") and not (-4096 <= o < 4096): print("BAD OFFSET", x.text); raise SystemExit(1)
            if x.mn.startswith("ds_") and not (0 <= o < 65536): print("BAD OFFSET", x.text); raise SystemExit(1)
    succ = []
    for i, x in enumerate(insts):
        s = []
        if x.mn == "s_endpgm": pass
        elif x.mn == "s_branch": s = [labels[x.ops[0]]]
        elif x.mn.startswith("s_cbranch"): s = [labels[x.ops[0]], i + 1]
        elif x.mn in ("s_setpc_b64",): pass
        else: s = [i + 1]
        succ.append([t for t in s if t < n])
    probs = []
    for i, p in enumerate(insts):
        if p.kind not in ("valu", "mfma", "vstore", "salu"): continue
        if p.kind == "salu" and ("m0", 0) not in p.w: continue
        if p.kind == "vstore" and not getattr(p, "wide", False): continue
        seen = {}
        st = [(t, 0) for t in succ[i]]
        while st:
            j, d = st.pop()
            if d >= maxd: continue
            if seen.get(j, 99) <= d: continue
            seen[j] = d
            c = insts[j]
            nd, why = need(p, c)
            if nd > d:
                probs.append((i, j, nd, d, why, p.text, c.text))
            for t in succ[j]:
                st.append((t, d + c.ws))
    if verbose:
        for (i, j, nd, d, why, a, b) in probs[:60]:
            print("HAZARD %s: need %d have %d\n   [%d] %s\n   [%d] %s" % (why, nd, d, i, a, j, b))
        print("hazard check: %d instrs, %d problems" % (n, len(probs)))
    return probs
```

```python
from asmlib import *
from layout import *

S_WS   = 4
S_SRD2 = 8
S_SRD3 = 12
S_WAVE = 16
S_RANK = 17
S_XCC  = 18
S_L    = 19
S_PTR  = 20
P_X, P_MEM, P_WQ, P_WK, P_WV, P_WO, P_WG, P_WU, P_WD, P_OUT, P_DBG, P_WSP = [20 + 2 * i for i in range(12)]
S_FAST = 44
S_T0   = 45
S_SPIN = 64
S_STEP = 65

L_MEMT = 0; L_KX = 0x2000; L_VX = 0x4000; L_QT = 0x6000; L_OX = 0x6000; L_KT = 0x7000; L_WO = 0x8000
OX_ROW = 272

def build_srd(k, d, ptr, nbytes):
    k("s_mov_b32 s%d, s%d" % (d, ptr))
    k("s_and_b32 s%d, s%d, 0xffff" % (d + 1, ptr + 1))
    k("s_mov_b32 s%d, 0x%x" % (d + 2, nbytes))
    k("s_mov_b32 s%d, 0x20000" % (d + 3))

def spin_check(k, abort):
    k("s_sub_u32 s%d, s%d, 1" % (S_SPIN, S_SPIN))
    k("s_cbranch_scc1 %s" % abort)

SCALE_LOG2E = 0.08838834764831845 * 1.4426950408889634

import struct
def f32(x): return struct.unpack("<I", struct.pack("<f", x))[0]


def interleave(k, prim, fill, per=2, start=0):
    fill = list(fill)
    for i, p in enumerate(prim):
        k(p)
        if i >= start:
            for _ in range(per):
                if fill: k(fill.pop(0))
    for f in fill: k(f)


def chain_role(k, sfx='', dump=False, stamps=False, nsteps=64, fast=True, d1=0, d2=0, probe=False, nopub=False, nokv=False, waitack=True, waitackC=True, marks=False, noimg=False, noatom=False, flagstore=True, earlyB=True, nohop=False, cut=99):
    T = S_T0
    abort = "L_abort"
    WSR = "s[%d:%d]" % (S_WS, S_WS + 3)
    PL = "" if fast else " sc1"
    vL = 1
    vIdx, vTrM, vQW, vTrQ, vKW, vTrK, vL16, vOW, vOR, vWO, vPst, vMst, vMlds, vKXw, vKpub, _vneg = range(2, 18)
    vKn = 18
    vVn = 26
    vFl = 34
    vPld = 35
    t0, t1, t2, t3 = 124, 125, 126, 127
    def F(s, **kw):
        d = dict(t0=t0, t1=t1, t2=t2, t3=t3, L=vL, T=T, T1=T + 1, T2=T + 2, W=S_WAVE, H=S_RANK, LY=S_L, l16=vL16)
        d.update(kw); k(s.format(**d))
    if marks: k("s_mov_b32 s100, 0\ns_mov_b32 s101, 0")
    def mark(i):
        if marks: k("s_memrealtime s[60:61]\ns_waitcnt lgkmcnt(0)\ns_mov_b32 s%d, s60" % (52 + i))
    mark(0)
    F("v_and_b32 v{L}, 63, v0\nv_lshlrev_b32 v{l16}, 4, v{L}")
    F("""
    v_and_b32 v{t0}, 2, v{L}
    v_cmp_eq_u32 vcc, 0, v{t0}
    v_mov_b32 v{t1}, 0xeeee
    v_mov_b32 v{t2}, 0x4444
    v_cndmask_b32 v{a}, v{t1}, v{t2}, vcc
    """, a=vIdx)
    F("""
    v_lshrrev_b32 v{t0}, 4, v{L}
    v_bfe_u32 v{t1}, v{L}, 2, 2
    v_and_b32 v{t2}, 3, v{L}
    v_lshlrev_b32 v{t3}, 8, v{t0}
    v_lshl_add_u32 v{t3}, v{t1}, 5, v{t3}
    v_lshl_add_u32 v{t3}, v{t2}, 3, v{t3}
    v_and_b32 v{t0}, 1, v{t0}
    v_lshlrev_b32 v{t0}, 7, v{t0}
    v_xor_b32 v{a}, v{t3}, v{t0}
    """, a=vTrM)
    F("""
    v_and_b32 v{t0}, 15, v{L}
    s_lshl_b32 s{T}, s{W}, 5
    v_add_u32 v{t0}, s{T}, v{t0}
    v_lshlrev_b32 v{t1}, 4, v{t0}
    v_lshrrev_b32 v{t2}, 4, v{L}
    v_lshl_add_u32 v{a}, v{t2}, 2, v{t1}
    v_lshlrev_b32 v{t1}, 5, v{t0}
    v_lshl_add_u32 v{t1}, v{t2}, 3, v{t1}
    v_bfe_u32 v{t2}, v{L}, 3, 1
    v_lshlrev_b32 v{t2}, 7, v{t2}
    v_xor_b32 v{b}, v{t1}, v{t2}
    """, a=vQW, b=vKW)
    F("""
    v_lshrrev_b32 v{t0}, 4, v{L}
    v_bfe_u32 v{t1}, v{L}, 2, 2
    v_lshl_add_u32 v{t1}, v{t0}, 2, v{t1}
    v_lshlrev_b32 v{t2}, 4, v{t1}
    v_and_b32 v{t3}, 1, v{L}
    v_lshl_add_u32 v{a}, v{t3}, 3, v{t2}
    v_lshlrev_b32 v{t2}, 5, v{t1}
    v_and_b32 v{t3}, 3, v{L}
    v_lshl_add_u32 v{t2}, v{t3}, 3, v{t2}
    v_lshrrev_b32 v{t0}, 1, v{t0}
    v_lshlrev_b32 v{t0}, 7, v{t0}
    v_xor_b32 v{b}, v{t2}, v{t0}
    """, a=vTrQ, b=vTrK)
    F("""
    v_and_b32 v{t0}, 7, v{L}
    v_mul_u32_u24 v{t0}, {row}, v{t0}
    v_lshrrev_b32 v{t1}, 4, v{L}
    v_lshl_add_u32 v{t0}, v{t1}, 2, v{t0}
    s_lshl_b32 s{T}, s{W}, 6
    v_add_u32 v{a}, s{T}, v{t0}
    v_bfe_u32 v{t0}, v{L}, 2, 2
    v_lshlrev_b32 v{t0}, 1, v{t0}
    v_and_b32 v{t2}, 1, v{L}
    v_add_u32 v{t0}, v{t0}, v{t2}
    v_mul_u32_u24 v{t0}, {row}, v{t0}
    v_lshl_add_u32 v{t0}, v{t1}, 5, v{t0}
    v_bfe_u32 v{t1}, v{L}, 1, 1
    v_lshl_add_u32 v{b}, v{t1}, 4, v{t0}
    """, a=vOW, b=vOR, row=OX_ROW)
    F("""
    s_lshl_b32 s{T}, s{W}, 15
    s_add_u32 s{T}, s{T}, 0x{wo:x}
    v_add_u32 v{a}, s{T}, v{l16}
    s_lshl_b32 s{T}, s{W}, 11
    v_add_u32 v{kx}, s{T}, v{l16}
    v_and_b32 v{t0}, 15, v{L}
    v_lshrrev_b32 v{t1}, 4, v{L}
    v_lshlrev_b32 v{t2}, 4, v{t0}
    v_lshl_add_u32 v{p}, v{t1}, 13, v{t2}
    s_lshl_b32 s{T1}, s{W}, 10
    v_add_u32 v{kp}, s{T1}, v{l16}
    v_bfe_u32 v{t2}, v{L}, 1, 1
    v_lshlrev_b32 v{t2}, 5, v{t2}
    v_lshrrev_b32 v{t0}, 5, v{L}
    v_lshl_add_u32 v{t2}, v{t0}, 4, v{t2}
    s_lshl_b32 s{T1}, s{W}, 6
    v_add_u32 v{m}, s{T1}, v{t2}
    v_bfe_u32 v{t2}, v{L}, 2, 2
    v_lshl_add_u32 v{t2}, v{t1}, 2, v{t2}
    v_lshlrev_b32 v{t2}, 8, v{t2}
    v_and_b32 v{t0}, 3, v{L}
    v_lshl_add_u32 v{t2}, v{t0}, 4, v{t2}
    v_add_u32 v{pl}, s{T1}, v{t2}
    ; vMlds = w*2048 + (16 l ^ (((l>>4)&1)<<7))
    v_bfe_u32 v{t0}, v{L}, 4, 1
    v_lshlrev_b32 v{t0}, 7, v{t0}
    v_xor_b32 v{t0}, v{t0}, v{l16}
    v_add_u32 v{ml}, s{T}, v{t0}
    """, a=vWO, wo=L_WO, kx=vKXw, p=vPst, m=vMst, ml=vMlds, kp=vKpub, pl=vPld)
    sPst = 66
    sPld, sMbase, sMst, sMld, sKV, sKM, sFKV, sFKM, sTag, sClr, sC, sFlagVal, sKMp, sFKMp = range(74, 88)
    vNeg1 = 17
    sFKMq = 58; sPld2 = 57; sExF = 54; sClrNow = sClr
    F("""
    s_mul_i32 s{T1}, s{LY}, 0x{pl:x}
    s_add_u32 s{T1}, s{T1}, 0x{op:x}
    s_lshl_b32 s{T}, s{H}, 8
    s_add_u32 s{T2}, s{T1}, s{T}
    s_lshl_b32 s{T}, s{W}, 16
    s_add_u32 s{p0}, s{T2}, s{T}
    s_lshl_b32 s{T}, s{H}, 13
    s_add_u32 s{pld}, s{T1}, s{T}
    s_mul_i32 s{mb}, s{LY}, 0x{ml:x}
    s_add_u32 s{mb}, s{mb}, 0x{om:x}
    s_mul_i32 s{T}, s{LY}, 0x{kvl:x}
    s_add_u32 s{T}, s{T}, 0x{okv:x}
    s_lshl_b32 s{T1}, s{H}, 20
    s_add_u32 s{kv}, s{T}, s{T1}
    s_mul_i32 s{T}, s{LY}, 0x{kml:x}
    s_add_u32 s{T}, s{T}, 0x{okm:x}
    s_lshl_b32 s{T1}, s{H}, 18
    s_add_u32 s{km}, s{T}, s{T1}
    s_lshl_b32 s{T}, s{LY}, 18
    s_lshl_b32 s{T1}, s{H}, 7
    s_add_u32 s{T}, s{T}, s{T1}
    s_add_u32 s{fkv}, s{T}, 0x{FKV:x}
    s_add_u32 s{fkm}, s{T}, 0x{FKM:x}
    s_mov_b32 s{c}, 0x{cc:x}
    """, pl=P_LSTRIDE, op=OFF_P, p0=sPst, pld=sPld, mb=sMbase, ml=M_LSTRIDE, om=OFF_M,
      kvl=KV_L, okv=OFF_KV, kv=sKV, kml=KM_L, okm=OFF_KM, km=sKM, fkv=sFKV, fkm=sFKM, FKV=F_KV, FKM=F_KM, c=sC, cc=f32(SCALE_LOG2E))
    k("s_add_u32 s%d, s%d, 32768" % (sPst + 1, sPst))
    k("s_mov_b32 s%d, 0x%x\ns_mov_b32 s%d, 0x%x" % (sFKMp, F_DUMMY, sFKMq, F_DUMMY))
    k("s_mov_b32 s%d, 0x%x" % (sKMp, F_DUMMY + 0x1000))
    k("s_mov_b32 s%d, 0x%x" % (sClr, F_DUMMY + 0x3000))
    k("v_mov_b32 v%d, -1" % vNeg1)
    k("s_add_u32 s%d, s%d, 4096" % (sPld2, sPld))
    k("s_cmp_eq_u32 s%d, 2\ns_cselect_b32 s%d, 1, 0\ns_mov_b32 s%d, 0" % (S_WAVE, sExF, sExF + 1))

    vA, vR0, vR1 = 40, 41, 42
    sM0 = T + 3
    F("""
    v_and_b32 v{t0}, 3, v{L}
    v_bfe_u32 v{t1}, v{L}, 5, 1
    v_lshlrev_b32 v{t1}, 1, v{t1}
    v_xor_b32 v{t0}, v{t0}, v{t1}
    v_lshlrev_b32 v{t0}, 4, v{t0}
    v_lshrrev_b32 v{t1}, 2, v{L}
    v_lshl_add_u32 v{t0}, v{t1}, 13, v{t0}
    s_lshl_b32 s{T}, s{H}, 8
    s_lshl_b32 s{T1}, s{W}, 6
    s_add_u32 s{T}, s{T}, s{T1}
    v_add_u32 v{a}, s{T}, v{t0}
    v_lshrrev_b32 v{t0}, 4, v{L}
    v_bfe_u32 v{t1}, v{L}, 2, 1
    v_lshlrev_b32 v{t1}, 1, v{t1}
    v_bfe_u32 v{t3}, v{L}, 3, 1
    v_or_b32 v{t1}, v{t1}, v{t3}
    v_lshl_add_u32 v{t2}, v{t0}, 3, v{t1}
    v_lshlrev_b32 v{t2}, 6, v{t2}
    v_and_b32 v{t0}, 1, v{t0}
    v_lshlrev_b32 v{t0}, 1, v{t0}
    v_bfe_u32 v{t1}, v{L}, 1, 1
    v_xor_b32 v{t0}, v{t0}, v{t1}
    v_lshl_add_u32 v{t2}, v{t0}, 4, v{t2}
    v_and_b32 v{t1}, 1, v{L}
    v_lshl_add_u32 v{t2}, v{t1}, 3, v{t2}
    s_lshl_b32 s{M0}, s{W}, 15
    s_add_u32 s{M0}, s{M0}, 0x{wo:x}
    v_add_u32 v{r0}, s{M0}, v{t2}
    v_xor_b32 v{r1}, 32, v{r0}
    """, a=vA, r0=vR0, r1=vR1, M0=sM0, wo=L_WO)
    srds = {0: P_WQ, 1: P_WK, 2: P_WV}
    cur = [None]
    def issue_chunk(n, slot):
        m, b = divmod(n, 8)
        if cur[0] != m:
            build_srd(k, S_SRD2, srds[m], 512 * 8192); cur[0] = m
        for i in range(4):
            k("s_add_u32 s%d, s%d, %d" % (T, sM0, slot * 4096 + i * 1024))
            k("s_mov_b32 m0, s%d" % T)
            k("s_mov_b32 s%d, %d" % (T + 1, (64 * b + 16 * i) * 8192))
            k("buffer_load_dwordx4 v%d, s[%d:%d], s%d offen lds" % (vA, S_SRD2, S_SRD2 + 3, T + 1))
    vB0, vB1, vT0 = 43, 44, 45
    F("""
    v_lshrrev_b32 v{t0}, 4, v{L}
    v_bfe_u32 v{t1}, v{L}, 1, 3
    v_xor_b32 v{t1}, v{t1}, v{t0}
    v_lshlrev_b32 v{t1}, 5, v{t1}
    v_and_b32 v{t2}, 1, v{L}
    v_lshl_add_u32 v{t1}, v{t2}, 4, v{t1}
    v_lshl_add_u32 v{t1}, v{t0}, 10, v{t1}
    s_lshl_b32 s{T}, s{H}, 17
    s_lshl_b32 s{T1}, s{W}, 8
    s_add_u32 s{T}, s{T}, s{T1}
    v_add_u32 v{b0}, s{T}, v{t1}
    v_xor_b32 v{b1}, 128, v{b0}
    v_lshrrev_b32 v{t0}, 4, v{L}
    v_bfe_u32 v{t1}, v{L}, 2, 2
    v_lshl_add_u32 v{t2}, v{t0}, 3, v{t1}
    v_lshlrev_b32 v{t2}, 8, v{t2}
    v_and_b32 v{t0}, 1, v{t0}
    v_lshl_add_u32 v{t0}, v{t0}, 2, v{t1}
    v_lshl_add_u32 v{t2}, v{t0}, 5, v{t2}
    v_and_b32 v{t1}, 3, v{L}
    v_lshl_add_u32 v{t2}, v{t1}, 3, v{t2}
    v_add_u32 v{tt}, s{M0}, v{t2}
    """, b0=vB0, b1=vB1, tt=vT0, M0=sM0)
    def issue_wo(b):
        build_srd(k, S_SRD3, P_WO, 4096 * 1024)
        for i in range(16):
            k("s_add_u32 s%d, s%d, %d" % (T, sM0, b * 16384 + i * 1024))
            k("s_mov_b32 m0, s%d" % T)
            k("s_mov_b32 s%d, %d" % (T + 1, (64 * b + 4 * i) * 1024))
            k("buffer_load_dwordx4 v%d, s[%d:%d], s%d offen lds" % (vB1 if (i & 2) else vB0, S_SRD3, S_SRD3 + 3, T + 1))
    def read_chunk(n, slot):
        m, b = divmod(n, 8)
        for t in range(2):
            f = (m * 2 + t) * 8 + b
            base = 128 + 8 * f
            for j, dl in enumerate((0, 4, 32, 36)):
                k("ds_read_b64_tr_b16 %s, v%d offset:%d" % (ur(base + 2 * j, 2), vR1 if t else vR0, slot * 4096 + dl * 64))
    slot_of = {n: (n % 8 if n < 16 else 4 + (n % 4)) for n in range(24)}
    q = []
    def wait_for(tag):
        if not [1 for t, c in q if t == tag]: return
        idx = [i for i, (t, c) in enumerate(q) if t == tag][0]
        rem = sum(c for t, c in q[idx + 1:])
        k("s_waitcnt vmcnt(%d)" % rem)
        del q[:idx + 1]
    for n in range(8):
        issue_chunk(n, slot_of[n]); q.append((n, 4))
    for n in range(24):
        wait_for(n)
        read_chunk(n, slot_of[n])
        k("s_waitcnt lgkmcnt(0)")
        if n < 8:
            issue_chunk(n + 8, slot_of[n + 8]); q.append((n + 8, 4))
        elif n < 12:
            if n == 11:
                issue_wo(0); q.append(("wo0", 16))
        elif n < 20:
            issue_chunk(n + 4, slot_of[n + 4]); q.append((n + 4, 4))
        if n == 23:
            issue_wo(1); q.append(("wo1", 16))
    mark(1)
    def convert_wo(b):
        wait_for("wo%d" % b)
        base = 48
        for t in range(8):
            k("v_xor_b32 v%d, %d, v%d" % (t0, t * 32, vT0))
            for j, dl in enumerate((0, 4, 32, 36)):
                k("ds_read_b64_tr_b16 %s, v%d offset:%d" % (vr(base + 8 * t + 2 * j, 2), t0, b * 16384 + dl * 256))
        k("s_waitcnt lgkmcnt(0)")
        for t in range(8):
            for hf in range(2):
                k("ds_write_b128 v%d, %s offset:%d" % (vWO, vr(base + 8 * t + 4 * hf, 4), b * 16384 + (t * 2 + hf) * 1024))
        k("s_waitcnt lgkmcnt(0)")
    convert_wo(0)
    convert_wo(1)

    mark(2)
    build_srd(k, S_SRD2, P_MEM, 8 * 1024)
    k("v_lshlrev_b32 v%d, 2, v0" % t0)
    for q_ in range(8):
        k("s_mov_b32 s%d, %d" % (T, q_ * 1024))
        k("buffer_load_dword v%d, v%d, s[%d:%d], s%d offen" % (48 + q_, t0, S_SRD2, S_SRD2 + 3, T))
    F("""
    s_mov_b32 s{T}, 0x05040100
    s_mov_b32 s{T1}, 0x07060302
    v_lshlrev_b32 v{t1}, 5, v0
    v_bfe_u32 v{t2}, v0, 3, 1
    v_lshlrev_b32 v{t2}, 7, v{t2}
    v_xor_b32 v{t1}, v{t1}, v{t2}
    v_mov_b32 v64, 0
    v_mov_b32 v65, 0
    v_mov_b32 v66, 0
    v_mov_b32 v67, 0
    v_lshlrev_b32 v{t3}, 4, v0
    ds_write_b128 v{t3}, v[64:67] offset:{kt}
    s_waitcnt vmcnt(0)
    """, kt=L_KT)
    for m in range(4):
        k("v_perm_b32 v%d, v%d, v%d, s%d" % (56 + 2 * m, 49 + 2 * m, 48 + 2 * m, T))
        k("v_perm_b32 v%d, v%d, v%d, s%d" % (57 + 2 * m, 49 + 2 * m, 48 + 2 * m, T + 1))
    k("ds_write_b128 v%d, v[56:59]\nds_write_b128 v%d, v[60:63] offset:16" % (t1, t1))

    def flag_spin(soff, dst):
        Lp = k.uid("L_fl")
        k.label(Lp)
        k("v_mov_b32 v%d, s%d\ns_mov_b64 exec, 1" % (t0, soff))
        k("buffer_load_dword v%d, v%d, %s, 0 offen sc1" % (t1, t0, WSR))
        k("s_mov_b64 exec, -1\ns_waitcnt vmcnt(0)")
        k("v_readfirstlane_b32 s%d, v%d" % (dst, t1))
        spin_check(k, abort)
        k("s_cmp_ge_u32 s%d, 4" % dst)
        k("s_cbranch_scc0 %s" % Lp)
    def kv_loads():
        return ["buffer_load_dwordx4 %s, v%d, %s, s%d offen sc1" % (vr(vKn, 4), vKXw, WSR, sKV),
                "buffer_load_dwordx4 %s, v%d, %s, s%d offen offset:1024 sc1" % (vr(vKn + 4, 4), vKXw, WSR, sKV),
                "s_add_u32 s%d, s%d, 8192" % (T + 4, sKV),
                "buffer_load_dwordx4 %s, v%d, %s, s%d offen sc1" % (vr(vVn, 4), vKXw, WSR, T + 4),
                "buffer_load_dwordx4 %s, v%d, %s, s%d offen offset:1024 sc1" % (vr(vVn + 4, 4), vKXw, WSR, T + 4)]
    def kv_writes():
        return ["ds_write_b128 v%d, %s offset:%d" % (vKXw, vr(vKn, 4), L_KX),
                "ds_write_b128 v%d, %s offset:%d" % (vKXw, vr(vKn + 4, 4), L_KX + 1024),
                "ds_write_b128 v%d, %s offset:%d" % (vKXw, vr(vVn, 4), L_VX),
                "ds_write_b128 v%d, %s offset:%d" % (vKXw, vr(vVn + 4, 4), L_VX + 1024)]
    k("s_mov_b32 s%d, 0" % S_STEP)
    flag_spin(sFKV, sFlagVal)
    for x in kv_loads(): k(x)
    k("s_waitcnt vmcnt(0)")
    for x in kv_writes(): k(x)
    k("s_add_u32 s%d, s%d, %d\ns_add_u32 s%d, s%d, 4096" % (sKV, sKV, 16384, sFKV, sFKV))
    k("v_mov_b32 v%d, s%d\ns_mov_b64 exec, 1\nbuffer_load_dword v%d, v%d, %s, 0 offen sc1\ns_mov_b64 exec, -1\ns_waitcnt vmcnt(0)\nv_readfirstlane_b32 s%d, v%d" % (t0, sFKV, t1, t0, WSR, sFlagVal, t1))

    vA0 = 36; vACC = 68; vQB = 92; vKA = 108
    vM2 = 1
    def zero(base, n): return ["v_mov_b64 %s, 0" % vr(base + 2 * i, 2) for i in range(n // 2)]
    for x in zero(vACC, 24): k(x)
    k("v_xor_b32 v%d, 128, v%d" % (vM2, vTrM))
    k("s_waitcnt lgkmcnt(0)\ns_barrier")
    if stamps:
        for i in range(13): k("s_mov_b32 s%d, 0" % (89 + i))
        k("s_memtime s[62:63]\ns_waitcnt lgkmcnt(0)\ns_mov_b32 s88, s62")
    def stamp(i):
        if cut == i:
            k("s_branch L_cutend" + sfx)
        if stamps:
            k("s_memtime s[62:63]\ns_waitcnt lgkmcnt(0)\ns_sub_u32 s63, s62, s88\ns_add_u32 s%d, s%d, s63\ns_mov_b32 s88, s62" % (89 + i, 89 + i))
    def W(tau, b): return ur(128 + 8 * (tau * 8 + b), 8)
    def smf(acc, a, b): return "v_smfmac_f32_16x16x64_bf16 %s, %s, %s, v%d" % (vr(acc, 4), vr(a, 4), b, vIdx)
    def trM(b): return ["ds_read_b64_tr_b16 %s, v%d offset:%d" % (vr(vA0 + 4 * b, 2), vTrM, b * 1024),
                        "ds_read_b64_tr_b16 %s, v%d offset:%d" % (vr(vA0 + 4 * b + 2, 2), vM2, b * 1024)]
    mark(3)
    k("s_memtime s[60:61]\ns_waitcnt lgkmcnt(0)\ns_mov_b32 s59, s60")
    k.label("L_step" + sfx)
    for b in range(3):
        for x in trM(b): k(x)
    vKp = 92
    k("buffer_store_dwordx4 %s, v%d, %s, s%d offen sc1" % (vr(vKp, 4), vKpub, WSR, sKMp) if not (nopub or noimg) else "s_nop 0")
    k("s_cmp_ge_u32 s%d, 4\ns_cbranch_scc0 L_kvnotready%s" % (sFlagVal, sfx))
    k.label("L_kvready" + sfx)
    kvl = kv_loads()
    k(kvl.pop(2))
    k(kvl.pop(0))
    for b in range(8):
        k("s_waitcnt lgkmcnt(%d)" % (4 if b <= 5 else (2 if b == 6 else 0)))
        nx = trM(b + 3) if b + 3 < 8 else []
        k(smf(vACC + 0, vA0 + 4 * b, W(0, b)))
        if nx: k(nx[0])
        k(smf(vACC + 4, vA0 + 4 * b, W(1, b)))
        if nx: k(nx[1])
        if b in (1, 3, 5) and kvl: k(kvl.pop(0))
    assert not kvl
    stamp(0)
    order0 = [(t, ks) for ks in range(4) for t in range(2)]
    def halfsum(a): return ["v_add_f32 v%d, v%d, v%d" % (a, a, a + 2), "v_add_f32 v%d, v%d, v%d" % (a + 1, a + 1, a + 3), "v_cvt_pk_bf16_f32 v%d, v%d, v%d" % (a + 2, a, a + 1)]
    slow = ["s_add_u32 s%d, s%d, 4096" % (sFKV, sFKV), "v_mov_b32 v127, s%d" % sFKV, "v_mov_b32 v124, s%d" % sFKMq, "v_mov_b32 v125, 4",
            "s_mov_b64 exec, 1", "buffer_load_dword v%d, v127, %s, 0 offen sc1" % (vFl, WSR),
            "s_mov_b64 exec, s[%d:%d]" % (sExF, sExF + 1), "buffer_store_dword v125, v124, %s, 0 offen sc1" % WSR, "s_mov_b64 exec, -1"]
    prim = []
    for b in range(8):
        prim += [smf(vACC + 8, vA0 + 4 * b, W(2, b)), smf(vACC + 12, vA0 + 4 * b, W(3, b))]
    fill = slow + halfsum(vACC + 0) + ["ds_write_b32 v%d, v%d offset:%d" % (vQW, vACC + 2, L_QT)] + halfsum(vACC + 4) + ["ds_write_b32 v%d, v%d offset:%d" % (vQW, vACC + 6, L_QT + 256)]
    assert len(slow) == 9, len(slow)
    kxpre = ["ds_read_b128 %s, v%d offset:%d" % (vr(108 + 4 * i, 4), vL16, L_KX + (order0[i][0] * 4 + order0[i][1]) * 1024) for i in range(4)]
    fill = slow + fill[9:]
    for i, p in enumerate(prim):
        k(p)
        n = (2, 2, 2, 0, 2, 1, 0, 2, 2, 2, 2, 1, 1, 1, 1, 1)[i]
        for _ in range(n):
            if fill: k(fill.pop(0))
        if i in (10, 12, 14, 15): k(kxpre.pop(0))
    for x in fill: k(x)
    k("s_waitcnt lgkmcnt(4)\ns_barrier")
    stamp(1)
    qreads = []
    for ks in range(4):
        qreads += ["ds_read_b64_tr_b16 %s, v%d offset:%d" % (vr(vQB + 4 * ks, 2), vTrQ, L_QT + ks * 512),
                   "ds_read_b64_tr_b16 %s, v%d offset:%d" % (vr(vQB + 4 * ks + 2, 2), vTrQ, L_QT + ks * 512 + 256)]
    kxs = [vKA + 0, vKA + 4, vKA + 8, vKA + 12]
    order = [(t, ks) for ks in range(4) for t in range(2)]
    def kxread(i, dst):
        t, ks = order[i]
        return "ds_read_b128 %s, v%d offset:%d" % (vr(dst, 4), vL16, L_KX + (t * 4 + ks) * 1024)
    def vsm(b): return [smf(vACC + 16, vA0 + 4 * b, W(4, b)), smf(vACC + 20, vA0 + 4 * b, W(5, b))]
    kwr = ["ds_write_b32 v%d, v%d offset:%d" % (vKW, vACC + 10, L_KT), "ds_write_b32 v%d, v%d offset:%d" % (vKW, vACC + 14, L_KT + 512)]
    vM2k = 126
    for x in qreads: k(x)
    v01 = vsm(0) + vsm(1)
    k(v01[0]); k(v01[1])
    for x in halfsum(vACC + 8): k(x)
    k(kwr[0])
    for x in halfsum(vACC + 12): k(x)
    k(kwr[1])
    k(v01[2]); k(v01[3])
    for x in vsm(2) + vsm(3): k(x)
    k("s_waitcnt lgkmcnt(0)\ns_barrier")
    vS = vACC
    out = []
    def lwait(tag):
        if tag not in out: return
        idx = max(i for i, t in enumerate(out) if t == tag)
        k("s_waitcnt lgkmcnt(%d)" % (len(out) - idx - 1))
        del out[:idx + 1]
    def sx(i, src):
        t, ks = order[i]
        c = "0" if ks == 0 else vr(vS + 4 * t, 4)
        return "v_mfma_f32_16x16x32_bf16 %s, %s, %s, %s" % (vr(vS + 4 * t, 4), vr(src, 4), vr(vQB + 4 * ks, 4), c)
    vKA2 = vA0
    kar = []
    for ks in range(4):
        kar += ["ds_read_b64_tr_b16 %s, v%d offset:%d" % (vr(vKA2 + 4 * ks, 2), vTrK, L_KT + ks * 1024),
                "ds_read_b64_tr_b16 %s, v%d offset:%d" % (vr(vKA2 + 4 * ks + 2, 2), vTrK, L_KT + ks * 1024 + 512)]
    kar2 = list(kar)
    for i in range(4):
        k(sx(i, kxs[i]))
        for _ in range(2):
            k(kar2.pop(0)); out.append("ka")
    for i in range(4):
        k(kxread(4 + i, kxs[i])); out.append("kx%d" % (4 + i))
    ones = vACC + 12
    vVXf = vQB
    def woread(dst, t, b):
        return ["ds_read_b128 %s, v%d offset:%d" % (vr(dst, 4), vWO, b * 16384 + (t * 2) * 1024),
                "ds_read_b128 %s, v%d offset:%d" % (vr(dst + 4, 4), vWO, b * 16384 + (t * 2 + 1) * 1024)]
    wolist = [(t, b) for t in range(8) for b in range(2)]
    slots = [36, 44, 52, 60, 108, 116]
    for b in range(4, 8):
        for x in vsm(b): k(x)
    lwait("ka")
    vPx = vQB + 8; vPm = vQB + 12; vVm0 = vQB + 14; vVm1 = 124
    dense = []
    for ks in range(4):
        c = "0" if ks == 0 else vr(vS + 8, 4)
        dense.append(("v_mfma_f32_16x16x32_bf16 %s, %s, %s, %s" % (vr(vS + 8, 4), vr(vKA2 + 4 * ks, 4), vr(vQB + 4 * ks, 4), c), None))
    for i in range(4, 8): dense.append((sx(i, kxs[i - 4]), "kx%d" % i))
    vT0v = 125
    fill = ["v_mov_b32 v%d, 0x3f803f80" % (ones + i) for i in range(4)] + \
           ["v_add_f32 v%d, v%d, v%d" % (vACC + 16, vACC + 16, vACC + 18), "v_add_f32 v%d, v%d, v%d" % (vACC + 17, vACC + 17, vACC + 19),
            "v_add_f32 v%d, v%d, v%d" % (vACC + 20, vACC + 20, vACC + 22), "v_add_f32 v%d, v%d, v%d" % (vACC + 21, vACC + 21, vACC + 23),
            "v_cvt_pk_bf16_f32 v%d, v%d, v%d" % (vACC + 18, vACC + 16, vACC + 17), "v_cvt_pk_bf16_f32 v%d, v%d, v%d" % (vACC + 22, vACC + 20, vACC + 21),
            "ds_write_b32 v%d, v%d offset:%d" % (vKW, vACC + 18, L_KT + 4), "ds_write_b32 v%d, v%d offset:%d" % (vKW, vACC + 22, L_KT + 512 + 4)]
    for i, (x, tag) in enumerate(dense):
        if tag: lwait(tag)
        k(x)
        n = (2, 2, 0, 2, 2, 2, 2, 0)[i]
        for _ in range(n):
            if fill:
                f = fill.pop(0); k(f)
                if f.startswith("ds_"): out.append("vw")
    for f in fill:
        k(f)
    vVXf = vQB
    k("ds_read_b128 %s, v%d offset:%d" % (vr(vVXf, 4), vKXw, L_VX))
    k("ds_read_b128 %s, v%d offset:%d" % (vr(vVXf + 4, 4), vKXw, L_VX + 1024))
    for x in woread(slots[0], *wolist[0]): k(x)
    k("v_mov_b32 v%d, v%d" % (vVm0, vACC + 18))
    k("v_mov_b32 v%d, v%d" % (vVm1, vACC + 22))
    k("v_mov_b32 v%d, 0\nv_mov_b32 v%d, 0\nv_mov_b32 v%d, 0" % (vPm + 1, vVm0 + 1, vVm1 + 1))
    stamp(2)
    vals = [vS + i for i in range(10)]
    m = 126; m2 = 127
    k("v_max3_f32 v%d, v%d, v%d, v%d" % (m, vals[0], vals[1], vals[2]))
    k("v_max3_f32 v%d, v%d, v%d, v%d" % (m2, vals[3], vals[4], vals[5]))
    k("v_max3_f32 v%d, v%d, v%d, v%d" % (m, m, vals[6], vals[7]))
    k("v_max3_f32 v%d, v%d, v%d, v%d" % (m2, m2, vals[8], vals[9]))
    k("v_max_f32 v%d, v%d, v%d" % (m, m, m2))
    k("v_mov_b32 v%d, v%d" % (m2, m))
    wo_pre = woread(slots[1], *wolist[1]) + woread(slots[4], *wolist[4]) + woread(slots[5], *wolist[5]) + woread(slots[2], *wolist[2]) + woread(slots[3], *wolist[3])
    k(wo_pre.pop(0)); k(wo_pre.pop(0))
    k("v_permlane32_swap_b32 v%d, v%d\nv_max_f32 v%d, v%d, v%d\nv_mov_b32 v%d, v%d" % (m, m2, m, m, m2, m2, m))
    k(wo_pre.pop(0)); k(wo_pre.pop(0))
    k("v_permlane16_swap_b32 v%d, v%d\nv_max_f32 v%d, v%d, v%d" % (m, m2, m, m, m2))
    k("v_mul_f32 v%d, s%d, v%d" % (m, sC, m))
    k("v_mov_b32 v%d, s%d" % (m2, sC))
    for i in range(5):
        k("v_pk_fma_f32 %s, %s, v[126:127], v[126:127] op_sel:[0,1,0] op_sel_hi:[1,1,0] neg_lo:[0,0,1] neg_hi:[0,0,1]" % (vr(vals[2 * i], 2), vr(vals[2 * i], 2)))
    for v in vals: k("v_exp_f32 v%d, v%d" % (v, v))
    k("v_cvt_pk_bf16_f32 v%d, v%d, v%d" % (vPx + 0, vals[0], vals[1]))
    k("v_cvt_pk_bf16_f32 v%d, v%d, v%d" % (vPx + 1, vals[2], vals[3]))
    k("v_cvt_pk_bf16_f32 v%d, v%d, v%d" % (vPx + 2, vals[4], vals[5]))
    k("v_cvt_pk_bf16_f32 v%d, v%d, v%d" % (vPx + 3, vals[6], vals[7]))
    k("v_cvt_pk_bf16_f32 v%d, v%d, v%d" % (vPm, vals[8], vals[9]))
    vO = vACC + 16; vSum = vACC + 8
    k("s_waitcnt lgkmcnt(6)")
    k("v_mfma_f32_16x16x32_bf16 %s, %s, %s, 0" % (vr(vSum, 4), vr(ones, 4), vr(vPx, 4)))
    k(wo_pre.pop(0)); k(wo_pre.pop(0))
    k("v_mfma_f32_16x16x32_bf16 %s, %s, %s, 0" % (vr(vO, 4), vr(vVXf, 4), vr(vPx, 4)))
    k(wo_pre.pop(0)); k(wo_pre.pop(0))
    k("v_mfma_f32_16x16x16_bf16 %s, %s, %s, %s" % (vr(vSum, 4), vr(ones, 2), vr(vPm, 2), vr(vSum, 4)))
    k(wo_pre.pop(0)); k(wo_pre.pop(0))
    k("v_mfma_f32_16x16x32_bf16 %s, %s, %s, 0" % (vr(vO + 4, 4), vr(vVXf + 4, 4), vr(vPx, 4)))
    k("v_mfma_f32_16x16x16_bf16 %s, %s, %s, %s" % (vr(vO, 4), vr(vVm0, 2), vr(vPm, 2), vr(vO, 4)))
    k("v_mfma_f32_16x16x16_bf16 %s, %s, %s, %s" % (vr(vO + 4, 4), vr(vVm1, 2), vr(vPm, 2), vr(vO + 4, 4)))
    assert not wo_pre
    k("s_cmp_eq_u32 s%d, %d\ns_cbranch_scc1 L_chain_fin%s" % (S_STEP, nsteps - 1, sfx))
    k("s_and_b32 s%d, s%d, 1" % (sTag, S_STEP))
    for x in zero(68, 4): k(x)
    k("v_rcp_f32 v126, v%d" % vSum)
    for x in zero(80, 4) + zero(92, 8): k(x)
    for i in range(4):
        k("v_pk_mul_f32 %s, %s, v[126:127] op_sel_hi:[1,0]" % (vr(vO + 2 * i, 2), vr(vO + 2 * i, 2)))
    vOc = 100
    for i in range(4): k("v_cvt_pk_bf16_f32 v%d, v%d, v%d" % (vOc + i, vO + 2 * i, vO + 2 * i + 1))
    for i in range(4): k("ds_write_b32 v%d, v%d offset:%d" % (vOW, vOc + i, L_OX + 16 * i))
    for x in zero(72, 8) + zero(84, 8): k(x)
    k("s_waitcnt lgkmcnt(0)\ns_barrier")
    stamp(3)
    accs = [68, 72, 76, 80, 84, 88, 92, 96]
    vAo = 100
    k("ds_read_b128 %s, v%d offset:%d" % (vr(vAo, 4), vOR, L_OX))
    k("ds_read_b128 %s, v%d offset:%d" % (vr(vAo + 4, 4), vOR, L_OX + 128))
    out = ["ao0", "ao1"]
    ns = len(slots)
    def epi(j):
        a = accs[4 * j:4 * j + 4]
        G = 124 if j == 0 else accs[0]
        if j == 0:
            L = []
            for t in range(4): L += ["v_add_f32 v%d, v%d, v%d" % (a[t], a[t], a[t] + 2), "v_add_f32 v%d, v%d, v%d" % (a[t] + 1, a[t] + 1, a[t] + 3)]
        else:
            L = ["v_pk_add_f32 %s, %s, %s" % (vr(a[t], 2), vr(a[t], 2), vr(a[t] + 2, 2)) for t in range(4)]
        L += ["v_cvt_pk_bf16_f32 v%d, v%d, v%d" % (G + t, a[t], a[t] + 1) for t in range(4)]
        L += ["s_nop 0",
              "v_permlane32_swap_b32 v%d, v%d" % (G + 0, G + 2), "v_permlane32_swap_b32 v%d, v%d" % (G + 1, G + 3),
              "s_nop 1",
              "v_permlane16_swap_b32 v%d, v%d" % (G + 0, G + 1), "v_permlane16_swap_b32 v%d, v%d" % (G + 2, G + 3),
              "v_and_or_b32 v%d, v%d, -2, s%d" % (G, G, sTag),
              "buffer_store_dwordx4 %s, v%d, %s, s%d offen%s" % (vr(G, 4), vPst, WSR, sPst + j, PL)]
        return L
    pend = []
    def need(tag):
        if tag in out:
            idx = max(j for j, x in enumerate(out) if x == tag)
            k("s_waitcnt lgkmcnt(%d)" % (len(out) - idx - 1)); del out[:idx + 1]
    for i in range(16):
        t, b = wolist[i]
        need("ao%d" % b)
        need(i)
        k("v_smfmac_f32_16x16x64_bf16 %s, %s, %s, v%d" % (vr(accs[t], 4), vr(vAo + 4 * b, 4), vr(slots[i % ns], 8), vIdx))
        if i + ns < 16:
            for x in woread(slots[i % ns], *wolist[i + ns]): k(x)
            out += [i + ns, i + ns]
        if i == 10: pend += epi(0)
        for _ in range(4):
            if pend: k(pend.pop(0))
    for x in pend: k(x)
    k("s_nop 4")
    for x in epi(1): k(x)
    stamp(4)
    k("s_waitcnt vmcnt(2)")
    for x in kv_writes(): k(x)
    k("v_readfirstlane_b32 s%d, v%d" % (sFlagVal, vFl))
    F("""
    s_add_u32 s{T}, s{st}, 1
    s_and_b32 s{T1}, s{T}, 3
    s_lshl_b32 s{T1}, s{T1}, 13
    s_add_u32 s{T2}, s{T1}, s{mb}
    s_add_u32 s{T}, s{st}, 3
    s_and_b32 s{T1}, s{T}, 3
    s_lshl_b32 s{clr}, s{T1}, 13
    s_add_u32 s{clr}, s{clr}, s{mb}
    s_lshl_b32 s{T}, s{H}, 8
    s_add_u32 s{mst}, s{T2}, s{T}
    s_add_u32 s{clr}, s{clr}, s{T}
    s_lshl_b32 s{T}, s{W}, 6
    s_add_u32 s{clr}, s{clr}, s{T}
    s_lshl_b32 s{T}, s{W}, 11
    s_add_u32 s{mld}, s{T2}, s{T}
    """, st=S_STEP, clr=sClr, mb=sMbase, mst=sMst, mld=sMld)
    vSel = 68
    PB = 36
    def pb_loads():
        k("buffer_load_dwordx4 %s, v%d, %s, s%d offen sc1" % (vr(PB, 4), vPld, WSR, sPld))
        k("buffer_load_dwordx4 %s, v%d, %s, s%d offen sc1" % (vr(PB + 4, 4), vPld, WSR, sPld2))
    def selbuild():
        k("""
        v_bfe_u32 v76, v{l16}, 6, 2
        v_bfe_u32 v77, v{l16}, 4, 1
        v_lshlrev_b32 v77, 4, v77
        v_mov_b32 v78, 0x3f80
        v_lshlrev_b32 v77, v77, v78
        v_bfe_u32 v78, v{l16}, 5, 1
        v_cmp_eq_u32 vcc, 0, v78
        v_mov_b32 v79, 0
        s_nop 0
        v_cndmask_b32 v77, v79, v77, vcc
        """.format(l16=vL16))
        for i in range(4):
            k("v_cmp_eq_u32 vcc, %d, v76\nv_mov_b32 v%d, 0\ns_nop 0\nv_cndmask_b32 v%d, v79, v77, vcc" % (i, vSel + i, vSel + i))
        k("v_mov_b64 v[76:77], -1\nv_mov_b64 v[78:79], -1\ns_mov_b64 exec, 15")
        k("buffer_store_dwordx4 v[76:79], v%d, %s, s%d offen%s\ns_mov_b64 exec, -1" % (vL16, WSR, sClrNow, PL))
    if earlyB:
        if d1: k.nop(d1)
        if not probe: stamp(9)
        pb_loads()
        selbuild()
    else:
        selbuild()
        if not probe: stamp(9)
        if waitack: k("s_waitcnt vmcnt(0)")
        if d1: k.nop(d1)
        pb_loads()
    Lpb = k.uid("L_pollB"); Lpb1 = k.uid("L_pollB1")
    k("s_branch %s" % Lpb1)
    k.label(Lpb)
    pb_loads()
    k("s_nop 0") if earlyB else None
    k.label(Lpb1)
    k("s_waitcnt vmcnt(0)")
    k("v_mfma_f32_16x16x32_bf16 v[72:75], %s, %s, 0" % (vr(vSel, 4), vr(PB, 4)))
    k("v_xor_b32 v76, s%d, v%d" % (sTag, PB))
    k("v_mfma_f32_16x16x32_bf16 v[72:75], %s, %s, v[72:75]" % (vr(vSel, 4), vr(PB + 4, 4)))
    k("v_xor_b32 v77, s%d, v%d\nv_or_b32 v76, v76, v77" % (sTag, PB + 4))
    k("v_and_b32 v76, 1, v76\nv_cmp_ne_u32 vcc, 0, v76")
    if stamps or marks: k("s_add_u32 s100, s100, 63")
    spin_check(k, abort)
    k("s_cbranch_vccnz %s" % Lpb if not nohop else "s_nop 0")
    stamp(5)
    if not stamps: k("s_nop 0")
    k("v_add_f32_dpp v72, v72, v72 row_ror:4 row_mask:0xf bank_mask:0xf")
    k("v_add_f32_dpp v73, v73, v73 row_ror:4 row_mask:0xf bank_mask:0xf")
    k("s_nop 0")
    k("v_add_f32_dpp v72, v72, v72 row_ror:8 row_mask:0xf bank_mask:0xf")
    k("v_add_f32_dpp v73, v73, v73 row_ror:8 row_mask:0xf bank_mask:0xf")
    k("v_cvt_pk_bf16_f32 v76, v72, v73")
    k("s_nop 1")
    k("v_mov_b32_dpp v77, v76 quad_perm:[1,0,3,2] row_mask:0xf bank_mask:0xf")
    k("v_mov_b32 v78, v76")
    k("s_nop 0")
    k("v_mov_b32 v79, v77")
    k("v_permlane16_swap_b32 v76, v78")
    k("s_nop 0")
    k("v_permlane16_swap_b32 v77, v79")
    k("s_mov_b32 exec_lo, 5\ns_mov_b32 exec_hi, 5")
    k("v_min_u32 v76, -2, v76")
    k("buffer_store_dwordx4 v[76:79], v%d, %s, s%d offen%s" % (vMst, WSR, sMst, PL))
    k("s_mov_b64 exec, -1")
    if not probe: stamp(6)
    k.label("L_cutend" + sfx)
    if cut < 99:
        k("s_and_b32 s%d, s%d, 1" % (sTag, S_STEP))
        k("s_cmp_eq_u32 s%d, %d\ns_cbranch_scc1 L_chain_fin%s" % (S_STEP, nsteps - 1, sfx))
    k("""
    s_add_u32 s{st}, s{st}, 1
    s_add_u32 s{kv}, s{kv}, {kvs}
    s_mov_b32 s{kmp}, s{km}
    s_add_u32 s{km}, s{km}, {kms}
    s_mov_b32 s{fq}, s{fp}
    s_mov_b32 s{fp}, s{fm}
    s_add_u32 s{fm}, s{fm}, 4096
    """.format(fp=sFKMp, fq=sFKMq, kmp=sKMp, st=S_STEP, kv=sKV, km=sKM, kvs=16384, kms=4096, fm=sFKM))
    for x in zero(vACC, 24): k(x)
    k("v_xor_b32 v%d, 128, v%d" % (vM2, vTrM))
    if cut < 99:
        k("s_waitcnt lgkmcnt(0)\ns_barrier\ns_branch L_step" + sfx)
    if waitackC: k("s_waitcnt vmcnt(0)")
    if d2: k.nop(d2)
    Lg2 = k.uid("L_pollC")
    k.label(Lg2)
    for i in range(2):
        k("buffer_load_dwordx4 %s, v%d, %s, s%d offen offset:%d sc1" % (vr(36 + 4 * i, 4), vL16, WSR, sMld, i * 1024))
    k("s_waitcnt vmcnt(0)")
    k("v_cmp_eq_u32 vcc, -1, v36\nv_cmp_eq_u32 s[46:47], -1, v40\ns_or_b64 vcc, vcc, s[46:47]")
    if stamps or marks: k("s_add_u32 s101, s101, 63")
    spin_check(k, abort)
    k("s_cbranch_vccnz %s" % Lg2 if not nohop else "s_nop 0")
    if probe:
        stamp(7)
        for i in range(2):
            k("buffer_load_dwordx4 %s, v%d, %s, s%d offen offset:%d sc1" % (vr(36 + 4 * i, 4), vL16, WSR, sMld, i * 1024))
        k("s_waitcnt vmcnt(0)")
        stamp(6)
        for i in range(2):
            k("buffer_load_dwordx4 %s, v%d, %s, s%d offen offset:%d sc1" % (vr(36 + 4 * i, 4), vL16, WSR, sMld, i * 1024))
        k("s_waitcnt vmcnt(0)")
        stamp(9)
    for i in range(2):
        k("ds_write_b128 v%d, %s offset:%d" % (vMlds, vr(36 + 4 * i, 4), L_MEMT + i * 1024))
    k("ds_read_b128 v[92:95], v%d offset:%d" % (vKpub, L_KT))
    stamp(7)
    k("s_waitcnt lgkmcnt(0)\ns_barrier")
    stamp(8)
    k("s_branch L_step" + sfx)
    k.label("L_kvnotready" + sfx)
    k("s_cmp_ge_u32 s%d, %d\ns_cbranch_scc1 L_kvready%s" % (S_STEP, nsteps - 1, sfx))
    flag_spin(sFKV, sFlagVal)
    k("s_branch L_kvready" + sfx)
    k.label("L_chain_fin" + sfx)
    k("s_memtime s[60:61]\ns_waitcnt lgkmcnt(0)\ns_sub_u32 s59, s60, s59")
    k("s_waitcnt vmcnt(0) lgkmcnt(0)\ns_barrier")
    k("v_mov_b32 v124, s%d\nv_mov_b32 v125, 1\ns_mov_b64 exec, 1" % sFKMp)
    k("buffer_atomic_add v125, v124, %s, 0 offen sc1\ns_mov_b64 exec, -1" % WSR)
    k("ds_read_b128 v[72:75], v%d offset:%d\ns_waitcnt lgkmcnt(0)" % (vKpub, L_KT))
    k("buffer_store_dwordx4 v[72:75], v%d, %s, s%d offen sc1\ns_waitcnt vmcnt(0)" % (vKpub, WSR, sKM))
    k("v_mov_b32 v124, s%d\nv_mov_b32 v125, 1\ns_mov_b64 exec, 1" % sFKM)
    k("buffer_atomic_add v125, v124, %s, 0 offen sc1\ns_mov_b64 exec, -1\ns_waitcnt vmcnt(0)" % WSR)
    if dump:
        if not stamps:
            for i in range(11 if marks else 13): k("s_mov_b32 s%d, 0" % (89 + i))
        k("s_mov_b32 s99, s59")
        if marks:
            mark(4)
            for i in range(5): k("s_mov_b32 s%d, s%d" % (89 + i, 52 + i))
        k("s_lshl_b32 s%d, s%d, 5\ns_add_u32 s%d, s%d, s%d" % (T, S_L, T, T, S_RANK))
        k("s_lshl_b32 s%d, s%d, 2\ns_add_u32 s%d, s%d, s%d\ns_lshl_b32 s%d, s%d, 6" % (T, T, T, T, S_WAVE, T, T))
        k("s_add_u32 s%d, s%d, 0x%x" % (T, T, 0xF000000))
        for i in range(13):
            k("v_mov_b32 v%d, s%d" % (40 + i, 89 + i))
        k("v_mov_b32 v124, s%d" % T)
        k("s_mov_b64 exec, 1")
        for i in range(4):
            k("buffer_store_dwordx4 %s, v124, %s, 0 offen offset:%d" % (vr(40 + 4 * i, 4), WSR, 16 * i))
        k("s_waitcnt vmcnt(0)")
    k("s_branch L_end")
```

```python
S=2048; D=512; H=32; DH=128; MEMN=8; SEG=32; NSEG=64; F=1792
WS_BYTES = 268435456
FL = 128
OFF_FLAGS = 0
F_KV  = 0x00000
F_KM  = 0x80000
F_XN  = 0x100000
F_O   = 0x104000
F_P3  = 0x114000
F_XF  = 0x118000
F_H   = 0x11C000
F_P5  = 0x124000
F_W0   = 0x12E000
F_DUMMY = 0x128000
FLAGS_BYTES = 0x130000
OFF_P   = 0x130000
P_LSTRIDE = 0x40000
OFF_M   = 0x1B0000
M_LSTRIDE = 0x8000
OFF_KV  = 0x200000
KV_L = 64*32*16384
OFF_KM  = OFF_KV + 2*KV_L
KM_L = 64*32*4096
OFF_XN  = OFF_KM + 2*KM_L
XN_L = 64*32768
OFF_XF  = OFF_XN + 2*XN_L
OFF_X1  = OFF_XF + 2*XN_L
X_L = S*D*2
OFF_X2  = OFF_X1 + 2*X_L
OFF_O   = OFF_X2 + X_L
O_SEG = 128*2*1024
O_L = 64*O_SEG
OFF_P3  = OFF_O + 2*O_L
P3_SEG = 4*32*2*1024
P3_L = 64*P3_SEG
OFF_H   = OFF_P3 + 2*P3_L
H_SEG = 56*2*1024
H_L = 64*H_SEG
OFF_P5  = OFF_H + 2*H_L
P5_SEG = 2*32*2*1024
P5_L = 64*P5_SEG
WS_END = OFF_P5 + 2*P5_L
OFF_DBG = 0xF000000
assert WS_END <= OFF_DBG, hex(WS_END)
if __name__=="__main__":
    for k,v in list(globals().items()):
        if k.startswith("OFF_") or k=="WS_END": print(k,hex(v), v/2**20)
```

```python
from asmlib import *
from layout import *
from chain import (S_WS, S_SRD2, S_SRD3, S_WAVE, S_RANK, S_XCC, S_L, S_T0, S_SPIN, S_STEP, P_X, P_MEM, P_WQ, P_WK, P_WV, P_WO, P_WG, P_WU, P_WD,
                   P_OUT, P_DBG, P_WSP, build_srd, spin_check, f32, interleave, SCALE_LOG2E)
WSR = "s[%d:%d]" % (S_WS, S_WS + 3)
T = S_T0
ABORT = "L_abort"

def fmt(k, _txt, **kw):
    d = dict(T=T, T1=T + 1, T2=T + 2, T3=T + 3, W=S_WAVE, R=S_RANK, LY=S_L)
    d.update(kw); k(_txt.format(**d))

def wait_flag(k, soff, target, va, vb, sleep=True):
    Lp = k.uid("L_wf")
    k("v_mov_b32 v%d, s%d" % (va, soff))
    k.label(Lp)
    k("s_mov_b64 exec, 1")
    k("buffer_load_dword v%d, v%d, %s, 0 offen sc1" % (vb, va, WSR))
    k("s_mov_b64 exec, -1\ns_waitcnt vmcnt(0)")
    k("v_readfirstlane_b32 s%d, v%d" % (T, vb))
    spin_check(k, ABORT)
    k("s_cmp_ge_u32 s%d, %d" % (T, target))
    Ld = k.uid("L_wfd")
    k("s_cbranch_scc1 %s" % Ld)
    if sleep: k("s_sleep 2")
    k("s_branch %s" % Lp)
    k.label(Ld)

def signal_add(k, soff, va, vb):
    Ls = k.uid("L_sg")
    k("s_cmp_eq_u32 s%d, 0\ns_cbranch_scc0 %s" % (S_WAVE, Ls))
    k("v_mov_b32 v%d, s%d\nv_mov_b32 v%d, 1\ns_mov_b64 exec, 1" % (va, soff, vb))
    k("buffer_atomic_add v%d, v%d, %s, 0 offen sc1\ns_mov_b64 exec, -1" % (vb, va, WSR))
    k.label(Ls)

def signal_store(k, soff, val, va, vb):
    Ls = k.uid("L_sg")
    k("s_cmp_eq_u32 s%d, 0\ns_cbranch_scc0 %s" % (S_WAVE, Ls))
    k("v_mov_b32 v%d, s%d\nv_mov_b32 v%d, %d\ns_mov_b64 exec, 1" % (va, soff, vb, val))
    k("buffer_store_dword v%d, v%d, %s, 0 offen sc1\ns_mov_b64 exec, -1" % (vb, va, WSR))
    k.label(Ls)

def load_weights(k, chunks, vL, vt, ring_base_sgpr, nslots=8):
    vA0, vA1, vB0, vB1, t0, t1, t2 = vt + 0, vt + 1, vt + 2, vt + 3, vt + 4, vt + 5, vt + 6
    vOffs = {}
    strides = sorted(set(c["stride"] for c in chunks))
    assert len(strides) == 1
    stride = strides[0]
    vOff = vt + 7
    fmt(k, """
    v_bfe_u32 v{t0}, v{L}, 4, 1
    v_bfe_u32 v{t1}, v{L}, 5, 1
    v_xor_b32 v{t0}, v{t0}, v{t1}
    v_lshlrev_b32 v{t0}, 1, v{t0}
    v_and_b32 v{t1}, 3, v{L}
    v_xor_b32 v{t0}, v{t0}, v{t1}
    v_lshlrev_b32 v{t0}, 4, v{t0}
    v_lshrrev_b32 v{t1}, 2, v{L}
    s_mov_b32 s{T}, {stride}
    v_mul_lo_u32 v{t1}, s{T}, v{t1}
    v_add_u32 v{o}, v{t0}, v{t1}
    ; natural: A0 = (8g+j)*64 + 8m + 32*(g&1)
    v_lshrrev_b32 v{t0}, 4, v{L}
    v_bfe_u32 v{t1}, v{L}, 2, 2
    v_lshl_add_u32 v{t2}, v{t0}, 3, v{t1}
    v_lshlrev_b32 v{t2}, 6, v{t2}
    v_and_b32 v{a0}, 3, v{L}
    v_lshl_add_u32 v{t2}, v{a0}, 3, v{t2}
    v_and_b32 v{a0}, 1, v{t0}
    v_lshl_add_u32 v{t2}, v{a0}, 5, v{t2}
    v_add_u32 v{a0}, s{rb}, v{t2}
    v_xor_b32 v{a1}, 32, v{a0}
    ; pi: B0 = (4g+j)*64 + 8m + 32*((g&1)^(g>>1))
    v_lshl_add_u32 v{t2}, v{t0}, 2, v{t1}
    v_lshlrev_b32 v{t2}, 6, v{t2}
    v_and_b32 v{b0}, 3, v{L}
    v_lshl_add_u32 v{t2}, v{b0}, 3, v{t2}
    v_lshrrev_b32 v{t1}, 1, v{t0}
    v_xor_b32 v{t1}, v{t1}, v{t0}
    v_and_b32 v{t1}, 1, v{t1}
    v_lshl_add_u32 v{t2}, v{t1}, 5, v{t2}
    v_add_u32 v{b0}, s{rb}, v{t2}
    v_xor_b32 v{b1}, 32, v{b0}
    """, L=vL, t0=t0, t1=t1, t2=t2, o=vOff, a0=vA0, a1=vA1, b0=vB0, b1=vB1, stride=stride, rb=ring_base_sgpr)
    cur = [None]
    def issue(n):
        c = chunks[n]; slot = n % nslots
        if cur[0] != c["ptr"]:
            build_srd(k, S_SRD2, c["ptr"], c["nbytes"]); cur[0] = c["ptr"]
        for i in range(4):
            k("s_add_u32 s%d, s%d, %d" % (T, ring_base_sgpr, slot * 4096 + i * 1024))
            k("s_mov_b32 m0, s%d" % T)
            k("s_add_u32 s%d, s%d, %d" % (T + 1, c["scol"], (c["row0"] + 16 * i) * stride))
            k("buffer_load_dwordx4 v%d, s[%d:%d], s%d offen lds" % (vOff, S_SRD2, S_SRD2 + 3, T + 1))
    def read(n):
        c = chunks[n]; slot = n % nslots
        for t in range(2):
            for ks2 in range(2):
                d = c["dest"][(t, ks2)]
                for hf in range(2):
                    if c["order"] == "n":
                        a = vA1 if (t ^ hf) else vA0; off = ks2 * 2048 + hf * 256
                    else:
                        a = vB1 if t else vB0; off = ks2 * 2048 + hf * 1024
                    k("ds_read_b64_tr_b16 %s, v%d offset:%d" % (ur(d + 2 * hf, 2), a, slot * 4096 + off))
    N = len(chunks)
    for n in range(min(nslots, N)): issue(n)
    for n in range(N):
        rem = min(N - 1 - n, nslots - 1) * 4
        k("s_waitcnt vmcnt(%d)" % rem)
        read(n)
        k("s_waitcnt lgkmcnt(0)")
        if n + nslots < N: issue(n + nslots)

def gemm_role(k, name, NK, NT, chunks_fn, in_off, in_lstride, in_sstride, in_kbase_fn, in_layout, wflag_fn, wtarget, epi_fn, sflag_fn, nseg=64, NC=4):
    vL = 1; vL16 = 2
    k("v_and_b32 v%d, 63, v0\nv_lshlrev_b32 v%d, 4, v%d" % (vL, vL16, vL))
    sRing = T + 5
    fmt(k, "s_mul_i32 s{r}, s{W}, 40960", r=sRing)
    chunks = chunks_fn(k)
    load_weights(k, chunks, vL, 8, sRing)
    k("s_barrier")
    BUF = 2 * NK * 1024
    sIn, sWf, sSf, sBuf, sIss, sFv, sEp = 66, 67, 68, 69, 70, 71, 72
    fmt(k, "s_mul_i32 s{i}, s{LY}, 0x{ls:x}\ns_add_u32 s{i}, s{i}, 0x{o:x}", i=sIn, ls=in_lstride, o=in_off)
    in_kbase_fn(k, sIn)
    wflag_fn(k, sWf); sflag_fn(k, sSf)
    epi_init, epi = epi_fn(k, sEp)
    nd = 2 * NK // 4
    assert (2 * NK) % 4 == 0 and NK % NC == 0
    per = NK // NC
    def dma(sbase, sbuf):
        for j in range(nd):
            k("s_add_u32 s%d, s%d, %d" % (T, sbuf, j * 4096))
            k("s_mov_b32 m0, s%d" % T)
            k("s_add_u32 s%d, s%d, %d" % (T + 1, sbase, j * 4096 if in_layout == "kt" else j * 2048))
            k("buffer_load_dwordx4 v%d, %s, s%d offen sc1 lds" % (vL16, WSR, T + 1))
    sWl, sWg, sDst = 73, 74, 75
    fmt(k, "s_lshl_b32 s{a}, s{W}, 10", a=sWl)
    if in_layout == "kt": fmt(k, "s_lshl_b32 s{a}, s{W}, 10", a=sWg)
    else: fmt(k, "s_and_b32 s{T}, s{W}, 1\ns_lshl_b32 s{T}, s{T}, 14\ns_lshr_b32 s{T1}, s{W}, 1\ns_lshl_b32 s{T1}, s{T1}, 10\ns_add_u32 s{a}, s{T}, s{T1}", a=sWg)
    def issue_dma(nextbuf_sgpr):
        k("s_add_u32 s%d, s%d, s%d" % (T + 2, sIn, sWg))
        k("s_add_u32 s%d, s%d, s%d" % (T + 3, nextbuf_sgpr, sWl))
        dma(T + 2, T + 3)
    vFa, vFb = 3, 4
    k("s_mov_b32 s%d, 0\ns_mov_b32 s%d, 0" % (S_STEP, sBuf))
    epi_init()
    wait_flag(k, sWf, wtarget, vFa, vFb)
    issue_dma(sBuf)
    vRd = 5
    vB = 8
    vAcc = 32
    Lloop = "L_%s_loop" % name
    k.label(Lloop)
    k("v_add_u32 v%d, s%d, v%d" % (vRd, sBuf, vL16))
    k("s_add_u32 s%d, s%d, %d" % (sIn, sIn, in_sstride))
    k("s_add_u32 s%d, s%d, %d" % (sWf, sWf, wflag_fn.stride))
    k("v_mov_b32 v%d, s%d\ns_mov_b64 exec, 1" % (vFa, sWf))
    k("buffer_load_dword v%d, v%d, %s, 0 offen sc1\ns_mov_b64 exec, -1" % (vFb, vFa, WSR))
    def rd(ks):
        s_ = vB + 8 * (ks % 3)
        return ["ds_read_b128 %s, v%d offset:%d" % (vr(s_, 4), vRd, (ks * 2) * 1024), "ds_read_b128 %s, v%d offset:%d" % (vr(s_ + 4, 4), vRd, (ks * 2 + 1) * 1024)]
    for c in range(NC):
        need = ((c + 1) * per * 2 + 3) // 4
        k("s_waitcnt vmcnt(%d)\ns_barrier" % (nd - need + 1))
        ks0 = c * per
        for x in rd(ks0): k(x)
        if per > 1:
            for x in rd(ks0 + 1): k(x)
        for ks in range(ks0, ks0 + per):
            nxt = ks + 2
            pend = 2 * (min(ks0 + per - 1, ks + 1) - ks)
            k("s_waitcnt lgkmcnt(%d)" % pend)
            s_ = vB + 8 * (ks % 3)
            mf = []
            for t in range(NT):
                for tt in range(2):
                    a = vAcc + (t * 2 + tt) * 4
                    mf.append("v_mfma_f32_16x16x32_bf16 %s, %s, %s, %s" % (vr(a, 4), ur(chunks_fn.frag(t, ks), 4), vr(s_ + 4 * tt, 4), "0" if ks == 0 else vr(a, 4)))
            fill = rd(nxt) if nxt < ks0 + per else []
            interleave(k, mf, fill, per=1, start=0)
    k("s_waitcnt vmcnt(0)")
    k("v_readfirstlane_b32 s%d, v%d" % (sFv, vFb))
    k("s_xor_b32 s%d, s%d, %d" % (sBuf, sBuf, BUF))
    k("s_mov_b32 s%d, 0" % sIss)
    Lni = k.uid("L_ni")
    k("s_cmp_ge_u32 s%d, %d\ns_cbranch_scc1 %s" % (S_STEP, nseg - 1, Lni))
    k("s_cmp_ge_u32 s%d, %d\ns_cbranch_scc0 %s" % (sFv, wtarget, Lni))
    issue_dma(sBuf)
    k("s_mov_b32 s%d, 1" % sIss)
    k.label(Lni)
    epi(vAcc)
    k("s_waitcnt vmcnt(0)\ns_barrier")
    signal_add(k, sSf, vFa, vFb)
    k("s_add_u32 s%d, s%d, %d" % (sSf, sSf, sflag_fn.stride))
    k("s_add_u32 s%d, s%d, 1" % (S_STEP, S_STEP))
    k("s_cmp_ge_u32 s%d, %d\ns_cbranch_scc1 L_end" % (S_STEP, nseg))
    k("s_cmp_eq_u32 s%d, 1\ns_cbranch_scc1 %s" % (sIss, Lloop))
    wait_flag(k, sWf, wtarget, vFa, vFb)
    issue_dma(sBuf)
    k("s_branch %s" % Lloop)

def g3_role(k):
    def chunks_fn(k):
        sCol = T + 6
        fmt(k, "s_and_b32 s{T}, s{R}, 3\ns_lshl_b32 s{T}, s{T}, 8\ns_lshl_b32 s{T1}, s{W}, 6\ns_add_u32 s{c}, s{T}, s{T1}\ns_lshr_b32 s{T}, s{R}, 2\ns_lshl_b32 s{T}, s{T}, 20\ns_add_u32 s{c}, s{c}, s{T}", c=sCol)
        return [dict(ptr=P_WO, nbytes=4096 * 1024, stride=1024, scol=sCol, row0=64 * c, order="p",
                     dest={(t, ks2): chunks_fn.frag(t, 2 * c + ks2) for t in range(2) for ks2 in range(2)}) for c in range(16)]
    chunks_fn.frag = lambda t, ks: 256 + (t * 32 + ks) * 4
    def kbase(k, sIn): fmt(k, "s_lshr_b32 s{T}, s{R}, 2\ns_lshl_b32 s{T}, s{T}, 16\ns_add_u32 s{i}, s{i}, s{T}", i=sIn)
    def wflag(k, s): fmt(k, "s_lshl_b32 s{T}, s{LY}, 15\ns_lshr_b32 s{T1}, s{R}, 2\ns_lshl_b32 s{T1}, s{T1}, 7\ns_add_u32 s{T}, s{T}, s{T1}\ns_add_u32 s{s}, s{T}, 0x{F:x}", s=s, F=F_O)
    wflag.stride = 4 * FL
    def sflag(k, s): fmt(k, "s_lshl_b32 s{T}, s{LY}, 13\ns_add_u32 s{s}, s{T}, 0x{F:x}", s=s, F=F_P3)
    sflag.stride = FL
    return gemm_role(k, "g3", 32, 2, chunks_fn, OFF_O, O_L, O_SEG, kbase, "kt", wflag, 8, partial_epi(OFF_P3, P3_L, P3_SEG, 2), sflag)

def partial_epi(off, lstride, sstride, shift):
    def epi_fn(k, sEp):
        def init():
            fmt(k, """
            s_mul_i32 s{e}, s{LY}, 0x{ls:x}
            s_add_u32 s{e}, s{e}, 0x{o:x}
            s_lshr_b32 s{T}, s{R}, 2
            s_lshl_b32 s{T}, s{T}, 16
            s_add_u32 s{e}, s{e}, s{T}
            s_and_b32 s{T}, s{R}, 3
            s_lshl_b32 s{T}, s{T}, 14
            s_add_u32 s{e}, s{e}, s{T}
            s_lshl_b32 s{T}, s{W}, 12
            s_add_u32 s{e}, s{e}, s{T}
            """, e=sEp, ls=lstride, o=off)
        def epi(vAcc):
            k("s_nop 7")
            for t in range(2):
                for tt in range(2):
                    a = vAcc + (t * 2 + tt) * 4
                    k("buffer_store_dwordx4 %s, v2, %s, s%d offen offset:%d sc1" % (vr(a, 4), WSR, sEp, (t * 2 + tt) * 1024))
            k("s_add_u32 s%d, s%d, %d" % (sEp, sEp, sstride))
        return init, epi
    return epi_fn

def g5_role(k):
    def chunks_fn(k):
        sCol = T + 6
        fmt(k, "s_and_b32 s{T}, s{R}, 3\ns_lshl_b32 s{T}, s{T}, 8\ns_lshl_b32 s{T1}, s{W}, 6\ns_add_u32 s{c}, s{T}, s{T1}\ns_lshr_b32 s{T}, s{R}, 2\ns_mul_i32 s{T}, s{T}, {x}\ns_add_u32 s{c}, s{c}, s{T}", c=sCol, x=896 * 1024)
        return [dict(ptr=P_WD, nbytes=1792 * 1024, stride=1024, scol=sCol, row0=64 * c, order="p",
                     dest={(t, ks2): chunks_fn.frag(t, 2 * c + ks2) for t in range(2) for ks2 in range(2)}) for c in range(14)]
    chunks_fn.frag = lambda t, ks: 256 + (t * 28 + ks) * 4
    def kbase(k, sIn): fmt(k, "s_lshr_b32 s{T}, s{R}, 2\ns_mul_i32 s{T}, s{T}, {x}\ns_add_u32 s{i}, s{i}, s{T}", i=sIn, x=28 * 2048)
    def wflag(k, s): fmt(k, "s_lshl_b32 s{T}, s{LY}, 14\ns_lshr_b32 s{T1}, s{R}, 2\ns_lshl_b32 s{T1}, s{T1}, 7\ns_add_u32 s{T}, s{T}, s{T1}\ns_add_u32 s{s}, s{T}, 0x{F:x}", s=s, F=F_H)
    wflag.stride = 2 * FL
    def sflag(k, s): fmt(k, "s_lshl_b32 s{T}, s{LY}, 13\ns_add_u32 s{s}, s{T}, 0x{F:x}", s=s, F=F_P5)
    sflag.stride = FL
    return gemm_role(k, "g5", 28, 2, chunks_fn, OFF_H, H_L, H_SEG, kbase, "kt", wflag, 7, partial_epi(OFF_P5, P5_L, P5_SEG, 1), sflag)

def g4_role(k):
    def chunks_fn(k):
        sCol = T + 6
        fmt(k, "s_lshl_b32 s{T}, s{R}, 8\ns_lshl_b32 s{T1}, s{W}, 6\ns_add_u32 s{c}, s{T}, s{T1}", c=sCol)
        L = []
        for m, ptr in enumerate((P_WG, P_WU)):
            L += [dict(ptr=ptr, nbytes=512 * 3584, stride=3584, scol=sCol, row0=64 * c, order="n",
                       dest={(t, ks2): chunks_fn.frag(2 * m + t, 2 * c + ks2) for t in range(2) for ks2 in range(2)}) for c in range(8)]
        return L
    chunks_fn.frag = lambda t, ks: 256 + (t * 16 + ks) * 4
    def kbase(k, sIn): pass
    def wflag(k, s): fmt(k, "s_lshl_b32 s{T}, s{LY}, 13\ns_add_u32 s{s}, s{T}, 0x{F:x}", s=s, F=F_XF)
    wflag.stride = FL
    def sflag(k, s): fmt(k, "s_lshl_b32 s{T}, s{LY}, 14\ns_cmp_ge_u32 s{R}, 7\ns_cselect_b32 s{T1}, 128, 0\ns_add_u32 s{T}, s{T}, s{T1}\ns_add_u32 s{s}, s{T}, 0x{F:x}", s=s, F=F_H)
    sflag.stride = 2 * FL
    def epi_fn(k, sEp):
        def init():
            fmt(k, """
            s_mul_i32 s{e}, s{LY}, 0x{ls:x}
            s_add_u32 s{e}, s{e}, 0x{o:x}
            s_lshl_b32 s{T}, s{R}, 2
            s_add_u32 s{T}, s{T}, s{W}
            s_lshl_b32 s{T}, s{T}, 11
            s_add_u32 s{e}, s{e}, s{T}
            """, e=sEp, ls=H_L, o=OFF_H)
        def epi(vAcc):
            k("s_nop 7")
            for tt in range(2):
                g0, g1, u0, u1 = [vAcc + (t * 2 + tt) * 4 for t in range(4)]
                for r in range(4):
                    k("v_mul_f32 v%d, v%d, v%d" % (g0 + r, g0 + r, u0 + r))
                    k("v_mul_f32 v%d, v%d, v%d" % (g1 + r, g1 + r, u1 + r))
                k("v_cvt_pk_bf16_f32 v%d, v%d, v%d" % (u0 + 0, g0, g0 + 1))
                k("v_cvt_pk_bf16_f32 v%d, v%d, v%d" % (u0 + 1, g0 + 2, g0 + 3))
                k("v_cvt_pk_bf16_f32 v%d, v%d, v%d" % (u0 + 2, g1, g1 + 1))
                k("v_cvt_pk_bf16_f32 v%d, v%d, v%d" % (u0 + 3, g1 + 2, g1 + 3))
                k("buffer_store_dwordx4 %s, v2, %s, s%d offen offset:%d sc1" % (vr(u0, 4), WSR, sEp, tt * 1024))
            k("s_add_u32 s%d, s%d, %d" % (sEp, sEp, H_SEG))
        return init, epi
    return gemm_role(k, "g4", 16, 4, chunks_fn, OFF_XF, XN_L, 32768, kbase, "tk", wflag, 4, epi_fn, sflag)

def f_compute(k, NK, sP, srdRes, sRes, outs, vbase=8):
    vP = vbase
    vR = vbase + 64
    vX = vbase + 72
    t0, t1, t2 = vbase + 88, vbase + 89, vbase + 90
    for kq in range(NK):
        if kq: k("s_add_u32 s%d, s%d, %d" % (T + 4, sP, kq * 65536))
        for g in range(4):
            k("buffer_load_dwordx4 %s, v1, %s, s%d offen offset:%d sc1" % (vr(vP + (kq * 4 + g) * 4, 4), WSR, (T + 4) if kq else sP, g * 256))
    k("buffer_load_dwordx4 %s, v2, %s, s%d offen sc1" % (vr(vR, 4), srdRes, sRes))
    k("buffer_load_dwordx4 %s, v2, %s, s%d offen offset:16 sc1" % (vr(vR + 4, 4), srdRes, sRes))
    k("s_waitcnt vmcnt(0)")
    k("s_mov_b32 s%d, 0xffff0000" % (T + 4))
    for i in range(8):
        k("v_lshlrev_b32 v%d, 16, v%d" % (vX + 2 * i, vR + i))
        k("v_and_b32 v%d, s%d, v%d" % (vX + 2 * i + 1, T + 4, vR + i))
    for kq in range(NK):
        for c in range(16):
            k("v_add_f32 v%d, v%d, v%d" % (vX + c, vX + c, vP + kq * 16 + c))
    if NK:
        for i in range(8): k("v_cvt_pk_bf16_f32 v%d, v%d, v%d" % (vR + i, vX + 2 * i, vX + 2 * i + 1))
    if outs.get("x"):
        srd, so, fl = outs["x"]
        k("buffer_store_dwordx4 %s, v2, %s, s%d offen %s" % (vr(vR, 4), srd, so, fl))
        k("buffer_store_dwordx4 %s, v2, %s, s%d offen offset:16 %s" % (vr(vR + 4, 4), srd, so, fl))
    if outs.get("xn") is None: return
    if NK:
        for i in range(8):
            k("v_lshlrev_b32 v%d, 16, v%d" % (vX + 2 * i, vR + i))
            k("v_and_b32 v%d, s%d, v%d" % (vX + 2 * i + 1, T + 4, vR + i))
    def reduce_all(v, slot):
        k("s_nop 1")
        k("v_add_f32_dpp v%d, v%d, v%d row_ror:8 row_mask:0xf bank_mask:0xf" % (v, v, v))
        k("v_mov_b32 v%d, v%d\ns_nop 1\nv_permlane16_swap_b32 v%d, v%d\nv_add_f32 v%d, v%d, v%d" % (t1, v, v, t1, v, v, t1))
        k("v_mov_b32 v%d, v%d\ns_nop 1\nv_permlane32_swap_b32 v%d, v%d\nv_add_f32 v%d, v%d, v%d" % (t1, v, v, t1, v, v, t1))
        k("ds_write_b32 v4, v%d offset:%d" % (v, slot * 1024))
        k("s_waitcnt lgkmcnt(0)\ns_barrier")
        k("ds_read_b32 v%d, v5 offset:%d" % (v, slot * 1024))
        k("ds_read_b32 v%d, v5 offset:%d" % (t1, slot * 1024 + 256))
        k("ds_read_b32 v%d, v5 offset:%d" % (t2, slot * 1024 + 512))
        k("ds_read_b32 v%d, v5 offset:%d" % (vbase + 91, slot * 1024 + 768))
        k("s_waitcnt lgkmcnt(0)")
        k("v_add_f32 v%d, v%d, v%d\nv_add_f32 v%d, v%d, v%d\nv_add_f32 v%d, v%d, v%d" % (v, v, t1, t2, t2, vbase + 91, v, v, t2))
    k("v_add_f32 v%d, v%d, v%d" % (t0, vX, vX + 1))
    for c in range(2, 16): k("v_add_f32 v%d, v%d, v%d" % (t0, t0, vX + c))
    reduce_all(t0, 0)
    k("v_mul_f32 v%d, 0x%x, v%d" % (t0, f32(1.0 / 512), t0))
    for c in range(16): k("v_sub_f32 v%d, v%d, v%d" % (vX + c, vX + c, t0))
    k("v_mul_f32 v%d, v%d, v%d" % (t0, vX, vX))
    for c in range(1, 16): k("v_fmac_f32 v%d, v%d, v%d" % (t0, vX + c, vX + c))
    reduce_all(t0, 1)
    k("v_mov_b32 v%d, 0x%x" % (t1, f32(1e-5)))
    k("v_fmac_f32 v%d, 0x%x, v%d" % (t1, f32(1.0 / 512), t0))
    k("v_rsq_f32 v%d, v%d\ns_nop 0" % (t0, t1))
    for c in range(16): k("v_mul_f32 v%d, v%d, v%d" % (vX + c, vX + c, t0))
    for i in range(8): k("v_cvt_pk_bf16_f32 v%d, v%d, v%d" % (vR + i, vX + 2 * i, vX + 2 * i + 1))
    so = outs["xn"]
    k("buffer_store_dwordx4 %s, v3, %s, s%d offen sc1" % (vr(vR, 4), WSR, so))
    k("buffer_store_dwordx4 %s, v3, %s, s%d offen offset:256 sc1" % (vr(vR + 4, 4), WSR, so))

def f_lane_setup(k, sTg):
    fmt(k, """
    v_and_b32 v6, 7, v0
    v_lshrrev_b32 v7, 3, v0
    s_and_b32 s{T}, s{tg}, 1
    s_lshl_b32 s{T}, s{T}, 3
    v_add_u32 v5, s{T}, v6
    v_lshlrev_b32 v5, 4, v5
    v_lshl_add_u32 v1, v7, 11, v5
    v_lshlrev_b32 v2, 10, v6
    v_lshl_add_u32 v2, v7, 5, v2
    v_lshrrev_b32 v3, 1, v7
    v_lshlrev_b32 v3, 10, v3
    v_and_b32 v4, 1, v7
    v_lshl_add_u32 v3, v4, 9, v3
    v_add_u32 v3, v3, v5
    v_and_b32 v4, 63, v0
    v_lshlrev_b32 v4, 2, v4
    s_lshl_b32 s{T}, s{W}, 8
    v_add_u32 v4, s{T}, v4
    v_lshlrev_b32 v5, 2, v6
    """, tg=sTg)

def f_role(k, kind):
    name = "f%d" % kind
    f_lane_setup(k, S_RANK)
    sP, sRes, sXo, sXn, sWf, sSf = 66, 67, 68, 69, 70, 71
    off, ls, ss, NK, wF, wT = (OFF_P3, P3_L, P3_SEG, 4, F_P3, 16) if kind == 3 else (OFF_P5, P5_L, P5_SEG, 2, F_P5, 8)
    fmt(k, """
    s_mul_i32 s{p}, s{LY}, 0x{ls:x}
    s_add_u32 s{p}, s{p}, 0x{o:x}
    s_lshr_b32 s{T}, s{R}, 1
    s_lshl_b32 s{T}, s{T}, 10
    s_add_u32 s{p}, s{p}, s{T}            ; + tt*1024
    s_lshl_b32 s{T2}, s{R}, 13
    s_lshl_b32 s{T}, s{LY}, 13
    s_add_u32 s{wf}, s{T}, 0x{wF:x}
    """, p=sP, ls=ls, o=off, wf=sWf, wF=wF)
    build_srd(k, S_SRD2, P_X, S * D * 2)
    build_srd(k, S_SRD3, P_OUT, S * D * 2)
    L0 = k.uid("L_f0"); L1 = k.uid("L_f1")
    k("s_cmp_eq_u32 s%d, 0\ns_cbranch_scc0 %s" % (S_L, L1))
    for ly, lab in ((0, L0), (1, L1)):
        k.label(lab)
        SR2 = "s[%d:%d]" % (S_SRD2, S_SRD2 + 3); SR3 = "s[%d:%d]" % (S_SRD3, S_SRD3 + 3)
        if kind == 3:
            res = (SR2, 0) if ly == 0 else (WSR, OFF_X2)
            xo = (WSR, OFF_X1 + ly * X_L, "sc1")
            xn = OFF_XF + ly * XN_L; sig = F_XF + ly * 64 * FL
        else:
            res = (WSR, OFF_X1 + ly * X_L)
            xo = (WSR, OFF_X2, "sc1") if ly == 0 else (SR3, 0, "")
            xn = (OFF_XN + XN_L) if ly == 0 else None; sig = (F_XN + 64 * FL) if ly == 0 else None
        fmt(k, "s_add_u32 s{r}, s{T2}, {a}\ns_add_u32 s{x}, s{T2}, {b}", r=sRes, x=sXo, a=res[1], b=xo[1])
        if xn is not None:
            fmt(k, "s_lshr_b32 s{T}, s{R}, 1\ns_lshl_b32 s{T}, s{T}, 14\ns_add_u32 s{n}, s{T}, {a}\ns_mov_b32 s{sf}, 0x{s:x}", n=sXn, a=xn, sf=sSf, s=sig)
        k("s_mov_b32 s%d, 0" % S_STEP)
        Ll = "L_%s_l%d" % (name, ly)
        k.label(Ll)
        wait_flag(k, sWf, wT, 6, 7)
        f_compute(k, NK, sP, res[0], sRes, dict(x=(xo[0], sXo, xo[2]), xn=(sXn if xn is not None else None)))
        k("s_waitcnt vmcnt(0)")
        if xn is not None:
            k("s_barrier")
            signal_add(k, sSf, 6, 7)
            k("s_add_u32 s%d, s%d, %d\ns_add_u32 s%d, s%d, 32768" % (sSf, sSf, FL, sXn, sXn))
        k("s_add_u32 s%d, s%d, %d\ns_add_u32 s%d, s%d, 32768\ns_add_u32 s%d, s%d, 32768\ns_add_u32 s%d, s%d, %d" % (sP, sP, ss, sRes, sRes, sXo, sXo, sWf, sWf, FL))
        k("s_add_u32 s%d, s%d, 1\ns_cmp_lt_u32 s%d, 64\ns_cbranch_scc1 %s\ns_branch L_end" % (S_STEP, S_STEP, S_STEP, Ll))

LA = 5
def head_role(k, nseg=64):
    vL = 1; vL16 = 2
    k("v_and_b32 v%d, 63, v0\nv_lshlrev_b32 v%d, 4, v%d" % (vL, vL16, vL))
    sRing = T + 5; sCol = T + 6
    fmt(k, "s_mul_i32 s{r}, s{W}, 40960\ns_lshl_b32 s{T}, s{R}, 8\ns_lshl_b32 s{T1}, s{W}, 6\ns_add_u32 s{c}, s{T}, s{T1}", r=sRing, c=sCol)
    frag = lambda m, t, ks: 128 + ((m * 2 + t) * 16 + ks) * 4
    chunks = []
    for m, ptr in ((1, P_WK), (2, P_WV), (0, P_WQ)):
        chunks += [dict(ptr=ptr, nbytes=512 * 8192, stride=8192, scol=sCol, row0=64 * c, order="n",
                        dest={(t, ks2): frag(m, t, 2 * c + ks2) for t in range(2) for ks2 in range(2)}) for c in range(8)]
    load_weights(k, chunks, vL, 8, sRing)
    k("s_barrier")
    XA, XB, KVB, KMB, QX = 0, 0x8000, 0x10000, 0x14000, 0x15000
    HI = 0x10000
    vH16 = 17; vWH = 18
    vW16, vTrK, vVm, vMk = 3, 4, 5, 6
    t0, t1, t2, t3 = 120, 121, 122, 123
    fmt(k, """
    s_lshl_b32 s{T}, s{W}, 10
    v_add_u32 v{w16}, s{T}, v{l16}           ; lane*16 + w*1024
    v_lshrrev_b32 v{t0}, 4, v{L}
    v_bfe_u32 v{t1}, v{L}, 2, 2
    v_lshl_add_u32 v{t1}, v{t0}, 2, v{t1}
    v_lshlrev_b32 v{t2}, 5, v{t1}
    v_and_b32 v{t3}, 3, v{L}
    v_lshl_add_u32 v{t2}, v{t3}, 3, v{t2}
    v_lshrrev_b32 v{t1}, 1, v{t0}
    v_lshlrev_b32 v{t1}, 7, v{t1}
    v_xor_b32 v{trk}, v{t2}, v{t1}
    v_add_u32 v{trk}, 0x10000, v{trk}
    v_add_u32 v{h16}, 0x10000, v{l16}
    v_add_u32 v{wh}, 0x10000, v{w16}
    v_and_b32 v{t1}, 15, v{L}
    v_lshlrev_b32 v{t2}, 5, v{t1}
    v_lshl_add_u32 v{t2}, v{t0}, 3, v{t2}
    v_bfe_u32 v{t3}, v{L}, 3, 1
    v_lshlrev_b32 v{t3}, 7, v{t3}
    v_xor_b32 v{t2}, v{t2}, v{t3}
    s_lshr_b32 s{T}, s{W}, 1
    s_lshl_b32 s{T}, s{T}, 11
    s_add_u32 s{T}, s{T}, 0x10004
    v_add_u32 v{vm}, s{T}, v{t2}
    v_lshlrev_b32 v{t0}, 2, v{t0}
    s_and_b32 s{T1}, s{W}, 1
    """, L=vL, l16=vL16, w16=vW16, trk=vTrK, vm=vVm, t0=t0, t1=t1, t2=t2, t3=t3, h16=vH16, wh=vWH)
    for r in range(4):
        fmt(k, """
        v_add_u32 v{t2}, {r}, v{t0}
        v_cmp_gt_u32 vcc, v{t2}, v{t1}
        v_mov_b32 v{t3}, 0
        v_mov_b32 v{t2}, 0xff800000
        v_cndmask_b32 v{t3}, v{t3}, v{t2}, vcc
        s_cmp_eq_u32 s{T1}, 0
        s_cselect_b64 vcc, -1, 0
        v_mov_b32 v{a}, 0
        s_nop 1
        v_cndmask_b32 v{a}, v{a}, v{t3}, vcc
        v_cndmask_b32 v{b}, v{t3}, v{t2}, vcc
        """, r=r, t0=t0, t1=t1, t2=t2, t3=t3, a=vMk + r, b=vMk + 4 + r)
    sXa, sXb, sKVo, sKVi, sKM, sO, sFXN, sFKV, sFKM, sFO, sXt, sKmOk, sXaOk, sV, sC, sSig, sFOp = range(66, 83)
    fmt(k, """
    s_mul_i32 s{T}, s{LY}, 0x{xl:x}
    s_add_u32 s{xb}, s{T}, 0x{ox:x}
    s_mov_b32 s{xa}, s{xb}
    s_mul_i32 s{T}, s{LY}, 0x{kvl:x}
    s_add_u32 s{T}, s{T}, 0x{okv:x}
    s_lshl_b32 s{T1}, s{R}, 20
    s_add_u32 s{kvi}, s{T}, s{T1}
    s_mov_b32 s{kvo}, s{kvi}
    s_mul_i32 s{T}, s{LY}, 0x{kml:x}
    s_add_u32 s{T}, s{T}, 0x{okm:x}
    s_lshl_b32 s{T1}, s{R}, 18
    s_add_u32 s{km}, s{T}, s{T1}
    s_mul_i32 s{T}, s{LY}, 0x{ol:x}
    s_add_u32 s{T}, s{T}, 0x{oo:x}
    s_lshl_b32 s{T1}, s{R}, 13
    s_add_u32 s{T}, s{T}, s{T1}
    s_lshr_b32 s{T1}, s{W}, 1
    s_lshl_b32 s{T1}, s{T1}, 12
    s_add_u32 s{T}, s{T}, s{T1}
    s_and_b32 s{T1}, s{W}, 1
    s_lshl_b32 s{T1}, s{T1}, 10
    s_add_u32 s{o}, s{T}, s{T1}
    s_lshl_b32 s{T}, s{LY}, 13
    s_add_u32 s{fxn}, s{T}, 0x{FXN:x}
    s_lshl_b32 s{T}, s{LY}, 18
    s_lshl_b32 s{T1}, s{R}, 7
    s_add_u32 s{T}, s{T}, s{T1}
    s_add_u32 s{fkv}, s{T}, 0x{FKV:x}
    s_add_u32 s{fkm}, s{T}, 0x{FKM:x}
    s_lshl_b32 s{T}, s{LY}, 15
    s_lshr_b32 s{T1}, s{R}, 3
    s_lshl_b32 s{T1}, s{T1}, 7
    s_add_u32 s{T}, s{T}, s{T1}
    s_add_u32 s{fo}, s{T}, 0x{FO:x}
    s_cmp_eq_u32 s{LY}, 0
    s_cselect_b32 s{xt}, 0, 4
    s_mov_b32 s{c}, 0x{cc:x}
    s_mov_b32 s{fop}, 0x{FD:x}
    """, xl=XN_L, ox=OFF_XN, xa=sXa, xb=sXb, kvl=KV_L, okv=OFF_KV, kvi=sKVi, kvo=sKVo, kml=KM_L, okm=OFF_KM, km=sKM, ol=O_L, oo=OFF_O, o=sO,
       fxn=sFXN, FXN=F_XN, fkv=sFKV, FKV=F_KV, fkm=sFKM, FKM=F_KM, fo=sFO, FO=F_O, xt=sXt, c=sC, cc=f32(SCALE_LOG2E), fop=sFOp, FD=F_DUMMY)
    vFa, vFb, vFc = 14, 15, 16
    def spin_ge_s(soff, starget):
        Lp = k.uid("L_sp"); Ld = k.uid("L_spd")
        k("v_mov_b32 v%d, s%d" % (vFa, soff))
        k.label(Lp)
        k("s_mov_b64 exec, 1\nbuffer_load_dword v%d, v%d, %s, 0 offen sc1\ns_mov_b64 exec, -1\ns_waitcnt vmcnt(0)" % (vFb, vFa, WSR))
        k("v_readfirstlane_b32 s%d, v%d" % (T, vFb))
        spin_check(k, ABORT)
        k("s_cmp_ge_u32 s%d, %s\ns_cbranch_scc1 %s\ns_sleep 2\ns_branch %s" % (T, starget, Ld, Lp))
        k.label(Ld)
    def dma_gen(soff, ldsbase, n):
        for j in range(n):
            k("s_lshl_b32 s%d, s%d, 10\ns_add_u32 s%d, s%d, %d\ns_mov_b32 m0, s%d" % (T, S_WAVE, T, T, ldsbase + j * 4096, T))
            k("s_add_u32 s%d, s%d, %d" % (T + 1, soff, j * 4096))
            k("buffer_load_dwordx4 v%d, %s, s%d offen sc1 lds" % (vW16, WSR, T + 1))
    vX = 20
    vAcc = 32
    def kv_compute():
        seq = [(tt, ks) for tt in range(2) for ks in range(16)]
        def rd(i):
            tt, ks = seq[i]
            return "ds_read_b128 %s, v%d offset:%d" % (vr(vX + 4 * (i % 3), 4), vL16, XA + (tt * 16 + ks) * 1024)
        k(rd(0)); k(rd(1))
        for i, (tt, ks) in enumerate(seq):
            k("s_waitcnt lgkmcnt(%d)" % (1 if i + 1 < len(seq) else 0))
            x = vr(vX + 4 * (i % 3), 4)
            mf = []
            for t in range(2):
                a = vAcc + (t * 2 + tt) * 4
                mf.append("v_mfma_f32_16x16x32_bf16 %s, %s, %s, %s" % (vr(a, 4), ur(frag(1, t, ks), 4), x, "0" if ks == 0 else vr(a, 4)))
            for t in range(2):
                a = vAcc + 16 + (t * 2 + tt) * 4
                mf.append("v_mfma_f32_16x16x32_bf16 %s, %s, %s, %s" % (vr(a, 4), x, ur(frag(2, t, ks), 4), "0" if ks == 0 else vr(a, 4)))
            interleave(k, mf, [rd(i + 2)] if i + 2 < len(seq) else [], per=1, start=0)
    def kv_epilogue():
        k("s_nop 7")
        vG = 64
        for tt in range(2):
            a0 = vAcc + (0 * 2 + tt) * 4; a1 = vAcc + (1 * 2 + tt) * 4; g = vG + 4 * tt
            k("v_cvt_pk_bf16_f32 v%d, v%d, v%d\nv_cvt_pk_bf16_f32 v%d, v%d, v%d" % (g, a0, a0 + 1, g + 1, a0 + 2, a0 + 3))
            k("v_cvt_pk_bf16_f32 v%d, v%d, v%d\nv_cvt_pk_bf16_f32 v%d, v%d, v%d" % (g + 2, a1, a1 + 1, g + 3, a1 + 2, a1 + 3))
            k("s_add_u32 s%d, s%d, %d" % (T, sKVo, tt * 4096))
            k("buffer_store_dwordx4 %s, v%d, %s, s%d offen sc1" % (vr(g, 4), vW16, WSR, T))
        for t in range(2):
            a0 = vAcc + 16 + (t * 2 + 0) * 4; a1 = vAcc + 16 + (t * 2 + 1) * 4; g = vG + 8 + 4 * t
            k("v_cvt_pk_bf16_f32 v%d, v%d, v%d\nv_cvt_pk_bf16_f32 v%d, v%d, v%d" % (g, a0, a0 + 1, g + 1, a0 + 2, a0 + 3))
            k("v_cvt_pk_bf16_f32 v%d, v%d, v%d\nv_cvt_pk_bf16_f32 v%d, v%d, v%d" % (g + 2, a1, a1 + 1, g + 3, a1 + 2, a1 + 3))
            k("s_lshl_b32 s%d, s%d, 10\ns_add_u32 s%d, s%d, s%d\ns_add_u32 s%d, s%d, %d" % (T, S_WAVE, T, T, sKVo, T, T, 8192 + t * 1024))
            k("buffer_store_dwordx4 %s, v%d, %s, s%d offen sc1" % (vr(g, 4), vW16, WSR, T))
    k("s_mov_b32 s%d, 0" % S_STEP)
    Lp0 = k.uid("L_hpro")
    k.label(Lp0)
    spin_ge_s(sFXN, "s%d" % sXt)
    dma_gen(sXa, XA, 8)
    k("s_waitcnt vmcnt(0)\ns_barrier")
    kv_compute()
    kv_epilogue()
    k("s_waitcnt vmcnt(0)\ns_barrier")
    signal_store(k, sFKV, 4, vFa, vFb)
    k("s_add_u32 s%d, s%d, 32768\ns_add_u32 s%d, s%d, 16384\ns_add_u32 s%d, s%d, %d\ns_add_u32 s%d, s%d, 4096" % (sXa, sXa, sKVo, sKVo, sFXN, sFXN, FL, sFKV, sFKV))
    k("s_add_u32 s%d, s%d, 1\ns_cmp_lt_u32 s%d, %d\ns_cbranch_scc1 %s" % (S_STEP, S_STEP, S_STEP, LA, Lp0))
    spin_ge_s(sFXN, "s%d" % sXt)
    dma_gen(sXa, XA, 8)
    k("s_mov_b32 s%d, 0" % S_STEP)
    k.label("L_head_loop")
    dma_gen(sXb, XB, 8)
    dma_gen(sKVi, KVB, 4)
    k("v_mov_b32 v%d, s%d\ns_mov_b64 exec, 1\nbuffer_load_dword v%d, v%d, %s, 0 offen sc1\ns_mov_b64 exec, -1" % (vFa, sFKM, vFc, vFa, WSR))
    k("s_waitcnt vmcnt(13)\ns_barrier")
    signal_add(k, sFOp, vFa, vFb)
    Lnokv = k.uid("L_nokv"); Lkvd = k.uid("L_kvd")
    k("s_cmp_lt_u32 s%d, %d\ns_cbranch_scc0 %s" % (S_STEP, nseg - LA, Lnokv))
    kv_compute()
    k.label(Lnokv)
    k("s_waitcnt vmcnt(0)")
    k("v_readfirstlane_b32 s%d, v%d\ns_mov_b32 s%d, 0" % (sV, vFc, sKmOk))
    Lk1 = k.uid("L_k1")
    k("s_cmp_ge_u32 s%d, 4\ns_cbranch_scc0 %s" % (sV, Lk1))
    dma_gen(sKM, KMB, 1)
    k("s_mov_b32 s%d, 1" % sKmOk)
    k.label(Lk1)
    Lne = k.uid("L_ne")
    k("s_cmp_lt_u32 s%d, %d\ns_cbranch_scc0 %s" % (S_STEP, nseg - LA, Lne))
    kv_epilogue()
    k.label(Lne)
    k("s_add_u32 s%d, s%d, %d\ns_add_u32 s%d, s%d, 32768" % (sFXN, sFXN, FL, sXa, sXa))
    k("v_mov_b32 v%d, s%d\ns_mov_b64 exec, 1\nbuffer_load_dword v%d, v%d, %s, 0 offen sc1\ns_mov_b64 exec, -1" % (vFa, sFXN, vFc, vFa, WSR))
    k("s_barrier")
    seq = [(tt, ks) for tt in range(2) for ks in range(16)]
    def rdq(i):
        tt, ks = seq[i]
        return "ds_read_b128 %s, v%d offset:%d" % (vr(vX + 4 * (i % 3), 4), vL16, XB + (tt * 16 + ks) * 1024)
    k(rdq(0)); k(rdq(1))
    for i, (tt, ks) in enumerate(seq):
        k("s_waitcnt lgkmcnt(%d)" % (1 if i + 1 < len(seq) else 0))
        x = vr(vX + 4 * (i % 3), 4)
        mf = ["v_mfma_f32_16x16x32_bf16 %s, %s, %s, %s" % (vr(vAcc + (t * 2 + tt) * 4, 4), ur(frag(0, t, ks), 4), x, "0" if ks == 0 else vr(vAcc + (t * 2 + tt) * 4, 4)) for t in range(2)]
        interleave(k, mf, [rdq(i + 2)] if i + 2 < len(seq) else [], per=1, start=0)
    k("s_nop 7")
    for tt in range(2):
        a0 = vAcc + (0 * 2 + tt) * 4; a1 = vAcc + (1 * 2 + tt) * 4; g = 64 + 4 * tt
        k("v_cvt_pk_bf16_f32 v%d, v%d, v%d\nv_cvt_pk_bf16_f32 v%d, v%d, v%d" % (g, a0, a0 + 1, g + 1, a0 + 2, a0 + 3))
        k("v_cvt_pk_bf16_f32 v%d, v%d, v%d\nv_cvt_pk_bf16_f32 v%d, v%d, v%d" % (g + 2, a1, a1 + 1, g + 3, a1 + 2, a1 + 3))
        k("ds_write_b128 v%d, %s offset:%d" % (vWH, vr(g, 4), QX - HI + tt * 4096))
    k("s_waitcnt vmcnt(1) lgkmcnt(0)\ns_barrier")
    Lns = k.uid("L_ns")
    k("s_cmp_lt_u32 s%d, %d\ns_cbranch_scc0 %s" % (S_STEP, nseg - LA, Lns))
    signal_store(k, sFKV, 4, vFa, vFb)
    k("s_add_u32 s%d, s%d, 16384\ns_add_u32 s%d, s%d, 4096" % (sKVo, sKVo, sFKV, sFKV))
    k.label(Lns)
    vQ = 64
    fmt(k, "s_and_b32 s{T}, s{W}, 1\ns_lshl_b32 s{T}, s{T}, 12\nv_add_u32 v{t0}, s{T}, v{l16}", t0=t0, l16=vH16)
    for ks in range(4): k("ds_read_b128 %s, v%d offset:%d" % (vr(vQ + 4 * ks, 4), t0, QX - HI + ks * 1024))
    Lk2 = k.uid("L_k2")
    k("s_cmp_eq_u32 s%d, 1\ns_cbranch_scc1 %s" % (sKmOk, Lk2))
    spin_ge_s(sFKM, "4")
    dma_gen(sKM, KMB, 1)
    k.label(Lk2)
    k("s_waitcnt vmcnt(0)")
    k("v_readfirstlane_b32 s%d, v%d\ns_mov_b32 s%d, 0" % (sV, vFc, sXaOk))
    Lx1 = k.uid("L_x1")
    k("s_barrier")
    k("s_cmp_lt_u32 s%d, %d\ns_cbranch_scc0 %s" % (S_STEP, nseg - LA - 1, Lx1))
    k("s_cmp_ge_u32 s%d, s%d\ns_cbranch_scc0 %s" % (sV, sXt, Lx1))
    dma_gen(sXa, XA, 8)
    k("s_mov_b32 s%d, 1" % sXaOk)
    k.label(Lx1)
    vKf = 80
    vS = 32
    vKm = 88
    for ks in range(4):
        k("ds_read_b64_tr_b16 %s, v%d offset:%d" % (vr(vKm + 4 * ks, 2), vTrK, KMB - HI + ks * 1024))
        k("ds_read_b64_tr_b16 %s, v%d offset:%d" % (vr(vKm + 4 * ks + 2, 2), vTrK, KMB - HI + ks * 1024 + 512))
    order = [(t, ks) for ks in range(4) for t in range(2)]
    kf = [104, 108, 112, 116, 80, 84, 44, 48]
    for i, (t, ks) in enumerate(order): k("ds_read_b128 %s, v%d offset:%d" % (vr(kf[i], 4), vH16, KVB - HI + (t * 4 + ks) * 1024))
    k("s_waitcnt lgkmcnt(8)")
    for ks in range(4):
        k("v_mfma_f32_16x16x32_bf16 %s, %s, %s, %s" % (vr(vS + 8, 4), vr(vKm + 4 * ks, 4), vr(vQ + 4 * ks, 4), "0" if ks == 0 else vr(vS + 8, 4)))
    for i, (t, ks) in enumerate(order):
        k("s_waitcnt lgkmcnt(%d)" % (7 - i))
        c = vr(vMk + 4 * t, 4) if ks == 0 else vr(vS + 4 * t, 4)
        k("v_mfma_f32_16x16x32_bf16 %s, %s, %s, %s" % (vr(vS + 4 * t, 4), vr(kf[i], 4), vr(vQ + 4 * ks, 4), c))
    fmt(k, "s_lshr_b32 s{T}, s{W}, 1\ns_lshl_b32 s{T}, s{T}, 12\nv_add_u32 v{t0}, s{T}, v{l16}", t0=t0, l16=vH16)
    vVf = 88; vVmr = 104
    for i in range(4): k("ds_read_b128 %s, v%d offset:%d" % (vr(vVf + 4 * i, 4), t0, KVB - HI + 8192 + i * 1024))
    for i in range(4): k("ds_read_b32 v%d, v%d offset:%d" % (vVmr + 2 * i, vVm, KMB - HI + i * 512))
    for i in range(4): k("v_mov_b32 v%d, 0" % (vVmr + 2 * i + 1))
    vals = [vS + i for i in range(10)]
    m = 120; m2 = 121
    k("v_max3_f32 v%d, v%d, v%d, v%d" % (m, vals[0], vals[1], vals[2]))
    k("v_max3_f32 v%d, v%d, v%d, v%d" % (m2, vals[3], vals[4], vals[5]))
    k("v_max3_f32 v%d, v%d, v%d, v%d" % (m, m, vals[6], vals[7]))
    k("v_max3_f32 v%d, v%d, v%d, v%d" % (m2, m2, vals[8], vals[9]))
    k("v_max_f32 v%d, v%d, v%d" % (m, m, m2))
    k("v_mov_b32 v%d, v%d\ns_nop 1\nv_permlane32_swap_b32 v%d, v%d\nv_max_f32 v%d, v%d, v%d" % (m2, m, m, m2, m, m, m2))
    k("v_mov_b32 v%d, v%d\ns_nop 1\nv_permlane16_swap_b32 v%d, v%d\nv_max_f32 v%d, v%d, v%d" % (m2, m, m, m2, m, m, m2))
    k("v_mul_f32 v%d, s%d, v%d" % (m, sC, m))
    for v in vals: k("v_fma_f32 v%d, v%d, s%d, -v%d" % (v, v, sC, m))
    for v in vals: k("v_exp_f32 v%d, v%d" % (v, v))
    vPx = 112; vPm = 116; ones = 44
    for i in range(4): k("v_mov_b32 v%d, 0x3f803f80" % (ones + i))
    for i in range(4): k("v_cvt_pk_bf16_f32 v%d, v%d, v%d" % (vPx + i, vals[2 * i], vals[2 * i + 1]))
    k("v_cvt_pk_bf16_f32 v%d, v%d, v%d\nv_mov_b32 v%d, 0" % (vPm, vals[8], vals[9], vPm + 1))
    vO = 48; vSum = 64
    k("s_waitcnt lgkmcnt(0)\ns_nop 0")
    k("v_mfma_f32_16x16x32_bf16 %s, %s, %s, 0" % (vr(vSum, 4), vr(ones, 4), vr(vPx, 4)))
    for i in range(4): k("v_mfma_f32_16x16x32_bf16 %s, %s, %s, 0" % (vr(vO + 4 * i, 4), vr(vVf + 4 * i, 4), vr(vPx, 4)))
    k("v_mfma_f32_16x16x16_bf16 %s, %s, %s, %s" % (vr(vSum, 4), vr(ones, 2), vr(vPm, 2), vr(vSum, 4)))
    for i in range(4): k("v_mfma_f32_16x16x16_bf16 %s, %s, %s, %s" % (vr(vO + 4 * i, 4), vr(vVmr + 2 * i, 2), vr(vPm, 2), vr(vO + 4 * i, 4)))
    k("s_nop 3")
    k("v_rcp_f32 v%d, v%d\ns_nop 3" % (m, vSum))
    for i in range(16): k("v_mul_f32 v%d, v%d, v%d" % (vO + i, vO + i, m))
    for i2 in range(2):
        g = 68 + 4 * i2; a0 = vO + 8 * i2; a1 = a0 + 4
        k("v_cvt_pk_bf16_f32 v%d, v%d, v%d\nv_cvt_pk_bf16_f32 v%d, v%d, v%d" % (g, a0, a0 + 1, g + 1, a0 + 2, a0 + 3))
        k("v_cvt_pk_bf16_f32 v%d, v%d, v%d\nv_cvt_pk_bf16_f32 v%d, v%d, v%d" % (g + 2, a1, a1 + 1, g + 3, a1 + 2, a1 + 3))
        k("buffer_store_dwordx4 %s, v%d, %s, s%d offen offset:%d sc1" % (vr(g, 4), vL16, WSR, sO, i2 * 2048))
    k("s_mov_b32 s%d, s%d" % (sFOp, sFO))
    k("s_add_u32 s%d, s%d, %d\ns_add_u32 s%d, s%d, %d\ns_add_u32 s%d, s%d, 32768\ns_add_u32 s%d, s%d, 16384" % (sFO, sFO, 4 * FL, sO, sO, O_SEG, sXb, sXb, sKVi, sKVi))
    k("s_add_u32 s%d, s%d, 4096\ns_add_u32 s%d, s%d, 4096" % (sKM, sKM, sFKM, sFKM))
    k("s_add_u32 s%d, s%d, 1" % (S_STEP, S_STEP))
    Lfin = k.uid("L_hfin")
    k("s_cmp_ge_u32 s%d, %d\ns_cbranch_scc1 %s" % (S_STEP, nseg, Lfin))
    k("s_cmp_eq_u32 s%d, 1\ns_cbranch_scc1 L_head_loop" % sXaOk)
    k("s_cmp_lt_u32 s%d, %d\ns_cbranch_scc0 L_head_loop" % (S_STEP, nseg - LA))
    spin_ge_s(sFXN, "s%d" % sXt)
    dma_gen(sXa, XA, 8)
    k("s_branch L_head_loop")
    k.label(Lfin)
    k("s_waitcnt vmcnt(0)\ns_barrier")
    signal_add(k, sFOp, vFa, vFb)
    k("s_branch L_end")
```

```python
import sys
from asmlib import *
from layout import *
import chain as C
from chain import *
import roles as R
from roles import fmt, WSR, T
KN = "interleave_layers__memory_aug_recurrent_mem_tr__glu_gated_bilinear__prompt_kernel"
NWG = 256
HEADER = open("interleave_layers__memory_aug_recurrent_mem_tr__glu_gated_bilinear__prompt.s.ref").read().split("; Override launch")[0]

def prologue(k, spin):
    k("""
    s_cmp_ge_u32 s2, {n}
    s_cbranch_scc1 L_end
    s_load_dwordx8 s[20:27], s[0:1], 0
    s_load_dwordx4 s[28:31], s[0:1], 32
    s_load_dwordx4 s[32:35], s[0:1], 64
    s_load_dwordx2 s[36:37], s[0:1], 80
    s_load_dwordx2 s[38:39], s[0:1], 88
    s_load_dwordx4 s[40:43], s[0:1], 96
    s_getreg_b32 s{xcc}, hwreg(HW_REG_XCC_ID, 0, 4)
    v_lshrrev_b32 v1, 6, v0
    s_mov_b32 s{spin}, {sp}
    s_and_b32 s{xcc}, s{xcc}, 7
    v_readfirstlane_b32 s{wave}, v1
    s_waitcnt lgkmcnt(0)
    """.format(n=NWG, xcc=S_XCC, spin=S_SPIN, wave=S_WAVE, sp=spin))
    build_srd(k, S_WS, P_WSP, WS_BYTES)
    build_srd(k, S_SRD3, P_WSP, FLAGS_BYTES)
    fmt(k, """
    s_lshl_b32 s{T}, s2, 12
    v_lshlrev_b32 v2, 4, v0
    v_add_u32 v2, s{T}, v2
    v_mov_b64 v[4:5], 0
    v_mov_b64 v[6:7], 0
    v_mov_b64 v[8:9], -1
    v_mov_b64 v[10:11], -1
    s_mov_b32 s{T}, 0x100000
    buffer_store_dwordx4 v[4:7], v2, s[{a}:{b}], 0 offen sc1
    buffer_store_dwordx4 v[4:7], v2, s[{a}:{b}], s{T} offen sc1
    """, a=S_SRD3, b=S_SRD3 + 3)
    assert FLAGS_BYTES <= 0x200000 and OFF_P == FLAGS_BYTES
    END1 = OFF_M + 2 * M_LSTRIDE
    assert END1 - OFF_P <= 0x100000
    build_srd(k, S_SRD2, P_WSP, END1)
    fmt(k, "s_mov_b32 s{T}, 0x{o:x}\nbuffer_store_dwordx4 v[8:11], v2, s[{a}:{b}], s{T} offen sc1", o=OFF_P, a=S_SRD2, b=S_SRD2 + 3)
    sTg, sRes, sXn = 66, 67, 68
    fmt(k, "s_and_b32 s{tg}, s2, 3", tg=sTg)
    R.f_lane_setup(k, sTg)
    build_srd(k, S_SRD2, P_X, S * D * 2)
    fmt(k, """
    s_lshl_b32 s{r}, s2, 13
    s_lshr_b32 s{T}, s2, 2
    s_lshl_b32 s{T}, s{T}, 15
    s_lshr_b32 s{T1}, s{tg}, 1
    s_lshl_b32 s{T1}, s{T1}, 14
    s_add_u32 s{T}, s{T}, s{T1}
    s_add_u32 s{x}, s{T}, 0x{o:x}
    """, r=sRes, tg=sTg, x=sXn, o=OFF_XN)
    R.f_compute(k, 0, None, "s[%d:%d]" % (S_SRD2, S_SRD2 + 3), sRes, dict(xn=sXn))
    k("s_waitcnt vmcnt(0)\ns_barrier")
    fmt(k, """
    s_cmp_eq_u32 s{W}, 0
    s_cbranch_scc0 L_noticket
    s_lshl_b32 s{T}, s{xcc}, 2
    v_mov_b32 v3, s{T}
    v_mov_b32 v4, 1
    v_mov_b32 v6, 32
    s_mov_b64 exec, 1
    global_atomic_add v5, v3, v4, s[{d}:{d1}] sc0 sc1
    s_waitcnt vmcnt(0)
    global_atomic_add v6, v4, s[{d}:{d1}] sc1
    s_mov_b64 exec, -1
    L_regspin:
    v_mov_b32 v6, 32
    s_mov_b64 exec, 1
    global_load_dword v7, v6, s[{d}:{d1}] sc1
    s_mov_b64 exec, -1
    s_waitcnt vmcnt(0)
    v_readfirstlane_b32 s{T}, v7
    s_sub_u32 s{spin}, s{spin}, 1
    s_cbranch_scc1 L_abort
    s_cmp_ge_u32 s{T}, {n}
    s_cbranch_scc1 L_regdone
    s_sleep 1
    s_branch L_regspin
    L_regdone:
    v_and_b32 v6, 63, v0
    v_lshlrev_b32 v6, 2, v6
    s_mov_b64 exec, 0xff
    global_load_dword v7, v6, s[{d}:{d1}] sc1
    s_mov_b64 exec, -1
    s_waitcnt vmcnt(0)
    v_mov_b32 v8, 0
    s_mov_b64 exec, 1
    ds_write_b32 v8, v5
    s_mov_b64 exec, 0xff
    ds_write_b32 v6, v7 offset:64
    s_mov_b64 exec, -1
    s_waitcnt lgkmcnt(0)
    L_noticket:
    s_barrier
    v_mov_b32 v8, 0
    ds_read_b32 v5, v8
    ds_read_b128 v[8:11], v8 offset:64
    ds_read_b128 v[12:15], v8 offset:80
    s_waitcnt lgkmcnt(0)
    v_readfirstlane_b32 s{rank}, v5
    """, xcc=S_XCC, d=P_DBG, d1=P_DBG + 1, spin=S_SPIN, n=NWG, rank=S_RANK)
    k("s_mov_b32 s%d, 1\ns_mov_b32 s%d, 0" % (S_FAST, T + 1))
    for x in range(8):
        k("v_readfirstlane_b32 s%d, v%d" % (T, 8 + x))
        k("s_cmp_eq_u32 s%d, 32\ns_cselect_b32 s%d, s%d, 0" % (T, S_FAST, S_FAST))
        k("s_cmp_gt_u32 s%d, %d\ns_cselect_b32 s%d, s%d, 0\ns_add_u32 s%d, s%d, s%d" % (S_XCC, x, T, T, T + 1, T + 1, T))
    k("s_add_u32 s%d, s%d, s%d" % (S_RANK, S_RANK, T + 1))
    k("s_barrier")

def dispatch(k, enable):
    G = S_RANK
    def rng(lo, hi, lab):
        k("s_cmp_lt_u32 s%d, %d\ns_cbranch_scc1 %s" % (G, hi, lab))
    rng(0, 64, "L_role_chain"); rng(64, 128, "L_role_head"); rng(128, 160, "L_role_g3"); rng(160, 188, "L_role_g4"); rng(188, 192, "L_end")
    rng(192, 208, "L_role_g5"); rng(208, 216, "L_role_f3"); rng(216, 224, "L_role_f5")
    k("s_branch L_end")
    k.label("L_role_chain")
    if enable.get("chain", True):
        k("s_lshr_b32 s%d, s%d, 5\ns_and_b32 s%d, s%d, 31" % (S_L, G, G, G))
        k("s_cmp_eq_u32 s%d, 1\ns_cbranch_scc0 L_chain_slow" % S_FAST)
        chain_role(k, sfx="_f", fast=True, **enable.get("chain_kw", {}))
        k.label("L_chain_slow")
        chain_role(k, sfx="_s", fast=False)
    else: k("s_branch L_end")
    k.label("L_role_head")
    k("s_sub_u32 s%d, s%d, 64\ns_lshr_b32 s%d, s%d, 5\ns_and_b32 s%d, s%d, 31" % (G, G, S_L, G, G, G))
    R.head_role(k)
    k.label("L_role_g3")
    k("s_sub_u32 s%d, s%d, 128\ns_lshr_b32 s%d, s%d, 4\ns_and_b32 s%d, s%d, 15" % (G, G, S_L, G, G, G))
    R.g3_role(k)
    k.label("L_role_g4")
    k("s_sub_u32 s%d, s%d, 160\ns_cmp_ge_u32 s%d, 14\ns_cselect_b32 s%d, 1, 0\ns_mul_i32 s%d, s%d, 14\ns_sub_u32 s%d, s%d, s%d" % (G, G, G, S_L, T, S_L, G, G, T))
    R.g4_role(k)
    k.label("L_role_g5")
    k("s_sub_u32 s%d, s%d, 192\ns_lshr_b32 s%d, s%d, 3\ns_and_b32 s%d, s%d, 7" % (G, G, S_L, G, G, G))
    R.g5_role(k)
    k.label("L_role_f3")
    k("s_sub_u32 s%d, s%d, 208\ns_lshr_b32 s%d, s%d, 2\ns_and_b32 s%d, s%d, 3" % (G, G, S_L, G, G, G))
    R.f_role(k, 3)
    k.label("L_role_f5")
    k("s_sub_u32 s%d, s%d, 216\ns_lshr_b32 s%d, s%d, 2\ns_and_b32 s%d, s%d, 3" % (G, G, S_L, G, G, G))
    R.f_role(k, 5)

def gen(spin=200000, enable=None):
    enable = enable or {}
    k = Asm()
    for l in HEADER.strip().split("\n"): k.lines.append(l if l.startswith(";") else "; " + l)
    k.lines.append("; @launch grid=(%d,1,1) block=(256,1,1) lds=163840" % NWG)
    k('.amdgcn_target "amdgcn-amd-amdhsa--gfx950"')
    k(".text\n.globl %s\n.p2align 8\n.type %s,@function\n%s:" % (KN, KN, KN))
    prologue(k, spin)
    dispatch(k, enable)
    k("""
    L_abort:
    v_mov_b32 v2, 240
    v_mov_b32 v3, 1
    s_mov_b64 exec, 1
    global_atomic_add v2, v3, s[{dbg}:{dbg1}] sc1
    s_waitcnt vmcnt(0)
    L_end:
    s_endpgm
    """.format(dbg=P_DBG, dbg1=P_DBG + 1))
    k(""".section .rodata,"a"
    .p2align 6
    .amdhsa_kernel %s
    .amdhsa_next_free_vgpr 512
    .amdhsa_next_free_sgpr 102
    .amdhsa_accum_offset 256
    .amdhsa_group_segment_fixed_size 0
    .amdhsa_kernarg_size 112
    .amdhsa_user_sgpr_count 2
    .amdhsa_user_sgpr_kernarg_segment_ptr 1
    .amdhsa_system_sgpr_workgroup_id_x 1
    .end_amdhsa_kernel""" % KN)
    return k.text()
if __name__ == "__main__":
    t = gen()
    pr = check_hazards(t)
    open("full.s", "w").write(t)
    print(len(t), "bytes")
```

```python
from asmlib import *
from layout import *

S_WS   = 4
S_SRD2 = 8
S_SRD3 = 12
S_WAVE = 16
S_RANK = 17
S_XCC  = 18
S_L    = 19
S_PTR  = 20
P_X, P_MEM, P_WQ, P_WK, P_WV, P_WO, P_WG, P_WU, P_WD, P_OUT, P_DBG, P_WSP = [20 + 2 * i for i in range(12)]
S_FAST = 44
S_T0   = 45
S_SPIN = 64
S_STEP = 65

L_MEMT = 0; L_KX = 0x2000; L_VX = 0x4000; L_QT = 0x6000; L_OX = 0x6000; L_KT = 0x7000; L_WO = 0x8000
OX_ROW = 272

def build_srd(k, d, ptr, nbytes):
    k("s_mov_b32 s%d, s%d" % (d, ptr))
    k("s_and_b32 s%d, s%d, 0xffff" % (d + 1, ptr + 1))
    k("s_mov_b32 s%d, 0x%x" % (d + 2, nbytes))
    k("s_mov_b32 s%d, 0x20000" % (d + 3))

def spin_check(k, abort):
    k("s_sub_u32 s%d, s%d, 1" % (S_SPIN, S_SPIN))
    k("s_cbranch_scc1 %s" % abort)

DEV = {"marks": False}
S_G = 102 - 2
def gmark(k, i):
    if DEV["marks"]:
        k("s_memrealtime s[62:63]\ns_waitcnt lgkmcnt(0)\ns_mov_b32 s%d, s62" % (88 + i))
def gdump(k):
    if DEV["marks"]:
        L = k.uid("L_nodump")
        k("s_cmp_eq_u32 s%d, 0\ns_cbranch_scc0 %s" % (S_WAVE, L))
        k("s_lshl_b32 s62, s100, 6\ns_add_u32 s62, s62, 0x%x" % 0xF000000)
        for i in range(12): k("v_mov_b32 v%d, s%d" % (40 + i, 88 + i))
        k("v_mov_b32 v39, s62\ns_mov_b64 exec, 1")
        for i in range(3): k("buffer_store_dwordx4 v[%d:%d], v39, s[4:7], 0 offen offset:%d" % (40 + 4 * i, 43 + 4 * i, 16 * i))
        k("s_waitcnt vmcnt(0)\ns_mov_b64 exec, -1")
        k.label(L)
def steplog(k, vt0, vt1, base):
    if DEV["marks"]:
        L = k.uid("L_nolog")
        k("s_cmp_eq_u32 s%d, 0\ns_cbranch_scc0 %s" % (S_WAVE, L))
        k("s_memrealtime s[62:63]\ns_lshl_b32 s61, s100, 10\ns_lshl_b32 s60, s%d, 2\ns_add_u32 s61, s61, s60\ns_add_u32 s61, s61, 0x%x\ns_waitcnt lgkmcnt(0)" % (S_STEP, base))
        k("v_mov_b32 v%d, s61\nv_mov_b32 v%d, s62\ns_mov_b64 exec, 1" % (vt0, vt1))
        k("buffer_store_dword v%d, v%d, s[4:7], 0 offen\ns_mov_b64 exec, -1" % (vt1, vt0))
        k.label(L)

SCALE_LOG2E = 0.08838834764831845 * 1.4426950408889634

import struct
def f32(x): return struct.unpack("<I", struct.pack("<f", x))[0]


def interleave(k, prim, fill, per=2, start=0):
    fill = list(fill)
    for i, p in enumerate(prim):
        k(p)
        if i >= start:
            for _ in range(per):
                if fill: k(fill.pop(0))
    for f in fill: k(f)


def chain_role(k, sfx='', gsync_fn=None, dump=False, stamps=False, nsteps=64, fast=True, d1=0, d2=0, probe=False, nopub=False, nokv=False, waitack=True, waitackC=True, marks=False, noimg=False, noatom=False, flagstore=True, earlyB=True, nohop=False, cut=99):
    T = S_T0
    abort = "L_abort"
    WSR = "s[%d:%d]" % (S_WS, S_WS + 3)
    PL = "" if fast else " sc1"
    vL = 1
    vIdx, vTrM, vQW, vTrQ, vKW, vTrK, vL16, vOW, vOR, vWO, vPst, vMst, vMlds, vKXw, vKpub, _vneg = range(2, 18)
    vKn = 18
    vVn = 26
    vFl = 34
    vPld = 35
    t0, t1, t2, t3 = 124, 125, 126, 127
    def F(s, **kw):
        d = dict(t0=t0, t1=t1, t2=t2, t3=t3, L=vL, T=T, T1=T + 1, T2=T + 2, W=S_WAVE, H=S_RANK, LY=S_L, l16=vL16)
        d.update(kw); k(s.format(**d))
    if marks: k("s_mov_b32 s100, 0\ns_mov_b32 s101, 0")
    def mark(i):
        if marks: k("s_memrealtime s[60:61]\ns_waitcnt lgkmcnt(0)\ns_mov_b32 s%d, s60" % (52 + i))
    mark(0)
    F("v_and_b32 v{L}, 63, v0\nv_lshlrev_b32 v{l16}, 4, v{L}")
    F("""
    v_and_b32 v{t0}, 2, v{L}
    v_cmp_eq_u32 vcc, 0, v{t0}
    v_mov_b32 v{t1}, 0xeeee
    v_mov_b32 v{t2}, 0x4444
    v_cndmask_b32 v{a}, v{t1}, v{t2}, vcc
    """, a=vIdx)
    F("""
    v_lshrrev_b32 v{t0}, 4, v{L}
    v_bfe_u32 v{t1}, v{L}, 2, 2
    v_and_b32 v{t2}, 3, v{L}
    v_lshlrev_b32 v{t3}, 8, v{t0}
    v_lshl_add_u32 v{t3}, v{t1}, 5, v{t3}
    v_lshl_add_u32 v{t3}, v{t2}, 3, v{t3}
    v_and_b32 v{t0}, 1, v{t0}
    v_lshlrev_b32 v{t0}, 7, v{t0}
    v_xor_b32 v{a}, v{t3}, v{t0}
    """, a=vTrM)
    F("""
    v_and_b32 v{t0}, 15, v{L}
    s_lshl_b32 s{T}, s{W}, 5
    v_add_u32 v{t0}, s{T}, v{t0}
    v_lshlrev_b32 v{t1}, 4, v{t0}
    v_lshrrev_b32 v{t2}, 4, v{L}
    v_lshl_add_u32 v{a}, v{t2}, 2, v{t1}
    v_lshlrev_b32 v{t1}, 5, v{t0}
    v_lshl_add_u32 v{t1}, v{t2}, 3, v{t1}
    v_bfe_u32 v{t2}, v{L}, 3, 1
    v_lshlrev_b32 v{t2}, 7, v{t2}
    v_xor_b32 v{b}, v{t1}, v{t2}
    """, a=vQW, b=vKW)
    F("""
    v_lshrrev_b32 v{t0}, 4, v{L}
    v_bfe_u32 v{t1}, v{L}, 2, 2
    v_lshl_add_u32 v{t1}, v{t0}, 2, v{t1}
    v_lshlrev_b32 v{t2}, 4, v{t1}
    v_and_b32 v{t3}, 1, v{L}
    v_lshl_add_u32 v{a}, v{t3}, 3, v{t2}
    v_lshlrev_b32 v{t2}, 5, v{t1}
    v_and_b32 v{t3}, 3, v{L}
    v_lshl_add_u32 v{t2}, v{t3}, 3, v{t2}
    v_lshrrev_b32 v{t0}, 1, v{t0}
    v_lshlrev_b32 v{t0}, 7, v{t0}
    v_xor_b32 v{b}, v{t2}, v{t0}
    """, a=vTrQ, b=vTrK)
    F("""
    v_and_b32 v{t0}, 7, v{L}
    v_mul_u32_u24 v{t0}, {row}, v{t0}
    v_lshrrev_b32 v{t1}, 4, v{L}
    v_lshl_add_u32 v{t0}, v{t1}, 2, v{t0}
    s_lshl_b32 s{T}, s{W}, 6
    v_add_u32 v{a}, s{T}, v{t0}
    v_bfe_u32 v{t0}, v{L}, 2, 2
    v_lshlrev_b32 v{t0}, 1, v{t0}
    v_and_b32 v{t2}, 1, v{L}
    v_add_u32 v{t0}, v{t0}, v{t2}
    v_mul_u32_u24 v{t0}, {row}, v{t0}
    v_lshl_add_u32 v{t0}, v{t1}, 5, v{t0}
    v_bfe_u32 v{t1}, v{L}, 1, 1
    v_lshl_add_u32 v{b}, v{t1}, 4, v{t0}
    """, a=vOW, b=vOR, row=OX_ROW)
    F("""
    s_lshl_b32 s{T}, s{W}, 15
    s_add_u32 s{T}, s{T}, 0x{wo:x}
    v_add_u32 v{a}, s{T}, v{l16}
    s_lshl_b32 s{T}, s{W}, 11
    v_add_u32 v{kx}, s{T}, v{l16}
    v_and_b32 v{t0}, 15, v{L}
    v_lshrrev_b32 v{t1}, 4, v{L}
    v_lshlrev_b32 v{t2}, 4, v{t0}
    v_lshl_add_u32 v{p}, v{t1}, 13, v{t2}
    s_lshl_b32 s{T1}, s{W}, 10
    v_add_u32 v{kp}, s{T1}, v{l16}
    v_bfe_u32 v{t2}, v{L}, 1, 1
    v_lshlrev_b32 v{t2}, 5, v{t2}
    v_lshrrev_b32 v{t0}, 5, v{L}
    v_lshl_add_u32 v{t2}, v{t0}, 4, v{t2}
    s_lshl_b32 s{T1}, s{W}, 6
    v_add_u32 v{m}, s{T1}, v{t2}
    v_bfe_u32 v{t2}, v{L}, 2, 2
    v_lshl_add_u32 v{t2}, v{t1}, 2, v{t2}
    v_lshlrev_b32 v{t2}, 8, v{t2}
    v_and_b32 v{t0}, 3, v{L}
    v_lshl_add_u32 v{t2}, v{t0}, 4, v{t2}
    v_add_u32 v{pl}, s{T1}, v{t2}
    ; vMlds = w*2048 + (16 l ^ (((l>>4)&1)<<7))
    v_bfe_u32 v{t0}, v{L}, 4, 1
    v_lshlrev_b32 v{t0}, 7, v{t0}
    v_xor_b32 v{t0}, v{t0}, v{l16}
    v_add_u32 v{ml}, s{T}, v{t0}
    """, a=vWO, wo=L_WO, kx=vKXw, p=vPst, m=vMst, ml=vMlds, kp=vKpub, pl=vPld)
    sPst = 66
    sPld, sMbase, sMst, sMld, sKV, sKM, sFKV, sFKM, sTag, sClr, sC, sFlagVal, sKMp, sFKMp = range(74, 88)
    vNeg1 = 17
    sFKMq = 58; sPld2 = 57; sExF = 54; sClrNow = sClr
    F("""
    s_mul_i32 s{T1}, s{LY}, 0x{pl:x}
    s_add_u32 s{T1}, s{T1}, 0x{op:x}
    s_lshl_b32 s{T}, s{H}, 8
    s_add_u32 s{T2}, s{T1}, s{T}
    s_lshl_b32 s{T}, s{W}, 16
    s_add_u32 s{p0}, s{T2}, s{T}
    s_lshl_b32 s{T}, s{H}, 13
    s_add_u32 s{pld}, s{T1}, s{T}
    s_mul_i32 s{mb}, s{LY}, 0x{ml:x}
    s_add_u32 s{mb}, s{mb}, 0x{om:x}
    s_mul_i32 s{T}, s{LY}, 0x{kvl:x}
    s_add_u32 s{T}, s{T}, 0x{okv:x}
    s_lshl_b32 s{T1}, s{H}, 20
    s_add_u32 s{kv}, s{T}, s{T1}
    s_mul_i32 s{T}, s{LY}, 0x{kml:x}
    s_add_u32 s{T}, s{T}, 0x{okm:x}
    s_lshl_b32 s{T1}, s{H}, 18
    s_add_u32 s{km}, s{T}, s{T1}
    s_lshl_b32 s{T}, s{LY}, 18
    s_lshl_b32 s{T1}, s{H}, 7
    s_add_u32 s{T}, s{T}, s{T1}
    s_add_u32 s{fkv}, s{T}, 0x{FKV:x}
    s_add_u32 s{fkm}, s{T}, 0x{FKM:x}
    s_mov_b32 s{c}, 0x{cc:x}
    """, pl=P_LSTRIDE, op=OFF_P, p0=sPst, pld=sPld, mb=sMbase, ml=M_LSTRIDE, om=OFF_M,
      kvl=KV_L, okv=OFF_KV, kv=sKV, kml=KM_L, okm=OFF_KM, km=sKM, fkv=sFKV, fkm=sFKM, FKV=F_KV, FKM=F_KM, c=sC, cc=f32(SCALE_LOG2E))
    k("s_add_u32 s%d, s%d, 32768" % (sPst + 1, sPst))
    k("s_mov_b32 s%d, 0x%x\ns_mov_b32 s%d, 0x%x" % (sFKMp, F_DUMMY, sFKMq, F_DUMMY))
    k("s_mov_b32 s%d, 0x%x" % (sKMp, F_DUMMY + 0x1000))
    k("s_mov_b32 s%d, 0x%x" % (sClr, F_DUMMY + 0x3000))
    k("v_mov_b32 v%d, -1" % vNeg1)
    k("s_add_u32 s%d, s%d, 4096" % (sPld2, sPld))
    k("s_cmp_eq_u32 s%d, 2\ns_cselect_b32 s%d, 1, 0\ns_mov_b32 s%d, 0" % (S_WAVE, sExF, sExF + 1))

    if gsync_fn:
        Lg = k.uid("L_cg")
        k("s_cmp_eq_u32 s%d, 0\ns_cbranch_scc1 %s" % (S_L, Lg))
        gsync_fn(k)
        k.label(Lg)
    vA, vR0, vR1 = 40, 41, 42
    sM0 = T + 3
    F("""
    v_and_b32 v{t0}, 3, v{L}
    v_bfe_u32 v{t1}, v{L}, 5, 1
    v_lshlrev_b32 v{t1}, 1, v{t1}
    v_xor_b32 v{t0}, v{t0}, v{t1}
    v_lshlrev_b32 v{t0}, 4, v{t0}
    v_lshrrev_b32 v{t1}, 2, v{L}
    v_lshl_add_u32 v{t0}, v{t1}, 13, v{t0}
    s_lshl_b32 s{T}, s{H}, 8
    s_lshl_b32 s{T1}, s{W}, 6
    s_add_u32 s{T}, s{T}, s{T1}
    v_add_u32 v{a}, s{T}, v{t0}
    v_lshrrev_b32 v{t0}, 4, v{L}
    v_bfe_u32 v{t1}, v{L}, 2, 1
    v_lshlrev_b32 v{t1}, 1, v{t1}
    v_bfe_u32 v{t3}, v{L}, 3, 1
    v_or_b32 v{t1}, v{t1}, v{t3}
    v_lshl_add_u32 v{t2}, v{t0}, 3, v{t1}
    v_lshlrev_b32 v{t2}, 6, v{t2}
    v_and_b32 v{t0}, 1, v{t0}
    v_lshlrev_b32 v{t0}, 1, v{t0}
    v_bfe_u32 v{t1}, v{L}, 1, 1
    v_xor_b32 v{t0}, v{t0}, v{t1}
    v_lshl_add_u32 v{t2}, v{t0}, 4, v{t2}
    v_and_b32 v{t1}, 1, v{L}
    v_lshl_add_u32 v{t2}, v{t1}, 3, v{t2}
    s_lshl_b32 s{M0}, s{W}, 15
    s_add_u32 s{M0}, s{M0}, 0x{wo:x}
    v_add_u32 v{r0}, s{M0}, v{t2}
    v_xor_b32 v{r1}, 32, v{r0}
    """, a=vA, r0=vR0, r1=vR1, M0=sM0, wo=L_WO)
    srds = {0: P_WQ, 1: P_WK, 2: P_WV}
    cur = [None]
    def issue_chunk(n, slot):
        m, b = divmod(n, 8)
        if cur[0] != m:
            build_srd(k, S_SRD2, srds[m], 512 * 8192); cur[0] = m
        for i in range(4):
            k("s_add_u32 s%d, s%d, %d" % (T, sM0, slot * 4096 + i * 1024))
            k("s_mov_b32 m0, s%d" % T)
            k("s_mov_b32 s%d, %d" % (T + 1, (64 * b + 16 * i) * 8192))
            k("buffer_load_dwordx4 v%d, s[%d:%d], s%d offen lds" % (vA, S_SRD2, S_SRD2 + 3, T + 1))
    vB0, vB1, vT0 = 43, 44, 45
    F("""
    v_lshrrev_b32 v{t0}, 4, v{L}
    v_bfe_u32 v{t1}, v{L}, 1, 3
    v_xor_b32 v{t1}, v{t1}, v{t0}
    v_lshlrev_b32 v{t1}, 5, v{t1}
    v_and_b32 v{t2}, 1, v{L}
    v_lshl_add_u32 v{t1}, v{t2}, 4, v{t1}
    v_lshl_add_u32 v{t1}, v{t0}, 10, v{t1}
    s_lshl_b32 s{T}, s{H}, 17
    s_lshl_b32 s{T1}, s{W}, 8
    s_add_u32 s{T}, s{T}, s{T1}
    v_add_u32 v{b0}, s{T}, v{t1}
    v_xor_b32 v{b1}, 128, v{b0}
    v_lshrrev_b32 v{t0}, 4, v{L}
    v_bfe_u32 v{t1}, v{L}, 2, 2
    v_lshl_add_u32 v{t2}, v{t0}, 3, v{t1}
    v_lshlrev_b32 v{t2}, 8, v{t2}
    v_and_b32 v{t0}, 1, v{t0}
    v_lshl_add_u32 v{t0}, v{t0}, 2, v{t1}
    v_lshl_add_u32 v{t2}, v{t0}, 5, v{t2}
    v_and_b32 v{t1}, 3, v{L}
    v_lshl_add_u32 v{t2}, v{t1}, 3, v{t2}
    v_add_u32 v{tt}, s{M0}, v{t2}
    """, b0=vB0, b1=vB1, tt=vT0, M0=sM0)
    def issue_wo(b):
        build_srd(k, S_SRD3, P_WO, 4096 * 1024)
        for i in range(16):
            k("s_add_u32 s%d, s%d, %d" % (T, sM0, b * 16384 + i * 1024))
            k("s_mov_b32 m0, s%d" % T)
            k("s_mov_b32 s%d, %d" % (T + 1, (64 * b + 4 * i) * 1024))
            k("buffer_load_dwordx4 v%d, s[%d:%d], s%d offen lds" % (vB1 if (i & 2) else vB0, S_SRD3, S_SRD3 + 3, T + 1))
    def read_chunk(n, slot):
        m, b = divmod(n, 8)
        for t in range(2):
            f = (m * 2 + t) * 8 + b
            base = 128 + 8 * f
            for j, dl in enumerate((0, 4, 32, 36)):
                k("ds_read_b64_tr_b16 %s, v%d offset:%d" % (ur(base + 2 * j, 2), vR1 if t else vR0, slot * 4096 + dl * 64))
    slot_of = {n: (n % 8 if n < 16 else 4 + (n % 4)) for n in range(24)}
    q = []
    def wait_for(tag):
        if not [1 for t, c in q if t == tag]: return
        idx = [i for i, (t, c) in enumerate(q) if t == tag][0]
        rem = sum(c for t, c in q[idx + 1:])
        k("s_waitcnt vmcnt(%d)" % rem)
        del q[:idx + 1]
    for n in range(8):
        issue_chunk(n, slot_of[n]); q.append((n, 4))
    for n in range(24):
        wait_for(n)
        read_chunk(n, slot_of[n])
        k("s_waitcnt lgkmcnt(0)")
        if n < 8:
            issue_chunk(n + 8, slot_of[n + 8]); q.append((n + 8, 4))
        elif n < 12:
            if n == 11:
                issue_wo(0); q.append(("wo0", 16))
        elif n < 20:
            issue_chunk(n + 4, slot_of[n + 4]); q.append((n + 4, 4))
        if n == 23:
            issue_wo(1); q.append(("wo1", 16))
    mark(1)
    def convert_wo(b):
        wait_for("wo%d" % b)
        base = 48
        for t in range(8):
            k("v_xor_b32 v%d, %d, v%d" % (t0, t * 32, vT0))
            for j, dl in enumerate((0, 4, 32, 36)):
                k("ds_read_b64_tr_b16 %s, v%d offset:%d" % (vr(base + 8 * t + 2 * j, 2), t0, b * 16384 + dl * 256))
        k("s_waitcnt lgkmcnt(0)")
        for t in range(8):
            for hf in range(2):
                k("ds_write_b128 v%d, %s offset:%d" % (vWO, vr(base + 8 * t + 4 * hf, 4), b * 16384 + (t * 2 + hf) * 1024))
        k("s_waitcnt lgkmcnt(0)")
    convert_wo(0)
    convert_wo(1)

    mark(2)
    if gsync_fn: gsync_fn(k)
    build_srd(k, S_SRD2, P_MEM, 8 * 1024)
    k("v_lshlrev_b32 v%d, 2, v0" % t0)
    for q_ in range(8):
        k("s_mov_b32 s%d, %d" % (T, q_ * 1024))
        k("buffer_load_dword v%d, v%d, s[%d:%d], s%d offen" % (48 + q_, t0, S_SRD2, S_SRD2 + 3, T))
    F("""
    s_mov_b32 s{T}, 0x05040100
    s_mov_b32 s{T1}, 0x07060302
    v_lshlrev_b32 v{t1}, 5, v0
    v_bfe_u32 v{t2}, v0, 3, 1
    v_lshlrev_b32 v{t2}, 7, v{t2}
    v_xor_b32 v{t1}, v{t1}, v{t2}
    v_mov_b32 v64, 0
    v_mov_b32 v65, 0
    v_mov_b32 v66, 0
    v_mov_b32 v67, 0
    v_lshlrev_b32 v{t3}, 4, v0
    ds_write_b128 v{t3}, v[64:67] offset:{kt}
    s_waitcnt vmcnt(0)
    """, kt=L_KT)
    for m in range(4):
        k("v_perm_b32 v%d, v%d, v%d, s%d" % (56 + 2 * m, 49 + 2 * m, 48 + 2 * m, T))
        k("v_perm_b32 v%d, v%d, v%d, s%d" % (57 + 2 * m, 49 + 2 * m, 48 + 2 * m, T + 1))
    k("ds_write_b128 v%d, v[56:59]\nds_write_b128 v%d, v[60:63] offset:16" % (t1, t1))

    def flag_spin(soff, dst):
        Lp = k.uid("L_fl")
        k.label(Lp)
        k("v_mov_b32 v%d, s%d\ns_mov_b64 exec, 1" % (t0, soff))
        k("buffer_load_dword v%d, v%d, %s, 0 offen sc1" % (t1, t0, WSR))
        k("s_mov_b64 exec, -1\ns_waitcnt vmcnt(0)")
        k("v_readfirstlane_b32 s%d, v%d" % (dst, t1))
        spin_check(k, abort)
        k("s_cmp_ge_u32 s%d, 4" % dst)
        k("s_cbranch_scc0 %s" % Lp)
    def kv_loads():
        return ["buffer_load_dwordx4 %s, v%d, %s, s%d offen sc1" % (vr(vKn, 4), vKXw, WSR, sKV),
                "buffer_load_dwordx4 %s, v%d, %s, s%d offen offset:1024 sc1" % (vr(vKn + 4, 4), vKXw, WSR, sKV),
                "s_add_u32 s%d, s%d, 8192" % (T + 4, sKV),
                "buffer_load_dwordx4 %s, v%d, %s, s%d offen sc1" % (vr(vVn, 4), vKXw, WSR, T + 4),
                "buffer_load_dwordx4 %s, v%d, %s, s%d offen offset:1024 sc1" % (vr(vVn + 4, 4), vKXw, WSR, T + 4)]
    def kv_writes():
        return ["ds_write_b128 v%d, %s offset:%d" % (vKXw, vr(vKn, 4), L_KX),
                "ds_write_b128 v%d, %s offset:%d" % (vKXw, vr(vKn + 4, 4), L_KX + 1024),
                "ds_write_b128 v%d, %s offset:%d" % (vKXw, vr(vVn, 4), L_VX),
                "ds_write_b128 v%d, %s offset:%d" % (vKXw, vr(vVn + 4, 4), L_VX + 1024)]
    k("s_mov_b32 s%d, 0" % S_STEP)
    flag_spin(sFKV, sFlagVal)
    for x in kv_loads(): k(x)
    k("s_waitcnt vmcnt(0)")
    for x in kv_writes(): k(x)
    k("s_add_u32 s%d, s%d, %d\ns_add_u32 s%d, s%d, 4096" % (sKV, sKV, 16384, sFKV, sFKV))
    k("v_mov_b32 v%d, s%d\ns_mov_b64 exec, 1\nbuffer_load_dword v%d, v%d, %s, 0 offen sc1\ns_mov_b64 exec, -1\ns_waitcnt vmcnt(0)\nv_readfirstlane_b32 s%d, v%d" % (t0, sFKV, t1, t0, WSR, sFlagVal, t1))

    vA0 = 36; vACC = 68; vQB = 92; vKA = 108
    vM2 = 1
    def zero(base, n): return ["v_mov_b64 %s, 0" % vr(base + 2 * i, 2) for i in range(n // 2)]
    for x in zero(vACC, 24): k(x)
    k("v_xor_b32 v%d, 128, v%d" % (vM2, vTrM))
    k("s_waitcnt lgkmcnt(0)\ns_barrier")
    if stamps:
        for i in range(13): k("s_mov_b32 s%d, 0" % (89 + i))
        k("s_memtime s[62:63]\ns_waitcnt lgkmcnt(0)\ns_mov_b32 s88, s62")
    def stamp(i):
        if cut == i:
            k("s_branch L_cutend" + sfx)
        if stamps:
            k("s_memtime s[62:63]\ns_waitcnt lgkmcnt(0)\ns_sub_u32 s63, s62, s88\ns_add_u32 s%d, s%d, s63\ns_mov_b32 s88, s62" % (89 + i, 89 + i))
    def W(tau, b): return ur(128 + 8 * (tau * 8 + b), 8)
    def smf(acc, a, b): return "v_smfmac_f32_16x16x64_bf16 %s, %s, %s, v%d" % (vr(acc, 4), vr(a, 4), b, vIdx)
    def trM(b): return ["ds_read_b64_tr_b16 %s, v%d offset:%d" % (vr(vA0 + 4 * b, 2), vTrM, b * 1024),
                        "ds_read_b64_tr_b16 %s, v%d offset:%d" % (vr(vA0 + 4 * b + 2, 2), vM2, b * 1024)]
    gmark(k, 2)
    mark(3)
    k("s_memtime s[60:61]\ns_waitcnt lgkmcnt(0)\ns_mov_b32 s59, s60")
    k.label("L_step" + sfx)
    steplog(k, 124, 125, 0xF100000)
    for b in range(3):
        for x in trM(b): k(x)
    vKp = 92
    k("buffer_store_dwordx4 %s, v%d, %s, s%d offen sc1" % (vr(vKp, 4), vKpub, WSR, sKMp) if not (nopub or noimg) else "s_nop 0")
    k("s_cmp_ge_u32 s%d, 4\ns_cbranch_scc0 L_kvnotready%s" % (sFlagVal, sfx))
    k.label("L_kvready" + sfx)
    kvl = kv_loads()
    k(kvl.pop(2))
    k(kvl.pop(0))
    for b in range(8):
        k("s_waitcnt lgkmcnt(%d)" % (4 if b <= 5 else (2 if b == 6 else 0)))
        nx = trM(b + 3) if b + 3 < 8 else []
        k(smf(vACC + 0, vA0 + 4 * b, W(0, b)))
        if nx: k(nx[0])
        k(smf(vACC + 4, vA0 + 4 * b, W(1, b)))
        if nx: k(nx[1])
        if b in (1, 3, 5) and kvl: k(kvl.pop(0))
    assert not kvl
    stamp(0)
    order0 = [(t, ks) for ks in range(4) for t in range(2)]
    def halfsum(a): return ["v_add_f32 v%d, v%d, v%d" % (a, a, a + 2), "v_add_f32 v%d, v%d, v%d" % (a + 1, a + 1, a + 3), "v_cvt_pk_bf16_f32 v%d, v%d, v%d" % (a + 2, a, a + 1)]
    slow = ["s_add_u32 s%d, s%d, 4096" % (sFKV, sFKV), "v_mov_b32 v127, s%d" % sFKV, "v_mov_b32 v124, s%d" % sFKMq, "v_mov_b32 v125, 4",
            "s_mov_b64 exec, 1", "buffer_load_dword v%d, v127, %s, 0 offen sc1" % (vFl, WSR),
            "s_mov_b64 exec, s[%d:%d]" % (sExF, sExF + 1), "buffer_store_dword v125, v124, %s, 0 offen sc1" % WSR, "s_mov_b64 exec, -1"]
    prim = []
    for b in range(8):
        prim += [smf(vACC + 8, vA0 + 4 * b, W(2, b)), smf(vACC + 12, vA0 + 4 * b, W(3, b))]
    fill = slow + halfsum(vACC + 0) + ["ds_write_b32 v%d, v%d offset:%d" % (vQW, vACC + 2, L_QT)] + halfsum(vACC + 4) + ["ds_write_b32 v%d, v%d offset:%d" % (vQW, vACC + 6, L_QT + 256)]
    assert len(slow) == 9, len(slow)
    kxpre = ["ds_read_b128 %s, v%d offset:%d" % (vr(108 + 4 * i, 4), vL16, L_KX + (order0[i][0] * 4 + order0[i][1]) * 1024) for i in range(4)]
    fill = slow + fill[9:]
    for i, p in enumerate(prim):
        k(p)
        n = (2, 2, 2, 0, 2, 1, 0, 2, 2, 2, 2, 1, 1, 1, 1, 1)[i]
        for _ in range(n):
            if fill: k(fill.pop(0))
        if i in (10, 12, 14, 15): k(kxpre.pop(0))
    for x in fill: k(x)
    k("s_waitcnt lgkmcnt(4)\ns_barrier")
    stamp(1)
    qreads = []
    for ks in range(4):
        qreads += ["ds_read_b64_tr_b16 %s, v%d offset:%d" % (vr(vQB + 4 * ks, 2), vTrQ, L_QT + ks * 512),
                   "ds_read_b64_tr_b16 %s, v%d offset:%d" % (vr(vQB + 4 * ks + 2, 2), vTrQ, L_QT + ks * 512 + 256)]
    kxs = [vKA + 0, vKA + 4, vKA + 8, vKA + 12]
    order = [(t, ks) for ks in range(4) for t in range(2)]
    def kxread(i, dst):
        t, ks = order[i]
        return "ds_read_b128 %s, v%d offset:%d" % (vr(dst, 4), vL16, L_KX + (t * 4 + ks) * 1024)
    def vsm(b): return [smf(vACC + 16, vA0 + 4 * b, W(4, b)), smf(vACC + 20, vA0 + 4 * b, W(5, b))]
    kwr = ["ds_write_b32 v%d, v%d offset:%d" % (vKW, vACC + 10, L_KT), "ds_write_b32 v%d, v%d offset:%d" % (vKW, vACC + 14, L_KT + 512)]
    vM2k = 126
    for x in qreads: k(x)
    v01 = vsm(0) + vsm(1)
    k(v01[0]); k(v01[1])
    for x in halfsum(vACC + 8): k(x)
    k(kwr[0])
    for x in halfsum(vACC + 12): k(x)
    k(kwr[1])
    k(v01[2]); k(v01[3])
    for x in vsm(2) + vsm(3): k(x)
    k("s_waitcnt lgkmcnt(0)\ns_barrier")
    vS = vACC
    out = []
    def lwait(tag):
        if tag not in out: return
        idx = max(i for i, t in enumerate(out) if t == tag)
        k("s_waitcnt lgkmcnt(%d)" % (len(out) - idx - 1))
        del out[:idx + 1]
    def sx(i, src):
        t, ks = order[i]
        c = "0" if ks == 0 else vr(vS + 4 * t, 4)
        return "v_mfma_f32_16x16x32_bf16 %s, %s, %s, %s" % (vr(vS + 4 * t, 4), vr(src, 4), vr(vQB + 4 * ks, 4), c)
    vKA2 = vA0
    kar = []
    for ks in range(4):
        kar += ["ds_read_b64_tr_b16 %s, v%d offset:%d" % (vr(vKA2 + 4 * ks, 2), vTrK, L_KT + ks * 1024),
                "ds_read_b64_tr_b16 %s, v%d offset:%d" % (vr(vKA2 + 4 * ks + 2, 2), vTrK, L_KT + ks * 1024 + 512)]
    kar2 = list(kar)
    for i in range(4):
        k(sx(i, kxs[i]))
        for _ in range(2):
            k(kar2.pop(0)); out.append("ka")
    for i in range(4):
        k(kxread(4 + i, kxs[i])); out.append("kx%d" % (4 + i))
    ones = vACC + 12
    vVXf = vQB
    def woread(dst, t, b):
        return ["ds_read_b128 %s, v%d offset:%d" % (vr(dst, 4), vWO, b * 16384 + (t * 2) * 1024),
                "ds_read_b128 %s, v%d offset:%d" % (vr(dst + 4, 4), vWO, b * 16384 + (t * 2 + 1) * 1024)]
    wolist = [(t, b) for t in range(8) for b in range(2)]
    slots = [36, 44, 52, 60, 108, 116]
    for b in range(4, 8):
        for x in vsm(b): k(x)
    lwait("ka")
    vPx = vQB + 8; vPm = vQB + 12; vVm0 = vQB + 14; vVm1 = 124
    dense = []
    for ks in range(4):
        c = "0" if ks == 0 else vr(vS + 8, 4)
        dense.append(("v_mfma_f32_16x16x32_bf16 %s, %s, %s, %s" % (vr(vS + 8, 4), vr(vKA2 + 4 * ks, 4), vr(vQB + 4 * ks, 4), c), None))
    for i in range(4, 8): dense.append((sx(i, kxs[i - 4]), "kx%d" % i))
    vT0v = 125
    fill = ["v_mov_b32 v%d, 0x3f803f80" % (ones + i) for i in range(4)] + \
           ["v_add_f32 v%d, v%d, v%d" % (vACC + 16, vACC + 16, vACC + 18), "v_add_f32 v%d, v%d, v%d" % (vACC + 17, vACC + 17, vACC + 19),
            "v_add_f32 v%d, v%d, v%d" % (vACC + 20, vACC + 20, vACC + 22), "v_add_f32 v%d, v%d, v%d" % (vACC + 21, vACC + 21, vACC + 23),
            "v_cvt_pk_bf16_f32 v%d, v%d, v%d" % (vACC + 18, vACC + 16, vACC + 17), "v_cvt_pk_bf16_f32 v%d, v%d, v%d" % (vACC + 22, vACC + 20, vACC + 21),
            "ds_write_b32 v%d, v%d offset:%d" % (vKW, vACC + 18, L_KT + 4), "ds_write_b32 v%d, v%d offset:%d" % (vKW, vACC + 22, L_KT + 512 + 4)]
    for i, (x, tag) in enumerate(dense):
        if tag: lwait(tag)
        k(x)
        n = (2, 2, 0, 2, 2, 2, 2, 0)[i]
        for _ in range(n):
            if fill:
                f = fill.pop(0); k(f)
                if f.startswith("ds_"): out.append("vw")
    for f in fill:
        k(f)
    vVXf = vQB
    k("ds_read_b128 %s, v%d offset:%d" % (vr(vVXf, 4), vKXw, L_VX))
    k("ds_read_b128 %s, v%d offset:%d" % (vr(vVXf + 4, 4), vKXw, L_VX + 1024))
    for x in woread(slots[0], *wolist[0]): k(x)
    k("v_mov_b32 v%d, v%d" % (vVm0, vACC + 18))
    k("v_mov_b32 v%d, v%d" % (vVm1, vACC + 22))
    k("v_mov_b32 v%d, 0\nv_mov_b32 v%d, 0\nv_mov_b32 v%d, 0" % (vPm + 1, vVm0 + 1, vVm1 + 1))
    stamp(2)
    vals = [vS + i for i in range(10)]
    m = 126; m2 = 127
    k("v_max3_f32 v%d, v%d, v%d, v%d" % (m, vals[0], vals[1], vals[2]))
    k("v_max3_f32 v%d, v%d, v%d, v%d" % (m2, vals[3], vals[4], vals[5]))
    k("v_max3_f32 v%d, v%d, v%d, v%d" % (m, m, vals[6], vals[7]))
    k("v_max3_f32 v%d, v%d, v%d, v%d" % (m2, m2, vals[8], vals[9]))
    k("v_max_f32 v%d, v%d, v%d" % (m, m, m2))
    k("v_mov_b32 v%d, v%d" % (m2, m))
    wo_pre = woread(slots[1], *wolist[1]) + woread(slots[4], *wolist[4]) + woread(slots[5], *wolist[5]) + woread(slots[2], *wolist[2]) + woread(slots[3], *wolist[3])
    k(wo_pre.pop(0)); k(wo_pre.pop(0))
    k("v_permlane32_swap_b32 v%d, v%d\nv_max_f32 v%d, v%d, v%d\nv_mov_b32 v%d, v%d" % (m, m2, m, m, m2, m2, m))
    k(wo_pre.pop(0)); k(wo_pre.pop(0))
    k("v_permlane16_swap_b32 v%d, v%d\nv_max_f32 v%d, v%d, v%d" % (m, m2, m, m, m2))
    k("v_mul_f32 v%d, s%d, v%d" % (m, sC, m))
    k("v_mov_b32 v%d, s%d" % (m2, sC))
    for i in range(5):
        k("v_pk_fma_f32 %s, %s, v[126:127], v[126:127] op_sel:[0,1,0] op_sel_hi:[1,1,0] neg_lo:[0,0,1] neg_hi:[0,0,1]" % (vr(vals[2 * i], 2), vr(vals[2 * i], 2)))
    for v in vals: k("v_exp_f32 v%d, v%d" % (v, v))
    k("v_cvt_pk_bf16_f32 v%d, v%d, v%d" % (vPx + 0, vals[0], vals[1]))
    k("v_cvt_pk_bf16_f32 v%d, v%d, v%d" % (vPx + 1, vals[2], vals[3]))
    k("v_cvt_pk_bf16_f32 v%d, v%d, v%d" % (vPx + 2, vals[4], vals[5]))
    k("v_cvt_pk_bf16_f32 v%d, v%d, v%d" % (vPx + 3, vals[6], vals[7]))
    k("v_cvt_pk_bf16_f32 v%d, v%d, v%d" % (vPm, vals[8], vals[9]))
    vO = vACC + 16; vSum = vACC + 8
    k("s_waitcnt lgkmcnt(6)")
    k("v_mfma_f32_16x16x32_bf16 %s, %s, %s, 0" % (vr(vSum, 4), vr(ones, 4), vr(vPx, 4)))
    k(wo_pre.pop(0)); k(wo_pre.pop(0))
    k("v_mfma_f32_16x16x32_bf16 %s, %s, %s, 0" % (vr(vO, 4), vr(vVXf, 4), vr(vPx, 4)))
    k(wo_pre.pop(0)); k(wo_pre.pop(0))
    k("v_mfma_f32_16x16x16_bf16 %s, %s, %s, %s" % (vr(vSum, 4), vr(ones, 2), vr(vPm, 2), vr(vSum, 4)))
    k(wo_pre.pop(0)); k(wo_pre.pop(0))
    k("v_mfma_f32_16x16x32_bf16 %s, %s, %s, 0" % (vr(vO + 4, 4), vr(vVXf + 4, 4), vr(vPx, 4)))
    k("v_mfma_f32_16x16x16_bf16 %s, %s, %s, %s" % (vr(vO, 4), vr(vVm0, 2), vr(vPm, 2), vr(vO, 4)))
    k("v_mfma_f32_16x16x16_bf16 %s, %s, %s, %s" % (vr(vO + 4, 4), vr(vVm1, 2), vr(vPm, 2), vr(vO + 4, 4)))
    assert not wo_pre
    k("s_cmp_eq_u32 s%d, %d\ns_cbranch_scc1 L_chain_fin%s" % (S_STEP, nsteps - 1, sfx))
    k("s_and_b32 s%d, s%d, 1" % (sTag, S_STEP))
    for x in zero(68, 4): k(x)
    k("v_rcp_f32 v126, v%d" % vSum)
    for x in zero(80, 4) + zero(92, 8): k(x)
    for i in range(4):
        k("v_pk_mul_f32 %s, %s, v[126:127] op_sel_hi:[1,0]" % (vr(vO + 2 * i, 2), vr(vO + 2 * i, 2)))
    vOc = 100
    for i in range(4): k("v_cvt_pk_bf16_f32 v%d, v%d, v%d" % (vOc + i, vO + 2 * i, vO + 2 * i + 1))
    for i in range(4): k("ds_write_b32 v%d, v%d offset:%d" % (vOW, vOc + i, L_OX + 16 * i))
    for x in zero(72, 8) + zero(84, 8): k(x)
    k("s_waitcnt lgkmcnt(0)\ns_barrier")
    stamp(3)
    accs = [68, 72, 76, 80, 84, 88, 92, 96]
    vAo = 100
    k("ds_read_b128 %s, v%d offset:%d" % (vr(vAo, 4), vOR, L_OX))
    k("ds_read_b128 %s, v%d offset:%d" % (vr(vAo + 4, 4), vOR, L_OX + 128))
    out = ["ao0", "ao1"]
    ns = len(slots)
    def epi(j):
        a = accs[4 * j:4 * j + 4]
        G = 124 if j == 0 else accs[0]
        if j == 0:
            L = []
            for t in range(4): L += ["v_add_f32 v%d, v%d, v%d" % (a[t], a[t], a[t] + 2), "v_add_f32 v%d, v%d, v%d" % (a[t] + 1, a[t] + 1, a[t] + 3)]
        else:
            L = ["v_pk_add_f32 %s, %s, %s" % (vr(a[t], 2), vr(a[t], 2), vr(a[t] + 2, 2)) for t in range(4)]
        L += ["v_cvt_pk_bf16_f32 v%d, v%d, v%d" % (G + t, a[t], a[t] + 1) for t in range(4)]
        L += ["s_nop 0",
              "v_permlane32_swap_b32 v%d, v%d" % (G + 0, G + 2), "v_permlane32_swap_b32 v%d, v%d" % (G + 1, G + 3),
              "s_nop 1",
              "v_permlane16_swap_b32 v%d, v%d" % (G + 0, G + 1), "v_permlane16_swap_b32 v%d, v%d" % (G + 2, G + 3),
              "v_and_or_b32 v%d, v%d, -2, s%d" % (G, G, sTag),
              "buffer_store_dwordx4 %s, v%d, %s, s%d offen%s" % (vr(G, 4), vPst, WSR, sPst + j, PL)]
        return L
    pend = []
    def need(tag):
        if tag in out:
            idx = max(j for j, x in enumerate(out) if x == tag)
            k("s_waitcnt lgkmcnt(%d)" % (len(out) - idx - 1)); del out[:idx + 1]
    for i in range(16):
        t, b = wolist[i]
        need("ao%d" % b)
        need(i)
        k("v_smfmac_f32_16x16x64_bf16 %s, %s, %s, v%d" % (vr(accs[t], 4), vr(vAo + 4 * b, 4), vr(slots[i % ns], 8), vIdx))
        if i + ns < 16:
            for x in woread(slots[i % ns], *wolist[i + ns]): k(x)
            out += [i + ns, i + ns]
        if i == 10: pend += epi(0)
        for _ in range(4):
            if pend: k(pend.pop(0))
    for x in pend: k(x)
    k("s_nop 4")
    for x in epi(1): k(x)
    stamp(4)
    k("s_waitcnt vmcnt(2)")
    for x in kv_writes(): k(x)
    k("v_readfirstlane_b32 s%d, v%d" % (sFlagVal, vFl))
    F("""
    s_add_u32 s{T}, s{st}, 1
    s_and_b32 s{T1}, s{T}, 3
    s_lshl_b32 s{T1}, s{T1}, 13
    s_add_u32 s{T2}, s{T1}, s{mb}
    s_add_u32 s{T}, s{st}, 3
    s_and_b32 s{T1}, s{T}, 3
    s_lshl_b32 s{clr}, s{T1}, 13
    s_add_u32 s{clr}, s{clr}, s{mb}
    s_lshl_b32 s{T}, s{H}, 8
    s_add_u32 s{mst}, s{T2}, s{T}
    s_add_u32 s{clr}, s{clr}, s{T}
    s_lshl_b32 s{T}, s{W}, 6
    s_add_u32 s{clr}, s{clr}, s{T}
    s_lshl_b32 s{T}, s{W}, 11
    s_add_u32 s{mld}, s{T2}, s{T}
    """, st=S_STEP, clr=sClr, mb=sMbase, mst=sMst, mld=sMld)
    vSel = 68
    PB = 36
    def pb_loads():
        k("buffer_load_dwordx4 %s, v%d, %s, s%d offen sc1" % (vr(PB, 4), vPld, WSR, sPld))
        k("buffer_load_dwordx4 %s, v%d, %s, s%d offen sc1" % (vr(PB + 4, 4), vPld, WSR, sPld2))
    def selbuild():
        k("""
        v_bfe_u32 v76, v{l16}, 6, 2
        v_bfe_u32 v77, v{l16}, 4, 1
        v_lshlrev_b32 v77, 4, v77
        v_mov_b32 v78, 0x3f80
        v_lshlrev_b32 v77, v77, v78
        v_bfe_u32 v78, v{l16}, 5, 1
        v_cmp_eq_u32 vcc, 0, v78
        v_mov_b32 v79, 0
        s_nop 0
        v_cndmask_b32 v77, v79, v77, vcc
        """.format(l16=vL16))
        for i in range(4):
            k("v_cmp_eq_u32 vcc, %d, v76\nv_mov_b32 v%d, 0\ns_nop 0\nv_cndmask_b32 v%d, v79, v77, vcc" % (i, vSel + i, vSel + i))
        k("v_mov_b64 v[76:77], -1\nv_mov_b64 v[78:79], -1\ns_mov_b64 exec, 15")
        k("buffer_store_dwordx4 v[76:79], v%d, %s, s%d offen%s\ns_mov_b64 exec, -1" % (vL16, WSR, sClrNow, PL))
    if earlyB:
        if d1: k.nop(d1)
        if not probe: stamp(9)
        pb_loads()
        selbuild()
    else:
        selbuild()
        if not probe: stamp(9)
        if waitack: k("s_waitcnt vmcnt(0)")
        if d1: k.nop(d1)
        pb_loads()
    Lpb = k.uid("L_pollB"); Lpb1 = k.uid("L_pollB1")
    k("s_branch %s" % Lpb1)
    k.label(Lpb)
    pb_loads()
    k("s_nop 0") if earlyB else None
    k.label(Lpb1)
    k("s_waitcnt vmcnt(0)")
    k("v_mfma_f32_16x16x32_bf16 v[72:75], %s, %s, 0" % (vr(vSel, 4), vr(PB, 4)))
    k("v_xor_b32 v76, s%d, v%d" % (sTag, PB))
    k("v_mfma_f32_16x16x32_bf16 v[72:75], %s, %s, v[72:75]" % (vr(vSel, 4), vr(PB + 4, 4)))
    k("v_xor_b32 v77, s%d, v%d\nv_or_b32 v76, v76, v77" % (sTag, PB + 4))
    k("v_and_b32 v76, 1, v76\nv_cmp_ne_u32 vcc, 0, v76")
    if stamps or marks: k("s_add_u32 s100, s100, 63")
    spin_check(k, abort)
    k("s_cbranch_vccnz %s" % Lpb if not nohop else "s_nop 0")
    stamp(5)
    if not stamps: k("s_nop 0")
    k("v_add_f32_dpp v72, v72, v72 row_ror:4 row_mask:0xf bank_mask:0xf")
    k("v_add_f32_dpp v73, v73, v73 row_ror:4 row_mask:0xf bank_mask:0xf")
    k("s_nop 0")
    k("v_add_f32_dpp v72, v72, v72 row_ror:8 row_mask:0xf bank_mask:0xf")
    k("v_add_f32_dpp v73, v73, v73 row_ror:8 row_mask:0xf bank_mask:0xf")
    k("v_cvt_pk_bf16_f32 v76, v72, v73")
    k("s_nop 1")
    k("v_mov_b32_dpp v77, v76 quad_perm:[1,0,3,2] row_mask:0xf bank_mask:0xf")
    k("v_mov_b32 v78, v76")
    k("s_nop 0")
    k("v_mov_b32 v79, v77")
    k("v_permlane16_swap_b32 v76, v78")
    k("s_nop 0")
    k("v_permlane16_swap_b32 v77, v79")
    k("s_mov_b32 exec_lo, 5\ns_mov_b32 exec_hi, 5")
    k("v_min_u32 v76, -2, v76")
    k("buffer_store_dwordx4 v[76:79], v%d, %s, s%d offen%s" % (vMst, WSR, sMst, PL))
    k("s_mov_b64 exec, -1")
    if not probe: stamp(6)
    k.label("L_cutend" + sfx)
    if cut < 99:
        k("s_and_b32 s%d, s%d, 1" % (sTag, S_STEP))
        k("s_cmp_eq_u32 s%d, %d\ns_cbranch_scc1 L_chain_fin%s" % (S_STEP, nsteps - 1, sfx))
    k("""
    s_add_u32 s{st}, s{st}, 1
    s_add_u32 s{kv}, s{kv}, {kvs}
    s_mov_b32 s{kmp}, s{km}
    s_add_u32 s{km}, s{km}, {kms}
    s_mov_b32 s{fq}, s{fp}
    s_mov_b32 s{fp}, s{fm}
    s_add_u32 s{fm}, s{fm}, 4096
    """.format(fp=sFKMp, fq=sFKMq, kmp=sKMp, st=S_STEP, kv=sKV, km=sKM, kvs=16384, kms=4096, fm=sFKM))
    for x in zero(vACC, 24): k(x)
    k("v_xor_b32 v%d, 128, v%d" % (vM2, vTrM))
    if cut < 99:
        k("s_waitcnt lgkmcnt(0)\ns_barrier\ns_branch L_step" + sfx)
    if waitackC: k("s_waitcnt vmcnt(0)")
    if d2: k.nop(d2)
    Lg2 = k.uid("L_pollC")
    k.label(Lg2)
    for i in range(2):
        k("buffer_load_dwordx4 %s, v%d, %s, s%d offen offset:%d sc1" % (vr(36 + 4 * i, 4), vL16, WSR, sMld, i * 1024))
    k("s_waitcnt vmcnt(0)")
    k("v_cmp_eq_u32 vcc, -1, v36\nv_cmp_eq_u32 s[46:47], -1, v40\ns_or_b64 vcc, vcc, s[46:47]")
    if stamps or marks: k("s_add_u32 s101, s101, 63")
    spin_check(k, abort)
    k("s_cbranch_vccnz %s" % Lg2 if not nohop else "s_nop 0")
    if probe:
        stamp(7)
        for i in range(2):
            k("buffer_load_dwordx4 %s, v%d, %s, s%d offen offset:%d sc1" % (vr(36 + 4 * i, 4), vL16, WSR, sMld, i * 1024))
        k("s_waitcnt vmcnt(0)")
        stamp(6)
        for i in range(2):
            k("buffer_load_dwordx4 %s, v%d, %s, s%d offen offset:%d sc1" % (vr(36 + 4 * i, 4), vL16, WSR, sMld, i * 1024))
        k("s_waitcnt vmcnt(0)")
        stamp(9)
    for i in range(2):
        k("ds_write_b128 v%d, %s offset:%d" % (vMlds, vr(36 + 4 * i, 4), L_MEMT + i * 1024))
    k("ds_read_b128 v[92:95], v%d offset:%d" % (vKpub, L_KT))
    stamp(7)
    k("s_waitcnt lgkmcnt(0)\ns_barrier")
    stamp(8)
    k("s_branch L_step" + sfx)
    k.label("L_kvnotready" + sfx)
    k("s_cmp_ge_u32 s%d, %d\ns_cbranch_scc1 L_kvready%s" % (S_STEP, nsteps - 1, sfx))
    flag_spin(sFKV, sFlagVal)
    k("s_branch L_kvready" + sfx)
    k.label("L_chain_fin" + sfx)
    k("s_memtime s[60:61]\ns_waitcnt lgkmcnt(0)\ns_sub_u32 s59, s60, s59")
    k("s_waitcnt vmcnt(0) lgkmcnt(0)\ns_barrier")
    k("v_mov_b32 v124, s%d\nv_mov_b32 v125, 1\ns_mov_b64 exec, 1" % sFKMp)
    k("buffer_atomic_add v125, v124, %s, 0 offen sc1\ns_mov_b64 exec, -1" % WSR)
    k("ds_read_b128 v[72:75], v%d offset:%d\ns_waitcnt lgkmcnt(0)" % (vKpub, L_KT))
    k("buffer_store_dwordx4 v[72:75], v%d, %s, s%d offen sc1\ns_waitcnt vmcnt(0)" % (vKpub, WSR, sKM))
    k("v_mov_b32 v124, s%d\nv_mov_b32 v125, 1\ns_mov_b64 exec, 1" % sFKM)
    k("buffer_atomic_add v125, v124, %s, 0 offen sc1\ns_mov_b64 exec, -1\ns_waitcnt vmcnt(0)" % WSR)
    if dump:
        if not stamps:
            for i in range(11 if marks else 13): k("s_mov_b32 s%d, 0" % (89 + i))
        k("s_mov_b32 s99, s59")
        if marks:
            mark(4)
            for i in range(5): k("s_mov_b32 s%d, s%d" % (89 + i, 52 + i))
        k("s_lshl_b32 s%d, s%d, 5\ns_add_u32 s%d, s%d, s%d" % (T, S_L, T, T, S_RANK))
        k("s_lshl_b32 s%d, s%d, 2\ns_add_u32 s%d, s%d, s%d\ns_lshl_b32 s%d, s%d, 6" % (T, T, T, T, S_WAVE, T, T))
        k("s_add_u32 s%d, s%d, 0x%x" % (T, T, 0xF000000))
        for i in range(13):
            k("v_mov_b32 v%d, s%d" % (40 + i, 89 + i))
        k("v_mov_b32 v124, s%d" % T)
        k("s_mov_b64 exec, 1")
        for i in range(4):
            k("buffer_store_dwordx4 %s, v124, %s, 0 offen offset:%d" % (vr(40 + 4 * i, 4), WSR, 16 * i))
        k("s_waitcnt vmcnt(0)")
    gmark(k, 3)
    gdump(k)
    k("s_branch L_end")
```

```python
from asmlib import *
from layout import *
from chain import (S_WS, S_SRD2, S_SRD3, S_WAVE, S_RANK, S_XCC, S_L, S_T0, S_SPIN, S_STEP, P_X, P_MEM, P_WQ, P_WK, P_WV, P_WO, P_WG, P_WU, P_WD,
                   P_OUT, P_DBG, P_WSP, build_srd, spin_check, f32, interleave, SCALE_LOG2E, gmark, gdump, steplog)
WSR = "s[%d:%d]" % (S_WS, S_WS + 3)
FOLD_DMA = 0
T = S_T0
ABORT = "L_abort"

def fmt(k, _txt, **kw):
    d = dict(T=T, T1=T + 1, T2=T + 2, T3=T + 3, W=S_WAVE, R=S_RANK, LY=S_L)
    d.update(kw); k(_txt.format(**d))

def wait_flag(k, soff, target, va, vb, sleep=True):
    Lp = k.uid("L_wf")
    k("v_mov_b32 v%d, s%d" % (va, soff))
    k.label(Lp)
    k("s_mov_b64 exec, 1")
    k("buffer_load_dword v%d, v%d, %s, 0 offen sc1" % (vb, va, WSR))
    k("s_mov_b64 exec, -1\ns_waitcnt vmcnt(0)")
    k("v_readfirstlane_b32 s%d, v%d" % (T, vb))
    spin_check(k, ABORT)
    k("s_cmp_ge_u32 s%d, %d" % (T, target))
    Ld = k.uid("L_wfd")
    k("s_cbranch_scc1 %s" % Ld)
    if sleep: k("s_sleep 2")
    k("s_branch %s" % Lp)
    k.label(Ld)

def poll_issue_n(k, soff, n, va, vb):
    k("v_and_b32 v%d, 63, v0\nv_lshlrev_b32 v%d, 2, v%d\nv_add_u32 v%d, s%d, v%d" % (va, va, va, va, soff, va))
    k("s_mov_b64 exec, 0x%x\nbuffer_load_dword v%d, v%d, %s, 0 offen sc1\ns_mov_b64 exec, -1" % ((1 << n) - 1, vb, va, WSR))
def poll_eval_n(k, n, vb, sdst):
    k("v_cmp_ne_u32 vcc, 0, v%d\ns_and_b32 s%d, vcc_lo, 0x%x\ns_cmp_eq_u32 s%d, 0x%x\ns_cselect_b32 s%d, 1, 0" % (vb, sdst, (1 << n) - 1, sdst, (1 << n) - 1, sdst))
def wait_n(k, soff, n, va, vb, sleep=True):
    Lp = k.uid("L_wn"); Ld = k.uid("L_wnd")
    k.label(Lp)
    poll_issue_n(k, soff, n, va, vb)
    k("s_waitcnt vmcnt(0)")
    poll_eval_n(k, n, vb, T)
    k("s_cmp_eq_u32 s%d, 1\ns_cbranch_scc1 %s" % (T, Ld))
    spin_check(k, ABORT)
    if sleep: k("s_sleep 2")
    k("s_branch %s" % Lp)
    k.label(Ld)
def signal_set(k, soff, sexec, va, vb):
    k("v_mov_b32 v%d, s%d\nv_mov_b32 v%d, 1\ns_mov_b64 exec, s[%d:%d]" % (va, soff, vb, sexec, sexec + 1))
    k("buffer_store_dword v%d, v%d, %s, 0 offen sc1\ns_mov_b64 exec, -1" % (vb, va, WSR))

def signal_add(k, soff, va, vb):
    Ls = k.uid("L_sg")
    k("s_cmp_eq_u32 s%d, 0\ns_cbranch_scc0 %s" % (S_WAVE, Ls))
    k("v_mov_b32 v%d, s%d\nv_mov_b32 v%d, 1\ns_mov_b64 exec, 1" % (va, soff, vb))
    k("buffer_atomic_add v%d, v%d, %s, 0 offen sc1\ns_mov_b64 exec, -1" % (vb, va, WSR))
    k.label(Ls)

def signal_store(k, soff, val, va, vb):
    Ls = k.uid("L_sg")
    k("s_cmp_eq_u32 s%d, 0\ns_cbranch_scc0 %s" % (S_WAVE, Ls))
    k("v_mov_b32 v%d, s%d\nv_mov_b32 v%d, %d\ns_mov_b64 exec, 1" % (va, soff, vb, val))
    k("buffer_store_dword v%d, v%d, %s, 0 offen sc1\ns_mov_b64 exec, -1" % (vb, va, WSR))
    k.label(Ls)

def load_weights(k, chunks, vL, vt, ring_base_sgpr, nslots=8):
    vA0, vA1, vB0, vB1, t0, t1, t2 = vt + 0, vt + 1, vt + 2, vt + 3, vt + 4, vt + 5, vt + 6
    vOffs = {}
    strides = sorted(set(c["stride"] for c in chunks))
    assert len(strides) == 1
    stride = strides[0]
    vOff = vt + 7
    fmt(k, """
    v_bfe_u32 v{t0}, v{L}, 4, 1
    v_bfe_u32 v{t1}, v{L}, 5, 1
    v_xor_b32 v{t0}, v{t0}, v{t1}
    v_lshlrev_b32 v{t0}, 1, v{t0}
    v_and_b32 v{t1}, 3, v{L}
    v_xor_b32 v{t0}, v{t0}, v{t1}
    v_lshlrev_b32 v{t0}, 4, v{t0}
    v_lshrrev_b32 v{t1}, 2, v{L}
    s_mov_b32 s{T}, {stride}
    v_mul_lo_u32 v{t1}, s{T}, v{t1}
    v_add_u32 v{o}, v{t0}, v{t1}
    ; natural: A0 = (8g+j)*64 + 8m + 32*(g&1)
    v_lshrrev_b32 v{t0}, 4, v{L}
    v_bfe_u32 v{t1}, v{L}, 2, 2
    v_lshl_add_u32 v{t2}, v{t0}, 3, v{t1}
    v_lshlrev_b32 v{t2}, 6, v{t2}
    v_and_b32 v{a0}, 3, v{L}
    v_lshl_add_u32 v{t2}, v{a0}, 3, v{t2}
    v_and_b32 v{a0}, 1, v{t0}
    v_lshl_add_u32 v{t2}, v{a0}, 5, v{t2}
    v_add_u32 v{a0}, s{rb}, v{t2}
    v_xor_b32 v{a1}, 32, v{a0}
    ; pi: B0 = (4g+j)*64 + 8m + 32*((g&1)^(g>>1))
    v_lshl_add_u32 v{t2}, v{t0}, 2, v{t1}
    v_lshlrev_b32 v{t2}, 6, v{t2}
    v_and_b32 v{b0}, 3, v{L}
    v_lshl_add_u32 v{t2}, v{b0}, 3, v{t2}
    v_lshrrev_b32 v{t1}, 1, v{t0}
    v_xor_b32 v{t1}, v{t1}, v{t0}
    v_and_b32 v{t1}, 1, v{t1}
    v_lshl_add_u32 v{t2}, v{t1}, 5, v{t2}
    v_add_u32 v{b0}, s{rb}, v{t2}
    v_xor_b32 v{b1}, 32, v{b0}
    """, L=vL, t0=t0, t1=t1, t2=t2, o=vOff, a0=vA0, a1=vA1, b0=vB0, b1=vB1, stride=stride, rb=ring_base_sgpr)
    cur = [None]
    def issue(n):
        c = chunks[n]; slot = n % nslots
        if cur[0] != c["ptr"]:
            build_srd(k, S_SRD2, c["ptr"], c["nbytes"]); cur[0] = c["ptr"]
        for i in range(4):
            k("s_add_u32 s%d, s%d, %d" % (T, ring_base_sgpr, slot * 4096 + i * 1024))
            k("s_mov_b32 m0, s%d" % T)
            k("s_add_u32 s%d, s%d, %d" % (T + 1, c["scol"], (c["row0"] + 16 * i) * stride))
            k("buffer_load_dwordx4 v%d, s[%d:%d], s%d offen lds" % (vOff, S_SRD2, S_SRD2 + 3, T + 1))
    def read(n):
        c = chunks[n]; slot = n % nslots
        for t in range(2):
            for ks2 in range(2):
                d = c["dest"][(t, ks2)]
                for hf in range(2):
                    if c["order"] == "n":
                        a = vA1 if (t ^ hf) else vA0; off = ks2 * 2048 + hf * 256
                    else:
                        a = vB1 if t else vB0; off = ks2 * 2048 + hf * 1024
                    k("ds_read_b64_tr_b16 %s, v%d offset:%d" % (ur(d + 2 * hf, 2), a, slot * 4096 + off))
    N = len(chunks)
    for n in range(min(nslots, N)): issue(n)
    for n in range(N):
        rem = min(N - 1 - n, nslots - 1) * 4
        k("s_waitcnt vmcnt(%d)" % rem)
        read(n)
        k("s_waitcnt lgkmcnt(0)")
        if n + nslots < N: issue(n + nslots)

def gemm_role(k, name, NK, NT, chunks_fn, in_off, in_lstride, in_sstride, in_kbase_fn, in_layout, wflag_fn, wtarget, epi_fn, sflag_fn, nseg=64, NC=4):
    vL = 1; vL16 = 2
    k("v_and_b32 v%d, 63, v0\nv_lshlrev_b32 v%d, 4, v%d" % (vL, vL16, vL))
    gsync(k)
    sRing = T + 5
    fmt(k, "s_mul_i32 s{r}, s{W}, 40960", r=sRing)
    chunks = chunks_fn(k)
    load_weights(k, chunks, vL, 8, sRing)
    k("s_barrier")
    gmark(k, 2)
    BUF = 2 * NK * 1024
    sIn, sWf, sSf, sBuf, sIss, sFv, sEp = 66, 67, 68, 69, 70, 71, 72
    fmt(k, "s_mul_i32 s{i}, s{LY}, 0x{ls:x}\ns_add_u32 s{i}, s{i}, 0x{o:x}", i=sIn, ls=in_lstride, o=in_off)
    in_kbase_fn(k, sIn)
    wflag_fn(k, sWf); sflag_fn(k, sSf)
    epi_init, epi = epi_fn(k, sEp)
    nd = 2 * NK // 4
    assert (2 * NK) % 4 == 0 and NK % NC == 0
    per = NK // NC
    needs = [((c + 1) * per * 2 + 3) // 4 for c in range(NC)]
    NUP = nd if FOLD_DMA == 0 else needs[1]
    sDg, sDl = 81, 82
    def dma(sbase, sbuf):
        k("s_mov_b32 s%d, s%d\ns_mov_b32 s%d, s%d" % (sDg, sbase, sDl, sbuf))
        for j in range(NUP):
            k("s_add_u32 s%d, s%d, %d" % (T, sbuf, j * 4096))
            k("s_mov_b32 m0, s%d" % T)
            k("s_add_u32 s%d, s%d, %d" % (T + 1, sbase, j * 4096 if in_layout == "kt" else j * 2048))
            k("buffer_load_dwordx4 v%d, %s, s%d offen sc1 lds" % (vL16, WSR, T + 1))
    sWl, sWg, sDst = 73, 74, 75
    fmt(k, "s_lshl_b32 s{a}, s{W}, 10", a=sWl)
    if in_layout == "kt": fmt(k, "s_lshl_b32 s{a}, s{W}, 10", a=sWg)
    else: fmt(k, "s_and_b32 s{T}, s{W}, 1\ns_lshl_b32 s{T}, s{T}, 14\ns_lshr_b32 s{T1}, s{W}, 1\ns_lshl_b32 s{T1}, s{T1}, 10\ns_add_u32 s{a}, s{T}, s{T1}", a=sWg)
    def issue_dma(nextbuf_sgpr):
        k("s_add_u32 s%d, s%d, s%d" % (T + 2, sIn, sWg))
        k("s_add_u32 s%d, s%d, s%d" % (T + 3, nextbuf_sgpr, sWl))
        dma(T + 2, T + 3)
    vFa, vFb = 3, 4
    sPend, sSfp, sExF = 76, 77, 78
    DEC = 0x20000
    k("s_mov_b32 s%d, 0\ns_mov_b32 s%d, 0\ns_mov_b32 s%d, 0\ns_mov_b32 s%d, 0x%x" % (S_STEP, sBuf, sPend, sSfp, F_DUMMY))
    k("s_cmp_eq_u32 s%d, 0\ns_cselect_b32 s%d, 1, 0\ns_mov_b32 s%d, 0" % (S_WAVE, sExF, sExF + 1))
    epi_init()
    wait_n(k, sWf, wtarget, vFa, vFb)
    issue_dma(sBuf)
    k("s_mov_b32 s%d, 0" % sIss)
    vRd = 5
    vSg = 6
    vB = 8
    vAcc = 32
    def signal(soff): signal_set(k, soff, sExF, vSg, vSg + 1)
    Lloop = "L_%s_loop" % name
    k.label(Lloop)
    steplog(k, 6, 7, 0xF100000)
    k("v_add_u32 v%d, s%d, v%d" % (vRd, sBuf, vL16))
    k("s_add_u32 s%d, s%d, %d" % (sIn, sIn, in_sstride))
    k("s_add_u32 s%d, s%d, %d" % (sWf, sWf, wflag_fn.stride))
    def rd(ks):
        s_ = vB + 8 * (ks % 3)
        return ["ds_read_b128 %s, v%d offset:%d" % (vr(s_, 4), vRd, (ks * 2) * 1024), "ds_read_b128 %s, v%d offset:%d" % (vr(s_ + 4, 4), vRd, (ks * 2 + 1) * 1024)]
    def chunk(c, extra):
        ks0 = c * per
        for x in rd(ks0): k(x)
        if per > 1:
            for x in rd(ks0 + 1): k(x)
        for ks in range(ks0, ks0 + per):
            nxt = ks + 2
            pend = 2 * (min(ks0 + per - 1, ks + 1) - ks)
            k("s_waitcnt lgkmcnt(%d)" % pend)
            s_ = vB + 8 * (ks % 3)
            mf = []
            for t in range(NT):
                for tt in range(2):
                    a = vAcc + (t * 2 + tt) * 4
                    mf.append("v_mfma_f32_16x16x32_bf16 %s, %s, %s, %s" % (vr(a, 4), ur(chunks_fn.frag(t, ks), 4), vr(s_ + 4 * tt, 4), "0" if ks == 0 else vr(a, 4)))
            fill = rd(nxt) if nxt < ks0 + per else []
            if extra: fill = fill + extra.pop(0)
            interleave(k, mf, fill, per=2 if extra is not None else 1, start=0)
    def dma_groups(sbase, sbuf):
        G = []
        for j in range(nd):
            G.append(["s_add_u32 s%d, s%d, %d" % (T, sbuf, j * 4096), "s_mov_b32 m0, s%d" % T,
                      "s_add_u32 s%d, s%d, %d" % (T + 1, sbase, j * 4096 if in_layout == "kt" else j * 2048),
                      "buffer_load_dwordx4 v%d, %s, s%d offen sc1 lds" % (vL16, WSR, T + 1)])
        return G
    def dgroup(j):
        return ["s_add_u32 s%d, s%d, %d" % (T, sDl, j * 4096), "s_mov_b32 m0, s%d" % T,
                "s_add_u32 s%d, s%d, %d" % (T + 1, sDg, j * 4096 if in_layout == "kt" else j * 2048),
                "buffer_load_dwordx4 v%d, %s, s%d offen sc1 lds" % (vL16, WSR, T + 1)]
    assert NC == 4
    issued = NUP
    for c in range(NC):
        k("s_waitcnt vmcnt(%d)\ns_barrier" % (issued - needs[c]))
        if c == 0:
            signal(sSfp)
            k("s_mov_b32 s%d, 0x%x" % (sSfp, F_DUMMY))
        if c == NC - 1: poll_issue_n(k, sWf, wtarget, vFa, vFb)
        extra = None
        if c < 2 and FOLD_DMA:
            js = list(range(needs[c + 1], needs[c + 2]))
            extra = [[] for _ in range(per)]
            for n_, j in enumerate(js): extra[(n_ * per) // len(js)] += dgroup(j)
            issued = needs[c + 2]
        chunk(c, extra)
    steplog(k, 6, 7, 0xF200000)
    epi(vAcc)
    k("s_xor_b32 s%d, s%d, %d" % (sBuf, sBuf, BUF))
    k("s_add_u32 s%d, s%d, 1" % (S_STEP, S_STEP))
    Lw = k.uid("L_dec")
    k("s_waitcnt vmcnt(%d)" % epi.nstores)
    poll_eval_n(k, wtarget, vFb, sFv)
    k("v_mov_b32 v%d, s%d\nv_mov_b32 v%d, 0x%x" % (vFb, sFv, vSg, DEC))
    k("s_cmp_eq_u32 s%d, 0\ns_cbranch_scc0 %s" % (S_WAVE, Lw))
    k("s_mov_b64 exec, 1\nds_write_b32 v%d, v%d\ns_mov_b64 exec, -1\ns_waitcnt lgkmcnt(0)" % (vSg, vFb))
    k.label(Lw)
    k("s_barrier\nds_read_b32 v%d, v%d\ns_waitcnt lgkmcnt(0)\nv_readfirstlane_b32 s%d, v%d" % (vFb, vSg, sFv, vFb))
    Lni = k.uid("L_ni")
    k("s_cmp_ge_u32 s%d, %d\ns_cbranch_scc1 %s" % (S_STEP, nseg, Lni))
    k("s_cmp_eq_u32 s%d, 1\ns_cbranch_scc0 %s" % (sFv, Lni))
    issue_dma(sBuf)
    k("s_mov_b32 s%d, s%d\ns_add_u32 s%d, s%d, %d\ns_branch %s" % (sSfp, sSf, sSf, sSf, sflag_fn.stride, Lloop))
    k.label(Lni)
    k("s_waitcnt vmcnt(0)\ns_barrier")
    signal(sSf)
    steplog(k, 6, 7, 0xF300000)
    k("s_add_u32 s%d, s%d, %d" % (sSf, sSf, sflag_fn.stride))
    Lfin = k.uid("L_gfin")
    k("s_cmp_ge_u32 s%d, %d\ns_cbranch_scc1 %s" % (S_STEP, nseg, Lfin))
    wait_n(k, sWf, wtarget, vFa, vFb, sleep=False)
    issue_dma(sBuf)
    k("s_branch %s" % Lloop)
    k.label(Lfin)
    k("s_waitcnt vmcnt(0)")
    gmark(k, 3); gdump(k)
    k("s_branch L_end")

def g3_role(k):
    def chunks_fn(k):
        sCol = T + 6
        fmt(k, "s_and_b32 s{T}, s{R}, 3\ns_lshl_b32 s{T}, s{T}, 8\ns_lshl_b32 s{T1}, s{W}, 6\ns_add_u32 s{c}, s{T}, s{T1}\ns_lshr_b32 s{T}, s{R}, 2\ns_lshl_b32 s{T}, s{T}, 20\ns_add_u32 s{c}, s{c}, s{T}", c=sCol)
        return [dict(ptr=P_WO, nbytes=4096 * 1024, stride=1024, scol=sCol, row0=64 * c, order="p",
                     dest={(t, ks2): chunks_fn.frag(t, 2 * c + ks2) for t in range(2) for ks2 in range(2)}) for c in range(16)]
    chunks_fn.frag = lambda t, ks: 256 + (t * 32 + ks) * 4
    def kbase(k, sIn): fmt(k, "s_lshr_b32 s{T}, s{R}, 2\ns_lshl_b32 s{T}, s{T}, 16\ns_add_u32 s{i}, s{i}, s{T}", i=sIn)
    def wflag(k, s): fmt(k, "s_lshl_b32 s{T}, s{LY}, 15\ns_lshr_b32 s{T1}, s{R}, 2\ns_lshl_b32 s{T1}, s{T1}, 7\ns_add_u32 s{T}, s{T}, s{T1}\ns_add_u32 s{s}, s{T}, 0x{F:x}", s=s, F=F_O)
    wflag.stride = 4 * FL
    def sflag(k, s): fmt(k, "s_lshl_b32 s{T}, s{LY}, 13\ns_lshl_b32 s{T1}, s{R}, 2\ns_add_u32 s{T}, s{T}, s{T1}\ns_add_u32 s{s}, s{T}, 0x{F:x}", s=s, F=F_P3)
    sflag.stride = FL
    return gemm_role(k, "g3", 32, 2, chunks_fn, OFF_O, O_L, O_SEG, kbase, "kt", wflag, 8, partial_epi(OFF_P3, P3_L, P3_SEG, 2), sflag)

def partial_epi(off, lstride, sstride, shift):
    def epi_fn(k, sEp):
        def init():
            fmt(k, """
            s_mul_i32 s{e}, s{LY}, 0x{ls:x}
            s_add_u32 s{e}, s{e}, 0x{o:x}
            s_lshr_b32 s{T}, s{R}, 2
            s_lshl_b32 s{T}, s{T}, 16
            s_add_u32 s{e}, s{e}, s{T}
            s_and_b32 s{T}, s{R}, 3
            s_lshl_b32 s{T}, s{T}, 14
            s_add_u32 s{e}, s{e}, s{T}
            s_lshl_b32 s{T}, s{W}, 12
            s_add_u32 s{e}, s{e}, s{T}
            """, e=sEp, ls=lstride, o=off)
        def epi(vAcc):
            k("s_nop 7")
            for t in range(2):
                for tt in range(2):
                    a = vAcc + (t * 2 + tt) * 4
                    k("buffer_store_dwordx4 %s, v2, %s, s%d offen offset:%d sc1" % (vr(a, 4), WSR, sEp, (t * 2 + tt) * 1024))
            k("s_add_u32 s%d, s%d, %d" % (sEp, sEp, sstride))
        epi.nstores = 4
        return init, epi
    return epi_fn

def g5_role(k):
    def chunks_fn(k):
        sCol = T + 6
        fmt(k, "s_and_b32 s{T}, s{R}, 3\ns_lshl_b32 s{T}, s{T}, 8\ns_lshl_b32 s{T1}, s{W}, 6\ns_add_u32 s{c}, s{T}, s{T1}\ns_lshr_b32 s{T}, s{R}, 2\ns_mul_i32 s{T}, s{T}, {x}\ns_add_u32 s{c}, s{c}, s{T}", c=sCol, x=896 * 1024)
        return [dict(ptr=P_WD, nbytes=1792 * 1024, stride=1024, scol=sCol, row0=64 * c, order="p",
                     dest={(t, ks2): chunks_fn.frag(t, 2 * c + ks2) for t in range(2) for ks2 in range(2)}) for c in range(14)]
    chunks_fn.frag = lambda t, ks: 256 + (t * 28 + ks) * 4
    def kbase(k, sIn): fmt(k, "s_lshr_b32 s{T}, s{R}, 2\ns_mul_i32 s{T}, s{T}, {x}\ns_add_u32 s{i}, s{i}, s{T}", i=sIn, x=28 * 2048)
    def wflag(k, s): fmt(k, "s_lshl_b32 s{T}, s{LY}, 14\ns_lshr_b32 s{T1}, s{R}, 2\ns_lshl_b32 s{T1}, s{T1}, 7\ns_add_u32 s{T}, s{T}, s{T1}\ns_add_u32 s{s}, s{T}, 0x{F:x}", s=s, F=F_H)
    wflag.stride = 2 * FL
    def sflag(k, s): fmt(k, "s_lshl_b32 s{T}, s{LY}, 13\ns_lshl_b32 s{T1}, s{R}, 2\ns_add_u32 s{T}, s{T}, s{T1}\ns_add_u32 s{s}, s{T}, 0x{F:x}", s=s, F=F_P5)
    sflag.stride = FL
    return gemm_role(k, "g5", 28, 2, chunks_fn, OFF_H, H_L, H_SEG, kbase, "kt", wflag, 7, partial_epi(OFF_P5, P5_L, P5_SEG, 1), sflag)

def g4_role(k):
    def chunks_fn(k):
        sCol = T + 6
        fmt(k, "s_lshl_b32 s{T}, s{R}, 8\ns_lshl_b32 s{T1}, s{W}, 6\ns_add_u32 s{c}, s{T}, s{T1}", c=sCol)
        L = []
        for m, ptr in enumerate((P_WG, P_WU)):
            L += [dict(ptr=ptr, nbytes=512 * 3584, stride=3584, scol=sCol, row0=64 * c, order="n",
                       dest={(t, ks2): chunks_fn.frag(2 * m + t, 2 * c + ks2) for t in range(2) for ks2 in range(2)}) for c in range(8)]
        return L
    chunks_fn.frag = lambda t, ks: 256 + (t * 16 + ks) * 4
    def kbase(k, sIn): pass
    def wflag(k, s): fmt(k, "s_lshl_b32 s{T}, s{LY}, 13\ns_add_u32 s{s}, s{T}, 0x{F:x}", s=s, F=F_XF)
    wflag.stride = FL
    def sflag(k, s): fmt(k, "s_lshl_b32 s{T}, s{LY}, 14\ns_cmp_ge_u32 s{R}, 7\ns_cselect_b32 s{T1}, 100, 0\ns_add_u32 s{T}, s{T}, s{T1}\ns_lshl_b32 s{T1}, s{R}, 2\ns_add_u32 s{T}, s{T}, s{T1}\ns_add_u32 s{s}, s{T}, 0x{F:x}", s=s, F=F_H)
    sflag.stride = 2 * FL
    def epi_fn(k, sEp):
        def init():
            fmt(k, """
            s_mul_i32 s{e}, s{LY}, 0x{ls:x}
            s_add_u32 s{e}, s{e}, 0x{o:x}
            s_lshl_b32 s{T}, s{R}, 2
            s_add_u32 s{T}, s{T}, s{W}
            s_lshl_b32 s{T}, s{T}, 11
            s_add_u32 s{e}, s{e}, s{T}
            """, e=sEp, ls=H_L, o=OFF_H)
        def epi(vAcc):
            k("s_nop 7")
            for tt in range(2):
                g0, g1, u0, u1 = [vAcc + (t * 2 + tt) * 4 for t in range(4)]
                for r in range(4):
                    k("v_mul_f32 v%d, v%d, v%d" % (g0 + r, g0 + r, u0 + r))
                    k("v_mul_f32 v%d, v%d, v%d" % (g1 + r, g1 + r, u1 + r))
                k("v_cvt_pk_bf16_f32 v%d, v%d, v%d" % (u0 + 0, g0, g0 + 1))
                k("v_cvt_pk_bf16_f32 v%d, v%d, v%d" % (u0 + 1, g0 + 2, g0 + 3))
                k("v_cvt_pk_bf16_f32 v%d, v%d, v%d" % (u0 + 2, g1, g1 + 1))
                k("v_cvt_pk_bf16_f32 v%d, v%d, v%d" % (u0 + 3, g1 + 2, g1 + 3))
                k("buffer_store_dwordx4 %s, v2, %s, s%d offen offset:%d sc1" % (vr(u0, 4), WSR, sEp, tt * 1024))
            k("s_add_u32 s%d, s%d, %d" % (sEp, sEp, H_SEG))
        epi.nstores = 2
        return init, epi
    return gemm_role(k, "g4", 16, 4, chunks_fn, OFF_XF, XN_L, 32768, kbase, "tk", wflag, 4, epi_fn, sflag)

def f_loads(k, NK, sP, srdRes, sRes, vbase, native=False):
    vP = vbase; vR = vbase + 64
    for kq in range(NK):
        if kq: k("s_add_u32 s%d, s%d, %d" % (T + 4, sP, kq * 65536))
        for g in range(4):
            k("buffer_load_dwordx4 %s, v1, %s, s%d offen offset:%d sc1" % (vr(vP + (kq * 4 + g) * 4, 4), WSR, (T + 4) if kq else sP, g * 256))
    if native:
        k("buffer_load_dwordx4 %s, v8, %s, s%d offen sc1" % (vr(vR, 4), srdRes, sRes))
        k("buffer_load_dwordx4 %s, v9, %s, s%d offen sc1" % (vr(vR + 4, 4), srdRes, sRes))
    else:
        k("buffer_load_dwordx4 %s, v2, %s, s%d offen sc1" % (vr(vR, 4), srdRes, sRes))
        k("buffer_load_dwordx4 %s, v2, %s, s%d offen offset:16 sc1" % (vr(vR + 4, 4), srdRes, sRes))

def f_math(k, NK, outs, vbase, vw, pre_stats=None, post_stats=None):
    vP = vbase; vR = vbase + 64
    vX = vw; t0, t1, t2, t3 = vw + 16, vw + 17, vw + 18, vw + 19
    k("s_mov_b32 s%d, 0xffff0000" % (T + 4))
    for i in range(8):
        k("v_lshlrev_b32 v%d, 16, v%d" % (vX + 2 * i, vR + i))
        k("v_and_b32 v%d, s%d, v%d" % (vX + 2 * i + 1, T + 4, vR + i))
    for kq in range(NK):
        for c in range(16):
            k("v_add_f32 v%d, v%d, v%d" % (vX + c, vX + c, vP + kq * 16 + c))
    if NK:
        for i in range(8): k("v_cvt_pk_bf16_f32 v%d, v%d, v%d" % (vR + i, vX + 2 * i, vX + 2 * i + 1))
    if outs.get("x"):
        srd, so, fl = outs["x"]
        if outs.get("xnative"):
            k("buffer_store_dwordx4 %s, v8, %s, s%d offen %s" % (vr(vR, 4), srd, so, fl))
            k("buffer_store_dwordx4 %s, v9, %s, s%d offen %s" % (vr(vR + 4, 4), srd, so, fl))
        else:
            k("buffer_store_dwordx4 %s, v2, %s, s%d offen %s" % (vr(vR, 4), srd, so, fl))
            k("buffer_store_dwordx4 %s, v2, %s, s%d offen offset:16 %s" % (vr(vR + 4, 4), srd, so, fl))
    if outs.get("xn") is None:
        if post_stats: post_stats()
        return
    if NK:
        for i in range(8):
            k("v_lshlrev_b32 v%d, 16, v%d" % (vX + 2 * i, vR + i))
            k("v_and_b32 v%d, s%d, v%d" % (vX + 2 * i + 1, T + 4, vR + i))
    def reduce_all(v, slot, pre=None):
        k("s_nop 1")
        k("v_add_f32_dpp v%d, v%d, v%d row_ror:8 row_mask:0xf bank_mask:0xf" % (v, v, v))
        k("v_mov_b32 v%d, v%d\ns_nop 1\nv_permlane16_swap_b32 v%d, v%d\nv_add_f32 v%d, v%d, v%d" % (t1, v, v, t1, v, v, t1))
        k("v_mov_b32 v%d, v%d\ns_nop 1\nv_permlane32_swap_b32 v%d, v%d\nv_add_f32 v%d, v%d, v%d" % (t1, v, v, t1, v, v, t1))
        k("ds_write_b32 v4, v%d offset:%d" % (v, slot * 1024))
        if pre: pre()
        k("s_waitcnt lgkmcnt(0)\ns_barrier")
        k("ds_read_b32 v%d, v5 offset:%d" % (v, slot * 1024))
        k("ds_read_b32 v%d, v5 offset:%d" % (t1, slot * 1024 + 256))
        k("ds_read_b32 v%d, v5 offset:%d" % (t2, slot * 1024 + 512))
        k("ds_read_b32 v%d, v5 offset:%d" % (t3, slot * 1024 + 768))
        k("s_waitcnt lgkmcnt(0)")
        k("v_add_f32 v%d, v%d, v%d\nv_add_f32 v%d, v%d, v%d\nv_add_f32 v%d, v%d, v%d" % (v, v, t1, t2, t2, t3, v, v, t2))
    k("v_add_f32 v%d, v%d, v%d\nv_add_f32 v%d, v%d, v%d" % (t0, vX, vX + 1, t1, vX + 2, vX + 3))
    for c in range(4, 16, 2): k("v_add_f32 v%d, v%d, v%d\nv_add_f32 v%d, v%d, v%d" % (t0, t0, vX + c, t1, t1, vX + c + 1))
    k("v_add_f32 v%d, v%d, v%d" % (t0, t0, t1))
    reduce_all(t0, 0, pre_stats)
    if post_stats: post_stats()
    k("v_mul_f32 v%d, 0x%x, v%d" % (t0, f32(1.0 / 512), t0))
    for c in range(16): k("v_sub_f32 v%d, v%d, v%d" % (vX + c, vX + c, t0))
    k("v_mul_f32 v%d, v%d, v%d\nv_mul_f32 v%d, v%d, v%d" % (t0, vX, vX, t1, vX + 1, vX + 1))
    for c in range(2, 16, 2): k("v_fmac_f32 v%d, v%d, v%d\nv_fmac_f32 v%d, v%d, v%d" % (t0, vX + c, vX + c, t1, vX + c + 1, vX + c + 1))
    k("v_add_f32 v%d, v%d, v%d" % (t0, t0, t1))
    reduce_all(t0, 1)
    k("v_mov_b32 v%d, 0x%x" % (t1, f32(1e-5)))
    k("v_fmac_f32 v%d, 0x%x, v%d" % (t1, f32(1.0 / 512), t0))
    k("v_rsq_f32 v%d, v%d\ns_nop 0" % (t0, t1))
    for c in range(16): k("v_mul_f32 v%d, v%d, v%d" % (vX + c, vX + c, t0))
    for i in range(8): k("v_cvt_pk_bf16_f32 v%d, v%d, v%d" % (vR + i, vX + 2 * i, vX + 2 * i + 1))
    so = outs["xn"]
    k("buffer_store_dwordx4 %s, v3, %s, s%d offen sc1" % (vr(vR, 4), WSR, so))
    k("buffer_store_dwordx4 %s, v3, %s, s%d offen offset:256 sc1" % (vr(vR + 4, 4), WSR, so))

def f_compute(k, NK, sP, srdRes, sRes, outs, vbase=8):
    f_loads(k, NK, sP, srdRes, sRes, vbase)
    k("s_waitcnt vmcnt(0)")
    f_math(k, NK, outs, vbase, vbase + 72)

def f_lane_setup(k):
    fmt(k, """
    v_and_b32 v6, 7, v0
    v_lshrrev_b32 v7, 3, v0
    v_lshlrev_b32 v5, 4, v6
    v_lshl_add_u32 v1, v7, 11, v5
    v_lshlrev_b32 v2, 10, v6
    v_lshl_add_u32 v2, v7, 5, v2
    v_lshrrev_b32 v3, 1, v7
    v_lshlrev_b32 v3, 10, v3
    v_and_b32 v4, 1, v7
    v_lshl_add_u32 v3, v4, 9, v3
    v_add_u32 v3, v3, v5
    v_and_b32 v4, 63, v0
    v_lshlrev_b32 v4, 2, v4
    s_lshl_b32 s{T}, s{W}, 8
    v_add_u32 v4, s{T}, v4
    v_lshlrev_b32 v5, 2, v6
    v_lshlrev_b32 v8, 4, v0
    v_add_u32 v9, 0x1000, v8
    """)

def f_role(k, kind, nF):
    name = "f%d" % kind
    gsync(k)
    f_lane_setup(k)
    sN, sP, sRes, sWf = 66, 67, 68, 69
    sXo, sXn, sSf = 70, 71, 72
    sNXo, sNXn, sNSf = 73, 74, 75
    sSfp, sFv, sIss, sExF = 76, 77, 78, 80
    off, ls, ss, NK, wF, wT = (OFF_P3, P3_L, P3_SEG, 4, F_P3, 16) if kind == 3 else (OFF_P5, P5_L, P5_SEG, 2, F_P5, 8)
    build_srd(k, S_SRD2, P_X, S * D * 2)
    build_srd(k, S_SRD3, P_OUT, S * D * 2)
    SR2 = "s[%d:%d]" % (S_SRD2, S_SRD2 + 3); SR3 = "s[%d:%d]" % (S_SRD3, S_SRD3 + 3)
    L0 = k.uid("L_f0"); L1 = k.uid("L_f1")
    k("s_cmp_eq_u32 s%d, 0\ns_cbranch_scc0 %s" % (S_L, L1))
    for ly, lab in ((0, L0), (1, L1)):
        k.label(lab)
        if kind == 3:
            res = (SR2, 0) if ly == 0 else (WSR, OFF_X2)
            xo = (WSR, OFF_X1 + ly * X_L, "sc1")
            rnat = (ly == 1); onat = True
            xn = OFF_XF + ly * XN_L; sig = F_XF + ly * 64 * FL
        else:
            res = (WSR, OFF_X1 + ly * X_L)
            xo = (WSR, OFF_X2, "sc1") if ly == 0 else (SR3, 0, "")
            rnat = True; onat = (ly == 0)
            xn = (OFF_XN + XN_L) if ly == 0 else None; sig = (F_XN + 64 * FL) if ly == 0 else None
        def bind_next():
            fmt(k, """
            s_lshr_b32 s{T}, s{n}, 2
            s_and_b32 s{T1}, s{n}, 3
            s_mul_i32 s{T2}, s{T}, 0x{ss:x}
            s_lshr_b32 s{T3}, s{T1}, 1
            s_lshl_b32 s{T4}, s{T3}, 10
            s_add_u32 s{T2}, s{T2}, s{T4}
            s_and_b32 s{T4}, s{T1}, 1
            s_lshl_b32 s{T4}, s{T4}, 7
            s_add_u32 s{T2}, s{T2}, s{T4}
            s_add_u32 s{p}, s{T2}, 0x{pb:x}
            s_lshl_b32 s{T2}, s{n}, 13
            s_add_u32 s{r}, s{T2}, 0x{rb:x}
            s_add_u32 s{xo}, s{T2}, 0x{xb:x}
            s_lshl_b32 s{T2}, s{T}, 7
            s_add_u32 s{wf}, s{T2}, 0x{wb:x}
            """, n=sN, ss=ss, T4=T + 4, p=sP, pb=off + ly * ls, r=sRes, rb=res[1], xo=sNXo, xb=xo[1], wf=sWf, wb=wF + ly * 64 * FL)
            if xn is not None:
                fmt(k, """
                s_lshl_b32 s{T3}, s{T3}, 14
                s_add_u32 s{T3}, s{T3}, s{T4}
                s_lshl_b32 s{T4}, s{T}, 15
                s_add_u32 s{T3}, s{T3}, s{T4}
                s_add_u32 s{xn}, s{T3}, 0x{nb:x}
                s_lshl_b32 s{T1}, s{T1}, 2
                s_add_u32 s{T1}, s{T1}, s{T2}
                s_add_u32 s{sf}, s{T1}, 0x{sb:x}
                """, T4=T + 4, xn=sNXn, nb=xn, sf=sNSf, sb=sig)
        def take_next():
            k("s_mov_b32 s%d, s%d" % (sXo, sNXo))
            if xn is not None: k("s_mov_b32 s%d, s%d\ns_mov_b32 s%d, s%d" % (sXn, sNXn, sSf, sNSf))
            k("s_add_u32 s%d, s%d, %d" % (sN, sN, nF))
            bind_next()
        k("s_mov_b32 s%d, s%d\ns_mov_b32 s%d, 0x%x" % (sN, S_RANK, sSfp, F_DUMMY))
        k("s_cmp_eq_u32 s%d, 0\ns_cselect_b32 s%d, 1, 0\ns_mov_b32 s%d, 0" % (S_WAVE, sExF, sExF + 1))
        k("s_mov_b32 s%d, 0" % S_STEP)
        SETS = (16, 96); vW = 176
        vFa, vFb, vSg = 6, 7, 10
        DEC = 0x1000
        def signal(soff): signal_set(k, soff, sExF, vSg, vSg + 1)
        bind_next()
        wait_n(k, sWf, wT, vFa, vFb)
        f_loads(k, NK, sP, res[0], sRes, SETS[0], rnat)
        Ll = "L_%s_l%d" % (name, ly)
        k.label(Ll)
        for par in range(2):
            cur, nxt = SETS[par], SETS[1 - par]
            if DEVM(): k("s_lshr_b32 s%d, s%d, 2" % (S_STEP, sN))
            steplog(k, vFa, vFb, 0xF100000)
            take_next()
            k("s_waitcnt vmcnt(0)")
            poll_issue_n(k, sWf, wT, vFa, vFb)
            if xn is not None:
                k("s_barrier")
                signal(sSfp)
                k("s_mov_b32 s%d, 0x%x" % (sSfp, F_DUMMY))
            def pre():
                Lw = k.uid("L_fw")
                k("s_waitcnt vmcnt(3)\nv_mov_b32 v%d, 0x%x" % (vSg, DEC))
                poll_eval_n(k, wT, vFb, sFv)
                k("v_mov_b32 v%d, s%d" % (vFb, sFv))
                k("s_cmp_eq_u32 s%d, 0\ns_cbranch_scc0 %s" % (S_WAVE, Lw))
                k("s_mov_b64 exec, 1\nds_write_b32 v%d, v%d\ns_mov_b64 exec, -1" % (vSg, vFb))
                k.label(Lw)
            def post():
                if xn is not None:
                    k("ds_read_b32 v%d, v%d\ns_waitcnt lgkmcnt(0)" % (vFb, vSg))
                    k("v_readfirstlane_b32 s%d, v%d" % (sFv, vFb))
                else:
                    k("s_waitcnt vmcnt(2)")
                    poll_eval_n(k, wT, vFb, sFv)
                k("s_mov_b32 s%d, 0" % sIss)
                Ln = k.uid("L_fn")
                k("s_cmp_lt_u32 s%d, 256\ns_cbranch_scc0 %s" % (sN, Ln))
                k("s_cmp_eq_u32 s%d, 1\ns_cbranch_scc0 %s" % (sFv, Ln))
                f_loads(k, NK, sP, res[0], sRes, nxt, rnat)
                k("s_mov_b32 s%d, 1" % sIss)
                k.label(Ln)
            f_math(k, NK, dict(x=(xo[0], sXo, xo[2]), xnative=onat, xn=(sXn if xn is not None else None)), cur, vW, pre_stats=pre, post_stats=post)
            if xn is not None: k("s_mov_b32 s%d, s%d" % (sSfp, sSf))
            Lni = k.uid("L_fni"); Lgo = k.uid("L_fgo")
            k("s_cmp_eq_u32 s%d, 1\ns_cbranch_scc1 %s" % (sIss, Lgo))
            k("s_waitcnt vmcnt(0)")
            if xn is not None:
                k("s_barrier")
                signal(sSfp)
                k("s_mov_b32 s%d, 0x%x" % (sSfp, F_DUMMY))
            k("s_cmp_ge_u32 s%d, 256\ns_cbranch_scc1 %s_fin" % (sN, Ll))
            wait_n(k, sWf, wT, vFa, vFb)
            f_loads(k, NK, sP, res[0], sRes, nxt, rnat)
            k.label(Lgo)
            if par == 1: k("s_branch %s" % Ll)
        k.label(Ll + "_fin")
        k("s_waitcnt vmcnt(0)")
        gmark(k, 3); gdump(k)
        k("s_branch L_end")

S_SYNC = 99
NWG = 256
def gsync(k):
    from chain import S_FAST
    Ld = k.uid("L_gs_done"); Lw = k.uid("L_gs_w"); Lp = k.uid("L_gs_p"); Lq = k.uid("L_gs_q")
    k("s_cmp_eq_u32 s%d, 1\ns_cbranch_scc1 %s" % (S_SYNC, Ld))
    k("s_cmp_eq_u32 s%d, 0\ns_cbranch_scc0 %s" % (S_WAVE, Lw))
    k("v_mov_b32 v100, 32")
    k.label(Lp)
    fmt(k, """
    s_mov_b64 exec, 1
    global_load_dword v101, v100, s[{d}:{d1}] sc1
    s_mov_b64 exec, -1
    s_waitcnt vmcnt(0)
    v_readfirstlane_b32 s{T}, v101
    s_sub_u32 s{spin}, s{spin}, 1
    s_cbranch_scc1 L_abort
    s_cmp_ge_u32 s{T}, {n}
    s_cbranch_scc1 {q}
    s_sleep 4
    s_branch {p}
    """, d=P_DBG, d1=P_DBG + 1, spin=S_SPIN, n=NWG, q=Lq, p=Lp)
    k.label(Lq)
    fmt(k, """
    v_and_b32 v102, 63, v0
    v_lshlrev_b32 v102, 2, v102
    s_mov_b64 exec, 0xff
    global_load_dword v101, v102, s[{d}:{d1}] sc1
    s_waitcnt vmcnt(0)
    ds_write_b32 v102, v101
    s_mov_b64 exec, -1
    s_waitcnt lgkmcnt(0)
    """, d=P_DBG, d1=P_DBG + 1)
    k.label(Lw)
    k("s_barrier\nv_mov_b32 v100, 0\nds_read_b128 v[104:107], v100\nds_read_b128 v[108:111], v100 offset:16\ns_waitcnt lgkmcnt(0)")
    k("s_mov_b32 s%d, 1\ns_mov_b32 s%d, 0" % (S_FAST, T + 1))
    for x in range(8):
        k("v_readfirstlane_b32 s%d, v%d" % (T, 104 + x))
        k("s_cmp_eq_u32 s%d, 32\ns_cselect_b32 s%d, s%d, 0" % (T, S_FAST, S_FAST))
        k("s_cmp_gt_u32 s%d, %d\ns_cselect_b32 s%d, s%d, 0\ns_add_u32 s%d, s%d, s%d" % (S_XCC, x, T, T, T + 1, T + 1, T))
    k("s_barrier")
    k("s_mov_b32 s%d, 1" % S_SYNC)
    k("s_cmp_eq_u32 s%d, 1\ns_cbranch_scc1 %s" % (S_FAST, Ld))
    k("s_add_u32 s%d, s%d, s98\ns_branch L_dispatch" % (S_RANK, T + 1))
    k.label(Ld)

def lane_consts_attn(k, vL, vL16, vW16, vTrK, vVm, vMk, vH16, vWH, t0, t1, t2, t3, kmb):
    fmt(k, """
    s_lshl_b32 s{T}, s{W}, 10
    v_add_u32 v{w16}, s{T}, v{l16}
    v_lshrrev_b32 v{t0}, 4, v{L}
    v_bfe_u32 v{t1}, v{L}, 2, 2
    v_lshl_add_u32 v{t1}, v{t0}, 2, v{t1}
    v_lshlrev_b32 v{t2}, 5, v{t1}
    v_and_b32 v{t3}, 3, v{L}
    v_lshl_add_u32 v{t2}, v{t3}, 3, v{t2}
    v_lshrrev_b32 v{t1}, 1, v{t0}
    v_lshlrev_b32 v{t1}, 7, v{t1}
    v_xor_b32 v{trk}, v{t2}, v{t1}
    v_add_u32 v{trk}, 0x{kmb:x}, v{trk}
    v_add_u32 v{h16}, 0x10000, v{l16}
    v_add_u32 v{wh}, 0x10000, v{w16}
    v_and_b32 v{t1}, 15, v{L}
    v_lshlrev_b32 v{t2}, 5, v{t1}
    v_lshl_add_u32 v{t2}, v{t0}, 3, v{t2}
    v_bfe_u32 v{t3}, v{L}, 3, 1
    v_lshlrev_b32 v{t3}, 7, v{t3}
    v_xor_b32 v{t2}, v{t2}, v{t3}
    s_lshr_b32 s{T}, s{W}, 1
    s_lshl_b32 s{T}, s{T}, 11
    s_add_u32 s{T}, s{T}, 0x{kmb4:x}
    v_add_u32 v{vm}, s{T}, v{t2}
    v_lshlrev_b32 v{t0}, 2, v{t0}
    s_and_b32 s{T1}, s{W}, 1
    """, L=vL, l16=vL16, w16=vW16, trk=vTrK, vm=vVm, t0=t0, t1=t1, t2=t2, t3=t3, h16=vH16, wh=vWH, kmb=kmb, kmb4=kmb + 4)
    for r in range(4):
        fmt(k, """
        v_add_u32 v{t2}, {r}, v{t0}
        v_cmp_gt_u32 vcc, v{t2}, v{t1}
        v_mov_b32 v{t3}, 0
        v_mov_b32 v{t2}, 0xff800000
        v_cndmask_b32 v{t3}, v{t3}, v{t2}, vcc
        s_cmp_eq_u32 s{T1}, 0
        s_cselect_b64 vcc, -1, 0
        v_mov_b32 v{a}, 0
        s_nop 1
        v_cndmask_b32 v{a}, v{a}, v{t3}, vcc
        v_cndmask_b32 v{b}, v{t3}, v{t2}, vcc
        """, r=r, t0=t0, t1=t1, t2=t2, t3=t3, a=vMk + r, b=vMk + 4 + r)

def dma_lin(k, vW16, soff, lds_s, lds_imm, n):
    for j in range(n):
        k("s_add_u32 s%d, s%d, %d\ns_mov_b32 m0, s%d" % (T, lds_s, lds_imm + j * 4096, T))
        k("s_add_u32 s%d, s%d, %d" % (T + 1, soff, j * 4096))
        k("buffer_load_dwordx4 v%d, %s, s%d offen sc1 lds" % (vW16, WSR, T + 1))

KV_DUMMY = 0xF800000
def kv_epi_list(vAcc, vG, vW16, sOut, sW10):
    L = []
    for tt in range(2):
        a0 = vAcc + (0 * 2 + tt) * 4; a1 = vAcc + (1 * 2 + tt) * 4; g = vG + 4 * tt
        L += ["v_cvt_pk_bf16_f32 v%d, v%d, v%d" % (g, a0, a0 + 1), "v_cvt_pk_bf16_f32 v%d, v%d, v%d" % (g + 1, a0 + 2, a0 + 3),
              "v_cvt_pk_bf16_f32 v%d, v%d, v%d" % (g + 2, a1, a1 + 1), "v_cvt_pk_bf16_f32 v%d, v%d, v%d" % (g + 3, a1 + 2, a1 + 3),
              "s_add_u32 s%d, s%d, %d" % (T, sOut, tt * 4096),
              "buffer_store_dwordx4 %s, v%d, %s, s%d offen sc1" % (vr(g, 4), vW16, WSR, T)]
    for t in range(2):
        a0 = vAcc + 16 + (t * 2 + 0) * 4; a1 = vAcc + 16 + (t * 2 + 1) * 4; g = vG + 8 + 4 * t
        L += ["v_cvt_pk_bf16_f32 v%d, v%d, v%d" % (g, a0, a0 + 1), "v_cvt_pk_bf16_f32 v%d, v%d, v%d" % (g + 1, a0 + 2, a0 + 3),
              "v_cvt_pk_bf16_f32 v%d, v%d, v%d" % (g + 2, a1, a1 + 1), "v_cvt_pk_bf16_f32 v%d, v%d, v%d" % (g + 3, a1 + 2, a1 + 3),
              "s_add_u32 s%d, s%d, s%d" % (T, sW10, sOut), "s_add_u32 s%d, s%d, %d" % (T, T, 8192 + t * 1024),
              "buffer_store_dwordx4 %s, v%d, %s, s%d offen sc1" % (vr(g, 4), vW16, WSR, T)]
    return L
def kv_body(k, frag, vX, vAccCur, vAccPrev, vG, vXr, vW16, sW10, sOutPrev, sXnext, sBufNext, mid_fn):
    seq = [(tt, ks) for tt in range(2) for ks in range(16)]
    def rd(i):
        tt, ks = seq[i]
        return "ds_read_b128 %s, v%d offset:%d" % (vr(vX + 4 * (i % 3), 4), vXr, (tt * 16 + ks) * 1024)
    epi = kv_epi_list(vAccPrev, vG, vW16, sOutPrev, sW10)
    dma = []
    for j in range(8):
        dma.append(["s_add_u32 s%d, s%d, %d" % (T + 2, sBufNext, j * 4096), "s_mov_b32 m0, s%d" % (T + 2), "s_add_u32 s%d, s%d, %d" % (T + 3, sXnext, j * 4096),
                    "buffer_load_dwordx4 v%d, %s, s%d offen sc1 lds" % (vW16, WSR, T + 3)])
    k(rd(0)); k(rd(1))
    for i, (tt, ks) in enumerate(seq):
        k("s_waitcnt lgkmcnt(%d)" % (1 if i + 1 < len(seq) else 0))
        x = vr(vX + 4 * (i % 3), 4)
        mf = []
        for t in range(2):
            a = vAccCur + (t * 2 + tt) * 4
            mf.append("v_mfma_f32_16x16x32_bf16 %s, %s, %s, %s" % (vr(a, 4), ur(frag(0, t, ks), 4), x, "0" if ks == 0 else vr(a, 4)))
        for t in range(2):
            a = vAccCur + 16 + (t * 2 + tt) * 4
            mf.append("v_mfma_f32_16x16x32_bf16 %s, %s, %s, %s" % (vr(a, 4), x, ur(frag(1, t, ks), 4), "0" if ks == 0 else vr(a, 4)))
        fill = [rd(i + 2)] if i + 2 < len(seq) else []
        if 2 <= i < 10:
            n = 4 if i < 9 else len(epi)
            fill += [epi.pop(0) for _ in range(min(n, len(epi)))]
        if 10 <= i < 18: fill += dma.pop(0)
        interleave(k, mf, fill, per=2, start=0)
        if i == 25:
            k("s_waitcnt vmcnt(8)\ns_barrier")
            mid_fn()
    assert not epi and not dma
def kv_flush(k, vAcc, vG, vW16, sOut, sW10):
    k("s_nop 7")
    for x in kv_epi_list(vAcc, vG, vW16, sOut, sW10): k(x)

NHELP = 32
def kv_role(k, nseg=64):
    vL = 1; vL16 = 2; vW16 = 3
    k("v_and_b32 v%d, 63, v0\nv_lshlrev_b32 v%d, 4, v%d" % (vL, vL16, vL))
    sRing = T + 5; sCol = T + 6
    fmt(k, "s_mul_i32 s{r}, s{W}, 40960\ns_lshl_b32 s{T}, s{R}, 8\ns_lshl_b32 s{T1}, s{W}, 6\ns_add_u32 s{c}, s{T}, s{T1}", r=sRing, c=sCol)
    frag = lambda m, t, ks: 256 + ((m * 2 + t) * 16 + ks) * 4
    chunks = []
    for m, ptr in ((0, P_WK), (1, P_WV)):
        chunks += [dict(ptr=ptr, nbytes=512 * 8192, stride=8192, scol=sCol, row0=64 * c, order="n",
                        dest={(t, ks2): frag(m, t, 2 * c + ks2) for t in range(2) for ks2 in range(2)}) for c in range(8)]
    load_weights(k, chunks, vL, 8, sRing)
    k("s_barrier")
    gsync(k)
    gmark(k, 2)
    sX = (66, 67); sKV = (68, 69); sFK = (70, 71); sN = (72, 73)
    sFX1, sW10, sBuf, sDec, sExF = 74, 75, 76, 77, 78
    sOutP, sCFP, sOutC, sCFC, sOutN, sCFN, sXn, sNL, sBn, sSt = 80, 81, 82, 83, 84, 85, 86, 87, 60, 61
    fmt(k, """
    s_lshl_b32 s{w10}, s{W}, 10
    v_add_u32 v{w16}, s{w10}, v{l16}
    s_mov_b32 s{x0}, 0x{ox:x}
    s_mov_b32 s{x1}, 0x{ox1:x}
    s_lshl_b32 s{T}, s{R}, 20
    s_add_u32 s{k0}, s{T}, 0x{okv:x}
    s_add_u32 s{k1}, s{k0}, 0x{kvl:x}
    s_lshl_b32 s{T}, s{R}, 7
    s_add_u32 s{f0}, s{T}, 0x{FKV:x}
    s_add_u32 s{f1}, s{f0}, 0x40000
    s_mov_b32 s{n0}, 0
    s_mov_b32 s{n1}, 0
    s_mov_b32 s{fx}, 0x{FX1:x}
    s_mov_b32 s{op}, 0x{KD:x}
    s_mov_b32 s{cp}, 0x{FD:x}
    s_mov_b32 s{dec}, 0
    s_cmp_eq_u32 s{W}, 0
    s_cselect_b32 s{ex}, 1, 0
    s_mov_b32 s{ex1}, 0
    """, w10=sW10, w16=vW16, l16=vL16, x0=sX[0], x1=sX[1], ox=OFF_XN, ox1=OFF_XN + XN_L, k0=sKV[0], k1=sKV[1], okv=OFF_KV, kvl=KV_L,
       f0=sFK[0], f1=sFK[1], FKV=F_KV, n0=sN[0], n1=sN[1], fx=sFX1, FX1=F_XN + 64 * FL, op=sOutP, KD=KV_DUMMY, cp=sCFP, FD=F_DUMMY, dec=sDec, ex=sExF, ex1=sExF + 1)
    DEC = 0x10000
    vFa, vFb, vD, vXr, vS1, vS2 = 4, 5, 6, 7, 8, 9
    vX = 12; ACC = (32, 64); vG = 96
    def pick(ly):
        k("s_mov_b32 s%d, s%d\ns_mov_b32 s%d, s%d\ns_mov_b32 s%d, s%d\ns_mov_b32 s%d, %d" % (sXn, sX[ly], sOutN, sKV[ly], sCFN, sFK[ly], sNL, ly))
        if ly == 1:
            k("s_add_u32 s%d, s%d, 32768\ns_add_u32 s%d, s%d, 1\ns_add_u32 s%d, s%d, %d" % (sX[1], sX[1], sN[1], sN[1], sFX1, sFX1, FL))
            k("s_add_u32 s%d, s%d, 16384\ns_add_u32 s%d, s%d, 4096" % (sKV[1], sKV[1], sFK[1], sFK[1]))
        else:
            k("s_cmp_lt_u32 s%d, %d\ns_cselect_b32 s%d, 2, 1" % (sN[0], 2 * NHELP, sSt))
            k("s_add_u32 s%d, s%d, s%d\ns_lshl_b32 s%d, s%d, 15\ns_add_u32 s%d, s%d, s%d" % (sN[0], sN[0], sSt, T, sSt, sX[0], sX[0], T))
            k("s_lshl_b32 s%d, s%d, 14\ns_add_u32 s%d, s%d, s%d\ns_lshl_b32 s%d, s%d, 12\ns_add_u32 s%d, s%d, s%d" % (T, sSt, sKV[0], sKV[0], T, T, sSt, sFK[0], sFK[0], T))
    def signal_prev():
        k("v_mov_b32 v%d, s%d\nv_mov_b32 v%d, 4\ns_mov_b64 exec, s[%d:%d]" % (vS1, sCFP, vS2, sExF, sExF + 1))
        k("buffer_store_dword v%d, v%d, %s, 0 offen sc1\ns_mov_b64 exec, -1" % (vS2, vS1, WSR))
    def share_poll():
        L = k.uid("L_sh")
        poll_eval_n(k, 4, vFb, sDec)
        k("v_mov_b32 v%d, s%d\nv_mov_b32 v%d, 0x%x" % (vFb, sDec, vD, DEC))
        k("s_cmp_eq_u32 s%d, 0\ns_cbranch_scc0 %s" % (S_WAVE, L))
        k("s_mov_b64 exec, 1\nds_write_b32 v%d, v%d\ns_mov_b64 exec, -1\ns_waitcnt lgkmcnt(0)" % (vD, vFb))
        k.label(L)
        k("s_barrier\nds_read_b32 v%d, v%d\ns_waitcnt lgkmcnt(0)\nv_readfirstlane_b32 s%d, v%d" % (vS1, vD, sDec, vS1))
    def load_current():
        k("s_add_u32 s%d, s%d, s%d" % (T + 2, sBuf, sW10))
        dma_lin(k, vW16, sXn, T + 2, 0, 8)
        k("s_mov_b32 s%d, s%d\ns_mov_b32 s%d, s%d" % (sOutC, sOutN, sCFC, sCFN))
        k("s_waitcnt vmcnt(0)\ns_barrier")
    k("s_mov_b32 s%d, 0" % sBuf)
    pick(0)
    load_current()
    LT = ["L_kv_top0", "L_kv_top1"]
    for par in range(2):
        k.label(LT[par])
        if DEVM():
            k("s_mov_b32 s%d, 0" % S_STEP) if False else None
        L0 = k.uid("L_n0"); Ln = k.uid("L_nn"); Lz = k.uid("L_nz")
        k("s_cmp_lt_u32 s%d, %d\ns_cbranch_scc0 %s" % (sN[1], nseg, L0))
        k("s_cmp_eq_u32 s%d, 1\ns_cbranch_scc0 %s" % (sDec, L0))
        pick(1)
        k("s_branch %s" % Ln)
        k.label(L0)
        k("s_cmp_lt_u32 s%d, %d\ns_cbranch_scc0 %s" % (sN[0], nseg, Lz))
        pick(0)
        k("s_branch %s" % Ln)
        k.label(Lz)
        k("s_mov_b32 s%d, 2\ns_mov_b32 s%d, 0x%x" % (sNL, sXn, OFF_XN))
        k.label(Ln)
        k("v_add_u32 v%d, s%d, v%d" % (vXr, sBuf, vL16))
        k("s_xor_b32 s%d, s%d, 0x8000\ns_add_u32 s%d, s%d, s%d" % (sBn, sBuf, sBn, sBn, sW10))
        def mid():
            poll_issue_n(k, sFX1, 4, vFa, vFb)
            signal_prev()
        kv_body(k, frag, vX, ACC[par], ACC[1 - par], vG, vXr, vW16, sW10, sOutP, sXn, sBn, mid)
        k("s_waitcnt vmcnt(1)")
        share_poll()
        k("s_mov_b32 s%d, s%d\ns_mov_b32 s%d, s%d" % (sOutP, sOutC, sCFP, sCFC))
        k("s_mov_b32 s%d, s%d\ns_mov_b32 s%d, s%d" % (sOutC, sOutN, sCFC, sCFN))
        k("s_xor_b32 s%d, s%d, 0x8000" % (sBuf, sBuf))
        k("s_cmp_eq_u32 s%d, 2\ns_cbranch_scc0 %s" % (sNL, LT[1 - par]))
        kv_flush(k, ACC[par], vG, vW16, sOutP, sW10)
        k("s_waitcnt vmcnt(0)\ns_barrier")
        signal_prev()
        k("s_mov_b32 s%d, 0x%x\ns_mov_b32 s%d, 0x%x" % (sOutP, KV_DUMMY, sCFP, F_DUMMY))
        k("s_cmp_lt_u32 s%d, %d\ns_cbranch_scc0 L_kv_fin" % (sN[1], nseg))
        wait_n(k, sFX1, 4, vFa, vFb)
        pick(1)
        poll_issue_n(k, sFX1, 4, vFa, vFb)
        load_current()
        share_poll()
        k("s_branch %s" % LT[1 - par])
    k.label("L_kv_fin")
    k("s_waitcnt vmcnt(0)")
    gmark(k, 3); gdump(k)
    k("s_branch L_end")

def DEVM():
    import chain
    return chain.DEV["marks"]

def kv_helper(k, frag, vL16):
    vW16 = 3; vS1, vS2, vXr = 4, 5, 6
    vX = 12; ACC = (32, 64); vG = 96
    sX, sOutC, sOutP, sF, sPF, sW10, sBuf, sExF, sI, sBn = 66, 67, 68, 69, 70, 71, 72, 74, 76, 77
    fmt(k, """
    s_lshl_b32 s{w10}, s{W}, 10
    v_add_u32 v{w16}, s{w10}, v{l16}
    s_mov_b32 s{x}, 0x{ox:x}
    s_lshl_b32 s{T}, s{R}, 20
    s_add_u32 s{o}, s{T}, 0x{okv:x}
    s_mov_b32 s{op}, 0x{KD:x}
    s_lshl_b32 s{T}, s{R}, 7
    s_add_u32 s{f}, s{T}, 0x{FKV:x}
    s_mov_b32 s{pf}, 0x{FD:x}
    s_mov_b32 s{b}, 0
    s_mov_b32 s{i}, 0
    s_cmp_eq_u32 s{W}, 0
    s_cselect_b32 s{ex}, 1, 0
    s_mov_b32 s{ex1}, 0
    """, w10=sW10, w16=vW16, l16=vL16, x=sX, ox=OFF_XN + 32768, o=sOutC, op=sOutP, KD=KV_DUMMY, okv=OFF_KV + 16384, f=sF, FKV=F_KV + 4096, pf=sPF, FD=F_DUMMY,
       b=sBuf, i=sI, ex=sExF, ex1=sExF + 1)
    def signal_prev():
        k("v_mov_b32 v%d, s%d\nv_mov_b32 v%d, 4\ns_mov_b64 exec, s[%d:%d]" % (vS1, sPF, vS2, sExF, sExF + 1))
        k("buffer_store_dword v%d, v%d, %s, 0 offen sc1\ns_mov_b64 exec, -1" % (vS2, vS1, WSR))
    dma_lin(k, vW16, sX, sW10, 0, 8)
    k("s_waitcnt vmcnt(0)\ns_barrier")
    Lt = k.uid("L_help")
    k.label(Lt)
    assert NHELP % 2 == 0
    for par in range(2):
        k("s_add_u32 s%d, s%d, 65536\ns_xor_b32 s%d, s%d, 0x8000\ns_add_u32 s%d, s%d, s%d" % (sX, sX, sBn, sBuf, sBn, sBn, sW10))
        k("v_add_u32 v%d, s%d, v%d" % (vXr, sBuf, vL16))
        kv_body(k, frag, vX, ACC[par], ACC[1 - par], vG, vXr, vW16, sW10, sOutP, sX, sBn, signal_prev)
        k("s_waitcnt vmcnt(1)\ns_barrier")
        k("s_mov_b32 s%d, s%d\ns_mov_b32 s%d, s%d\ns_add_u32 s%d, s%d, 8192\ns_add_u32 s%d, s%d, 32768\ns_xor_b32 s%d, s%d, 0x8000" % (sOutP, sOutC, sPF, sF, sF, sF, sOutC, sOutC, sBuf, sBuf))
    k("s_add_u32 s%d, s%d, 2\ns_cmp_lt_u32 s%d, %d\ns_cbranch_scc1 %s" % (sI, sI, sI, NHELP, Lt))
    kv_flush(k, ACC[1], vG, vW16, sOutP, sW10)
    k("s_waitcnt vmcnt(0)\ns_barrier")
    signal_prev()
    k("s_waitcnt vmcnt(0)\ns_barrier")

def qa_role(k, nseg=64):
    vL = 1; vL16 = 2
    k("v_and_b32 v%d, 63, v0\nv_lshlrev_b32 v%d, 4, v%d" % (vL, vL16, vL))
    sRing = T + 5; sCol = T + 6
    fmt(k, "s_mul_i32 s{r}, s{W}, 40960\ns_lshl_b32 s{T}, s{R}, 8\ns_lshl_b32 s{T1}, s{W}, 6\ns_add_u32 s{c}, s{T}, s{T1}", r=sRing, c=sCol)
    frag = lambda t, ks: 128 + (t * 16 + ks) * 4
    fragkv = lambda m, t, ks: 256 + ((m * 2 + t) * 16 + ks) * 4
    Lq = k.uid("L_qonly")
    k("s_cmp_eq_u32 s%d, 1\ns_cbranch_scc0 %s" % (S_L, Lq))
    chunks = []
    for m, ptr in ((0, P_WK), (1, P_WV)):
        chunks += [dict(ptr=ptr, nbytes=512 * 8192, stride=8192, scol=sCol, row0=64 * c, order="n",
                        dest={(t, ks2): fragkv(m, t, 2 * c + ks2) for t in range(2) for ks2 in range(2)}) for c in range(8)]
    load_weights(k, chunks, vL, 8, sRing)
    k("s_barrier")
    gsync(k)
    kv_helper(k, fragkv, vL16)
    fmt(k, "s_mul_i32 s{r}, s{W}, 40960\ns_lshl_b32 s{T}, s{R}, 8\ns_lshl_b32 s{T1}, s{W}, 6\ns_add_u32 s{c}, s{T}, s{T1}", r=sRing, c=sCol)
    k.label(Lq)
    chunks = [dict(ptr=P_WQ, nbytes=512 * 8192, stride=8192, scol=sCol, row0=64 * c, order="n",
                   dest={(t, ks2): frag(t, 2 * c + ks2) for t in range(2) for ks2 in range(2)}) for c in range(8)]
    load_weights(k, chunks, vL, 8, sRing)
    k("s_barrier")
    gsync(k)
    gmark(k, 2)
    HI = 0x10000; KMB = 0x18000; QX = 0x19000
    vW16, vTrK, vVm, vMk = 3, 4, 5, 6
    vH16 = 17; vWH = 18; vXr = 19
    t0, t1, t2, t3 = 120, 121, 122, 123
    lane_consts_attn(k, vL, vL16, vW16, vTrK, vVm, vMk, vH16, vWH, t0, t1, t2, t3, KMB)
    sXb, sKVi, sKM, sO, sFKV, sFKM, sFO, sC, sFOp, sW10, sBx, sBk = range(66, 78)
    fmt(k, """
    s_lshl_b32 s{w10}, s{W}, 10
    s_mul_i32 s{T}, s{LY}, 0x{xl:x}
    s_add_u32 s{xb}, s{T}, 0x{ox:x}
    s_mul_i32 s{T}, s{LY}, 0x{kvl:x}
    s_add_u32 s{T}, s{T}, 0x{okv:x}
    s_lshl_b32 s{T1}, s{R}, 20
    s_add_u32 s{kvi}, s{T}, s{T1}
    s_mul_i32 s{T}, s{LY}, 0x{kml:x}
    s_add_u32 s{T}, s{T}, 0x{okm:x}
    s_lshl_b32 s{T1}, s{R}, 18
    s_add_u32 s{km}, s{T}, s{T1}
    s_mul_i32 s{T}, s{LY}, 0x{ol:x}
    s_add_u32 s{T}, s{T}, 0x{oo:x}
    s_lshl_b32 s{T1}, s{R}, 13
    s_add_u32 s{T}, s{T}, s{T1}
    s_lshr_b32 s{T1}, s{W}, 1
    s_lshl_b32 s{T1}, s{T1}, 12
    s_add_u32 s{T}, s{T}, s{T1}
    s_and_b32 s{T1}, s{W}, 1
    s_lshl_b32 s{T1}, s{T1}, 10
    s_add_u32 s{o}, s{T}, s{T1}
    s_lshl_b32 s{T}, s{LY}, 18
    s_lshl_b32 s{T1}, s{R}, 7
    s_add_u32 s{T}, s{T}, s{T1}
    s_add_u32 s{fkv}, s{T}, 0x{FKV:x}
    s_add_u32 s{fkm}, s{T}, 0x{FKM:x}
    s_lshl_b32 s{T}, s{LY}, 15
    s_lshr_b32 s{T1}, s{R}, 3
    s_lshl_b32 s{T1}, s{T1}, 7
    s_add_u32 s{T}, s{T}, s{T1}
    s_and_b32 s{T1}, s{R}, 7
    s_lshl_b32 s{T1}, s{T1}, 2
    s_add_u32 s{T}, s{T}, s{T1}
    s_add_u32 s{fo}, s{T}, 0x{FO:x}
    s_cmp_eq_u32 s{W}, 0
    s_cselect_b32 s78, 1, 0
    s_mov_b32 s79, 0
    s_mov_b32 s{c}, 0x{cc:x}
    s_mov_b32 s{fop}, 0x{FD:x}
    s_mov_b32 s{bx}, 0
    s_mov_b32 s{bk}, 0
    """, w10=sW10, xl=XN_L, ox=OFF_XN, xb=sXb, kvl=KV_L, okv=OFF_KV, kvi=sKVi, kml=KM_L, okm=OFF_KM, km=sKM, ol=O_L, oo=OFF_O, o=sO,
       fkv=sFKV, FKV=F_KV, fkm=sFKM, FKM=F_KM, fo=sFO, FO=F_O, c=sC, cc=f32(SCALE_LOG2E), fop=sFOp, FD=F_DUMMY, bx=sBx, bk=sBk)
    vFa, vFb = 14, 15
    def fetch_inputs():
        wait_flag(k, sFKV, 4, vFa, vFb)
        k("s_add_u32 s%d, s%d, s%d" % (T + 2, sW10, sBx))
        dma_lin(k, vW16, sXb, T + 2, 0, 8)
        k("s_add_u32 s%d, s%d, s%d" % (T + 2, sW10, sBk))
        dma_lin(k, vW16, sKVi, T + 2, 0x10000, 4)
        k("s_add_u32 s%d, s%d, 32768\ns_add_u32 s%d, s%d, 16384\ns_add_u32 s%d, s%d, 4096" % (sXb, sXb, sKVi, sKVi, sFKV, sFKV))
    k("s_mov_b32 s%d, 0" % S_STEP)
    fetch_inputs()
    k("s_waitcnt vmcnt(0)\ns_barrier")
    vX = 20; vAcc = 32
    k.label("L_qa_loop")
    steplog(k, 14, 15, 0xF100000)
    k("s_waitcnt vmcnt(2)\ns_barrier")
    k("v_add_u32 v%d, s%d, v%d" % (vXr, sBx, vL16))
    seq = [(tt, ks) for tt in range(2) for ks in range(16)]
    def rdq(i):
        tt, ks = seq[i]
        return "ds_read_b128 %s, v%d offset:%d" % (vr(vX + 4 * (i % 3), 4), vXr, (tt * 16 + ks) * 1024)
    k(rdq(0)); k(rdq(1))
    for i, (tt, ks) in enumerate(seq):
        k("s_waitcnt lgkmcnt(%d)" % (1 if i + 1 < len(seq) else 0))
        x = vr(vX + 4 * (i % 3), 4)
        mf = ["v_mfma_f32_16x16x32_bf16 %s, %s, %s, %s" % (vr(vAcc + (t * 2 + tt) * 4, 4), ur(frag(t, ks), 4), x, "0" if ks == 0 else vr(vAcc + (t * 2 + tt) * 4, 4)) for t in range(2)]
        interleave(k, mf, [rdq(i + 2)] if i + 2 < len(seq) else [], per=1, start=0)
    k("s_nop 7")
    for tt in range(2):
        a0 = vAcc + (0 * 2 + tt) * 4; a1 = vAcc + (1 * 2 + tt) * 4; g = 64 + 4 * tt
        k("v_cvt_pk_bf16_f32 v%d, v%d, v%d\nv_cvt_pk_bf16_f32 v%d, v%d, v%d" % (g, a0, a0 + 1, g + 1, a0 + 2, a0 + 3))
        k("v_cvt_pk_bf16_f32 v%d, v%d, v%d\nv_cvt_pk_bf16_f32 v%d, v%d, v%d" % (g + 2, a1, a1 + 1, g + 3, a1 + 2, a1 + 3))
        k("ds_write_b128 v%d, %s offset:%d" % (vWH, vr(g, 4), QX - HI + tt * 4096))
    k("s_waitcnt vmcnt(0) lgkmcnt(0)\ns_barrier")
    signal_set(k, sFOp, 78, vFa, vFb)
    steplog(k, vFa, vFb, 0xF400000)
    vQ = 64
    fmt(k, "s_and_b32 s{T}, s{W}, 1\ns_lshl_b32 s{T}, s{T}, 12\nv_add_u32 v{t0}, s{T}, v{l16}", t0=t0, l16=vH16)
    for ks in range(4): k("ds_read_b128 %s, v%d offset:%d" % (vr(vQ + 4 * ks, 4), t0, QX - HI + ks * 1024))
    vKc = 124
    k("v_add_u32 v%d, s%d, v%d" % (vKc, sBk, vH16))
    k("s_xor_b32 s%d, s%d, 0x8000\ns_xor_b32 s%d, s%d, 0x4000" % (sBx, sBx, sBk, sBk))
    wait_flag(k, sFKM, 4, vFa, vFb)
    steplog(k, vFa, vFb, 0xF200000)
    dma_lin(k, vW16, sKM, sW10, KMB, 1)
    Lnf = k.uid("L_nf"); Lnf2 = k.uid("L_nf2")
    k("s_cmp_lt_u32 s%d, %d\ns_cbranch_scc0 %s" % (S_STEP, nseg - 1, Lnf))
    k("s_add_u32 s%d, s%d, s%d" % (T + 2, sW10, sBx))
    dma_lin(k, vW16, sXb, T + 2, 0, 8)
    k("s_add_u32 s%d, s%d, s%d" % (T + 2, sW10, sBk))
    dma_lin(k, vW16, sKVi, T + 2, 0x10000, 4)
    k("s_add_u32 s%d, s%d, 32768\ns_add_u32 s%d, s%d, 16384" % (sXb, sXb, sKVi, sKVi))
    k.label(Lnf)
    order = [(t, ks) for ks in range(4) for t in range(2)]
    kf = [104, 108, 112, 116, 80, 84, 44, 48]
    for i, (t, ks) in enumerate(order): k("ds_read_b128 %s, v%d offset:%d" % (vr(kf[i], 4), vKc, (t * 4 + ks) * 1024))
    vS = 32
    k("s_waitcnt lgkmcnt(0)")
    for i, (t, ks) in enumerate(order):
        c = vr(vMk + 4 * t, 4) if ks == 0 else vr(vS + 4 * t, 4)
        k("v_mfma_f32_16x16x32_bf16 %s, %s, %s, %s" % (vr(vS + 4 * t, 4), vr(kf[i], 4), vr(vQ + 4 * ks, 4), c))
    vVf = 88; vVmr = 104; vKm = 80
    fmt(k, "s_lshr_b32 s{T}, s{W}, 1\ns_lshl_b32 s{T}, s{T}, 12\nv_add_u32 v{t0}, s{T}, v{kc}", t0=t0, kc=vKc)
    for i in range(4): k("ds_read_b128 %s, v%d offset:%d" % (vr(vVf + 4 * i, 4), t0, 8192 + i * 1024))
    Lv = k.uid("L_v"); Lv2 = k.uid("L_v2")
    k("s_cmp_lt_u32 s%d, %d\ns_cbranch_scc0 %s\ns_waitcnt vmcnt(12)\ns_branch %s" % (S_STEP, nseg - 1, Lv, Lv2))
    k.label(Lv)
    k("s_waitcnt vmcnt(0)")
    k.label(Lv2)
    k("s_barrier")
    vKm = 52
    vKm = 104
    for ks in range(4):
        k("ds_read_b64_tr_b16 %s, v%d offset:%d" % (vr(vKm + 4 * ks, 2), vTrK, ks * 1024))
        k("ds_read_b64_tr_b16 %s, v%d offset:%d" % (vr(vKm + 4 * ks + 2, 2), vTrK, ks * 1024 + 512))
    vVmr = 44
    for i in range(4): k("ds_read_b32 v%d, v%d offset:%d" % (vVmr + 2 * i, vVm, i * 512))
    for i in range(4): k("v_mov_b32 v%d, 0" % (vVmr + 2 * i + 1))
    k("s_waitcnt lgkmcnt(4)")
    for ks in range(4):
        k("v_mfma_f32_16x16x32_bf16 %s, %s, %s, %s" % (vr(vS + 8, 4), vr(vKm + 4 * ks, 4), vr(vQ + 4 * ks, 4), "0" if ks == 0 else vr(vS + 8, 4)))
    k("s_nop 7")
    vals = [vS + i for i in range(10)]
    m = 120; m2 = 121
    k("v_max3_f32 v%d, v%d, v%d, v%d" % (m, vals[0], vals[1], vals[2]))
    k("v_max3_f32 v%d, v%d, v%d, v%d" % (m2, vals[3], vals[4], vals[5]))
    k("v_max3_f32 v%d, v%d, v%d, v%d" % (m, m, vals[6], vals[7]))
    k("v_max3_f32 v%d, v%d, v%d, v%d" % (m2, m2, vals[8], vals[9]))
    k("v_max_f32 v%d, v%d, v%d" % (m, m, m2))
    k("v_mov_b32 v%d, v%d\ns_nop 1\nv_permlane32_swap_b32 v%d, v%d\nv_max_f32 v%d, v%d, v%d" % (m2, m, m, m2, m, m, m2))
    k("v_mov_b32 v%d, v%d\ns_nop 1\nv_permlane16_swap_b32 v%d, v%d\nv_max_f32 v%d, v%d, v%d" % (m2, m, m, m2, m, m, m2))
    k("v_mul_f32 v%d, s%d, v%d" % (m, sC, m))
    for v in vals: k("v_fma_f32 v%d, v%d, s%d, -v%d" % (v, v, sC, m))
    for v in vals: k("v_exp_f32 v%d, v%d" % (v, v))
    vPx = 112; vPm = 116; ones = 80
    for i in range(4): k("v_mov_b32 v%d, 0x3f803f80" % (ones + i))
    for i in range(4): k("v_cvt_pk_bf16_f32 v%d, v%d, v%d" % (vPx + i, vals[2 * i], vals[2 * i + 1]))
    k("v_cvt_pk_bf16_f32 v%d, v%d, v%d\nv_mov_b32 v%d, 0" % (vPm, vals[8], vals[9], vPm + 1))
    vO = 52; vSum = 68
    k("s_waitcnt lgkmcnt(0)\ns_nop 0")
    k("v_mfma_f32_16x16x32_bf16 %s, %s, %s, 0" % (vr(vSum, 4), vr(ones, 4), vr(vPx, 4)))
    for i in range(4): k("v_mfma_f32_16x16x32_bf16 %s, %s, %s, 0" % (vr(vO + 4 * i, 4), vr(vVf + 4 * i, 4), vr(vPx, 4)))
    k("v_mfma_f32_16x16x16_bf16 %s, %s, %s, %s" % (vr(vSum, 4), vr(ones, 2), vr(vPm, 2), vr(vSum, 4)))
    for i in range(4): k("v_mfma_f32_16x16x16_bf16 %s, %s, %s, %s" % (vr(vO + 4 * i, 4), vr(vVmr + 2 * i, 2), vr(vPm, 2), vr(vO + 4 * i, 4)))
    k("s_nop 3")
    k("v_rcp_f32 v%d, v%d\ns_nop 3" % (m, vSum))
    for i in range(16): k("v_mul_f32 v%d, v%d, v%d" % (vO + i, vO + i, m))
    for i2 in range(2):
        g = 72 + 4 * i2; a0 = vO + 8 * i2; a1 = a0 + 4
        k("v_cvt_pk_bf16_f32 v%d, v%d, v%d\nv_cvt_pk_bf16_f32 v%d, v%d, v%d" % (g, a0, a0 + 1, g + 1, a0 + 2, a0 + 3))
        k("v_cvt_pk_bf16_f32 v%d, v%d, v%d\nv_cvt_pk_bf16_f32 v%d, v%d, v%d" % (g + 2, a1, a1 + 1, g + 3, a1 + 2, a1 + 3))
        k("buffer_store_dwordx4 %s, v%d, %s, s%d offen offset:%d sc1" % (vr(g, 4), vL16, WSR, sO, i2 * 2048))
    steplog(k, vFa, vFb, 0xF300000)
    k("s_mov_b32 s%d, s%d" % (sFOp, sFO))
    k("s_add_u32 s%d, s%d, %d\ns_add_u32 s%d, s%d, %d" % (sFO, sFO, 4 * FL, sO, sO, O_SEG))
    k("s_add_u32 s%d, s%d, 4096\ns_add_u32 s%d, s%d, 4096" % (sKM, sKM, sFKM, sFKM))
    k("s_add_u32 s%d, s%d, 1\ns_cmp_lt_u32 s%d, %d\ns_cbranch_scc1 L_qa_loop" % (S_STEP, S_STEP, S_STEP, nseg))
    k("s_waitcnt vmcnt(0)\ns_barrier")
    signal_set(k, sFOp, 78, vFa, vFb)
    k("s_waitcnt vmcnt(0)")
    gmark(k, 3); gdump(k)
    k("s_branch L_end")
```

```python
import sys
from asmlib import *
from layout import *
import chain as C
from chain import *
import roles as R
from roles import fmt, WSR, T
KN = "interleave_layers__memory_aug_recurrent_mem_tr__glu_gated_bilinear__prompt_kernel"
NWG = 256
HEADER = open("interleave_layers__memory_aug_recurrent_mem_tr__glu_gated_bilinear__prompt.s.ref").read().split("; Override launch")[0]

def prologue(k, spin):
    k("""
    s_cmp_ge_u32 s2, {n}
    s_cbranch_scc1 L_end
    s_load_dwordx8 s[20:27], s[0:1], 0
    s_load_dwordx4 s[28:31], s[0:1], 32
    s_load_dwordx4 s[32:35], s[0:1], 64
    s_load_dwordx2 s[36:37], s[0:1], 80
    s_load_dwordx2 s[38:39], s[0:1], 88
    s_load_dwordx4 s[40:43], s[0:1], 96
    s_getreg_b32 s{xcc}, hwreg(HW_REG_XCC_ID, 0, 4)
    v_lshrrev_b32 v1, 6, v0
    s_mov_b32 s{spin}, {sp}
    s_and_b32 s{xcc}, s{xcc}, 7
    v_readfirstlane_b32 s{wave}, v1
    s_waitcnt lgkmcnt(0)
    """.format(n=NWG, xcc=S_XCC, spin=S_SPIN, wave=S_WAVE, sp=spin))
    build_srd(k, S_WS, P_WSP, WS_BYTES)
    gmark(k, 0)
    fmt(k, """
    s_cmp_eq_u32 s{W}, 0
    s_cbranch_scc0 L_noticket
    s_lshl_b32 s{T}, s{xcc}, 2
    v_mov_b32 v3, s{T}
    v_mov_b32 v4, 1
    s_mov_b64 exec, 1
    global_atomic_add v5, v3, v4, s[{d}:{d1}] sc0 sc1
    s_waitcnt vmcnt(0)
    v_mov_b32 v3, 0x4000
    ds_write_b32 v3, v5
    s_mov_b64 exec, -1
    s_waitcnt lgkmcnt(0)
    L_noticket:
    """, xcc=S_XCC, d=P_DBG, d1=P_DBG + 1)
    build_srd(k, S_SRD3, P_WSP, FLAGS_BYTES)
    fmt(k, """
    s_lshl_b32 s{T}, s2, 12
    v_lshlrev_b32 v2, 4, v0
    v_add_u32 v2, s{T}, v2
    v_mov_b64 v[4:5], 0
    v_mov_b64 v[6:7], 0
    v_mov_b64 v[8:9], -1
    v_mov_b64 v[10:11], -1
    s_mov_b32 s{T}, 0x100000
    buffer_store_dwordx4 v[4:7], v2, s[{a}:{b}], 0 offen sc1
    buffer_store_dwordx4 v[4:7], v2, s[{a}:{b}], s{T} offen sc1
    """, a=S_SRD3, b=S_SRD3 + 3)
    assert FLAGS_BYTES <= 0x200000 and OFF_P == FLAGS_BYTES
    END1 = OFF_M + 2 * M_LSTRIDE
    assert END1 - OFF_P <= 0x100000
    build_srd(k, S_SRD2, P_WSP, END1)
    fmt(k, "s_mov_b32 s{T}, 0x{o:x}\nbuffer_store_dwordx4 v[8:11], v2, s[{a}:{b}], s{T} offen sc1", o=OFF_P, a=S_SRD2, b=S_SRD2 + 3)
    sTg, sRes, sXn = 66, 67, 68
    fmt(k, "s_and_b32 s{tg}, s2, 3", tg=sTg)
    R.f_lane_setup(k)
    build_srd(k, S_SRD2, P_X, S * D * 2)
    fmt(k, """
    s_lshl_b32 s{r}, s2, 13
    s_lshr_b32 s{T}, s2, 2
    s_lshl_b32 s{T}, s{T}, 15
    s_lshr_b32 s{T1}, s{tg}, 1
    s_lshl_b32 s{T1}, s{T1}, 14
    s_add_u32 s{T}, s{T}, s{T1}
    s_and_b32 s{T1}, s{tg}, 1
    s_lshl_b32 s{T1}, s{T1}, 7
    s_add_u32 s{T}, s{T}, s{T1}
    s_add_u32 s{x}, s{T}, 0x{o:x}
    """, r=sRes, tg=sTg, x=sXn, o=OFF_XN)
    R.f_compute(k, 0, None, "s[%d:%d]" % (S_SRD2, S_SRD2 + 3), sRes, dict(xn=sXn))
    k("s_waitcnt vmcnt(0)\ns_barrier")
    k("v_mov_b32 v3, 0x4000\nds_read_b32 v5, v3\ns_waitcnt lgkmcnt(0)\nv_readfirstlane_b32 s98, v5\ns_barrier")
    fmt(k, """
    s_cmp_eq_u32 s{W}, 0
    s_cbranch_scc0 L_noreg
    v_mov_b32 v4, 1
    v_mov_b32 v6, 32
    s_mov_b64 exec, 1
    global_atomic_add v6, v4, s[{d}:{d1}] sc1
    s_mov_b64 exec, -1
    L_noreg:
    """, d=P_DBG, d1=P_DBG + 1)
    k("s_mov_b32 s%d, 0\ns_mov_b32 s%d, 1" % (R.S_SYNC, S_FAST))
    k("s_lshl_b32 s%d, s%d, 5\ns_add_u32 s%d, s%d, s98" % (S_RANK, S_XCC, S_RANK, S_RANK))
    k("s_cmp_lt_u32 s98, 32\ns_cbranch_scc1 L_dispatch")
    R.gsync(k)
    k.label("L_dispatch")
    if DEV["marks"]: k("s_mov_b32 s100, s%d" % S_RANK)
    gmark(k, 1)

def dispatch(k, enable):
    G = S_RANK
    def rng(lo, hi, lab):
        k("s_cmp_lt_u32 s%d, %d\ns_cbranch_scc1 %s" % (G, hi, lab))
    rng(0, 64, "L_role_chain"); rng(64, 128, "L_role_qa"); rng(128, 160, "L_role_g3"); rng(160, 188, "L_role_g4"); rng(188, 192, "L_role_f3x")
    rng(192, 208, "L_role_g5"); rng(208, 216, "L_role_f3"); rng(216, 224, "L_role_f5")
    k("s_sub_u32 s%d, s%d, 224\ns_branch L_role_kv" % (G, G))
    k.label("L_role_f3x")
    k("s_sub_u32 s%d, s%d, 188\ns_lshr_b32 s%d, s%d, 1\ns_and_b32 s%d, s%d, 1\ns_add_u32 s%d, s%d, 4\ns_branch L_role_f3b" % (G, G, S_L, G, G, G, G, G))
    k.label("L_role_chain")
    k("s_lshr_b32 s%d, s%d, 5\ns_and_b32 s%d, s%d, 31" % (S_L, G, G, G))
    k("s_cmp_eq_u32 s%d, 1\ns_cbranch_scc0 L_chain_slow" % S_FAST)
    chain_role(k, sfx="_f", gsync_fn=R.gsync, fast=True, **enable.get("chain_kw", {}))
    k.label("L_chain_slow")
    chain_role(k, sfx="_s", fast=False)
    k.label("L_role_qa")
    k("s_sub_u32 s%d, s%d, 64\ns_lshr_b32 s%d, s%d, 5\ns_and_b32 s%d, s%d, 31" % (G, G, S_L, G, G, G))
    R.qa_role(k)
    k.label("L_role_kv")
    R.kv_role(k)
    k.label("L_role_g3")
    k("s_sub_u32 s%d, s%d, 128\ns_lshr_b32 s%d, s%d, 4\ns_and_b32 s%d, s%d, 15" % (G, G, S_L, G, G, G))
    R.g3_role(k)
    k.label("L_role_g4")
    k("s_sub_u32 s%d, s%d, 160\ns_cmp_ge_u32 s%d, 14\ns_cselect_b32 s%d, 1, 0\ns_mul_i32 s%d, s%d, 14\ns_sub_u32 s%d, s%d, s%d" % (G, G, G, S_L, T, S_L, G, G, T))
    R.g4_role(k)
    k.label("L_role_g5")
    k("s_sub_u32 s%d, s%d, 192\ns_lshr_b32 s%d, s%d, 3\ns_and_b32 s%d, s%d, 7" % (G, G, S_L, G, G, G))
    R.g5_role(k)
    k.label("L_role_f3")
    k("s_sub_u32 s%d, s%d, 208\ns_lshr_b32 s%d, s%d, 2\ns_and_b32 s%d, s%d, 3" % (G, G, S_L, G, G, G))
    k.label("L_role_f3b")
    R.f_role(k, 3, 6)
    k.label("L_role_f5")
    k("s_sub_u32 s%d, s%d, 216\ns_lshr_b32 s%d, s%d, 2\ns_and_b32 s%d, s%d, 3" % (G, G, S_L, G, G, G))
    R.f_role(k, 5, 4)

def gen(spin=200000, enable=None):
    enable = enable or {}
    k = Asm()
    for l in HEADER.strip().split("\n"): k.lines.append(l if l.startswith(";") else "; " + l)
    k.lines.append("; @launch grid=(%d,1,1) block=(256,1,1) lds=163840" % NWG)
    k('.amdgcn_target "amdgcn-amd-amdhsa--gfx950"')
    k(".text\n.globl %s\n.p2align 8\n.type %s,@function\n%s:" % (KN, KN, KN))
    prologue(k, spin)
    dispatch(k, enable)
    k("""
    L_abort:
    v_mov_b32 v2, 240
    v_mov_b32 v3, 1
    s_mov_b64 exec, 1
    global_atomic_add v2, v3, s[{dbg}:{dbg1}] sc1
    s_waitcnt vmcnt(0)
    L_end:
    s_endpgm
    """.format(dbg=P_DBG, dbg1=P_DBG + 1))
    k(""".section .rodata,"a"
    .p2align 6
    .amdhsa_kernel %s
    .amdhsa_next_free_vgpr 512
    .amdhsa_next_free_sgpr 102
    .amdhsa_accum_offset 256
    .amdhsa_group_segment_fixed_size 0
    .amdhsa_kernarg_size 112
    .amdhsa_user_sgpr_count 2
    .amdhsa_user_sgpr_kernarg_segment_ptr 1
    .amdhsa_system_sgpr_workgroup_id_x 1
    .end_amdhsa_kernel""" % KN)
    return k.text()
if __name__ == "__main__":
    t = gen()
    pr = check_hazards(t)
    open("full.s", "w").write(t)
    print(len(t), "bytes")
    DEV["marks"] = True
    t = gen()
    check_hazards(t)
    open("fullm.s", "w").write(t)
```

```python
from asmlib import *
from layout import *

S_WS   = 4
S_SRD2 = 8
S_SRD3 = 12
S_WAVE = 16
S_RANK = 17
S_XCC  = 18
S_L    = 19
S_PTR  = 20
P_X, P_MEM, P_WQ, P_WK, P_WV, P_WO, P_WG, P_WU, P_WD, P_OUT, P_DBG, P_WSP = [20 + 2 * i for i in range(12)]
S_FAST = 44
S_T0   = 45
S_SPIN = 64
S_STEP = 65

L_MEMT = 0; L_KX = 0x2000; L_VX = 0x4000; L_QT = 0x6000; L_OX = 0x6000; L_KT = 0x7000; L_WO = 0x8000
OX_ROW = 272

def build_srd(k, d, ptr, nbytes):
    k("s_mov_b32 s%d, s%d" % (d, ptr))
    k("s_and_b32 s%d, s%d, 0xffff" % (d + 1, ptr + 1))
    k("s_mov_b32 s%d, 0x%x" % (d + 2, nbytes))
    k("s_mov_b32 s%d, 0x20000" % (d + 3))

def spin_check(k, abort):
    k("s_sub_u32 s%d, s%d, 1" % (S_SPIN, S_SPIN))
    k("s_cbranch_scc1 %s" % abort)

DEV = {"marks": False}
S_G = 102 - 2
def gmark(k, i):
    if DEV["marks"]:
        k("s_memrealtime s[62:63]\ns_waitcnt lgkmcnt(0)\ns_mov_b32 s%d, s62" % (88 + i))
def gdump(k):
    if DEV["marks"]:
        L = k.uid("L_nodump")
        k("s_cmp_eq_u32 s%d, 0\ns_cbranch_scc0 %s" % (S_WAVE, L))
        k("s_lshl_b32 s62, s100, 6\ns_add_u32 s62, s62, 0x%x" % 0xF000000)
        for i in range(12): k("v_mov_b32 v%d, s%d" % (40 + i, 88 + i))
        k("v_mov_b32 v39, s62\ns_mov_b64 exec, 1")
        for i in range(3): k("buffer_store_dwordx4 v[%d:%d], v39, s[4:7], 0 offen offset:%d" % (40 + 4 * i, 43 + 4 * i, 16 * i))
        k("s_waitcnt vmcnt(0)\ns_mov_b64 exec, -1")
        k.label(L)
def steplog(k, vt0, vt1, base):
    if DEV["marks"]:
        L = k.uid("L_nolog")
        k("s_cmp_eq_u32 s%d, 0\ns_cbranch_scc0 %s" % (S_WAVE, L))
        k("s_memrealtime s[62:63]\ns_lshl_b32 s61, s100, 10\ns_lshl_b32 s60, s%d, 2\ns_add_u32 s61, s61, s60\ns_add_u32 s61, s61, 0x%x\ns_waitcnt lgkmcnt(0)" % (S_STEP, base))
        k("v_mov_b32 v%d, s61\nv_mov_b32 v%d, s62\ns_mov_b64 exec, 1" % (vt0, vt1))
        k("buffer_store_dword v%d, v%d, s[4:7], 0 offen\ns_mov_b64 exec, -1" % (vt1, vt0))
        k.label(L)

SCALE_LOG2E = 0.08838834764831845 * 1.4426950408889634

import struct
def f32(x): return struct.unpack("<I", struct.pack("<f", x))[0]


def interleave(k, prim, fill, per=2, start=0):
    fill = list(fill)
    for i, p in enumerate(prim):
        k(p)
        if i >= start:
            for _ in range(per):
                if fill: k(fill.pop(0))
    for f in fill: k(f)


def chain_role(k, sfx='', gsync_fn=None, dump=False, stamps=False, nsteps=64, fast=True, d1=0, d2=0, probe=False, nopub=False, nokv=False, waitack=True, waitackC=True, marks=False, noimg=False, noatom=False, flagstore=True, earlyB=True, natural=True, ackB=False, clrfirst=False, nohop=False, cut=99):
    T = S_T0
    abort = "L_abort"
    WSR = "s[%d:%d]" % (S_WS, S_WS + 3)
    PL = "" if fast else " sc1"
    vL = 1
    vIdx, vTrM, vQW, vTrQ, vKW, vTrK, vL16, vOW, vOR, vWO, vPst, vMst, vMlds, vKXw, vKpub, _vneg = range(2, 18)
    vKn = 18
    vVn = 26
    vFl = 34
    vPld = 35
    t0, t1, t2, t3 = 124, 125, 126, 127
    def F(s, **kw):
        d = dict(t0=t0, t1=t1, t2=t2, t3=t3, L=vL, T=T, T1=T + 1, T2=T + 2, W=S_WAVE, H=S_RANK, LY=S_L, l16=vL16)
        d.update(kw); k(s.format(**d))
    if marks: k("s_mov_b32 s100, 0\ns_mov_b32 s101, 0")
    def mark(i):
        if marks: k("s_memrealtime s[60:61]\ns_waitcnt lgkmcnt(0)\ns_mov_b32 s%d, s60" % (52 + i))
    mark(0)
    F("v_and_b32 v{L}, 63, v0\nv_lshlrev_b32 v{l16}, 4, v{L}")
    F("""
    v_and_b32 v{t0}, 2, v{L}
    v_cmp_eq_u32 vcc, 0, v{t0}
    v_mov_b32 v{t1}, 0xeeee
    v_mov_b32 v{t2}, 0x4444
    v_cndmask_b32 v{a}, v{t1}, v{t2}, vcc
    """, a=vIdx)
    F("""
    v_lshrrev_b32 v{t0}, 4, v{L}
    v_bfe_u32 v{t1}, v{L}, 2, 2
    v_and_b32 v{t2}, 3, v{L}
    v_lshlrev_b32 v{t3}, 8, v{t0}
    v_lshl_add_u32 v{t3}, v{t1}, 5, v{t3}
    v_lshl_add_u32 v{t3}, v{t2}, 3, v{t3}
    v_and_b32 v{t0}, 1, v{t0}
    v_lshlrev_b32 v{t0}, 7, v{t0}
    v_xor_b32 v{a}, v{t3}, v{t0}
    """, a=vTrM)
    F("""
    v_and_b32 v{t0}, 15, v{L}
    s_lshl_b32 s{T}, s{W}, 5
    v_add_u32 v{t0}, s{T}, v{t0}
    v_lshlrev_b32 v{t1}, 4, v{t0}
    v_lshrrev_b32 v{t2}, 4, v{L}
    v_lshl_add_u32 v{a}, v{t2}, 2, v{t1}
    v_lshlrev_b32 v{t1}, 5, v{t0}
    v_lshl_add_u32 v{t1}, v{t2}, 3, v{t1}
    v_bfe_u32 v{t2}, v{L}, 3, 1
    v_lshlrev_b32 v{t2}, 7, v{t2}
    v_xor_b32 v{b}, v{t1}, v{t2}
    """, a=vQW, b=vKW)
    F("""
    v_lshrrev_b32 v{t0}, 4, v{L}
    v_bfe_u32 v{t1}, v{L}, 2, 2
    v_lshl_add_u32 v{t1}, v{t0}, 2, v{t1}
    v_lshlrev_b32 v{t2}, 4, v{t1}
    v_and_b32 v{t3}, 1, v{L}
    v_lshl_add_u32 v{a}, v{t3}, 3, v{t2}
    v_lshlrev_b32 v{t2}, 5, v{t1}
    v_and_b32 v{t3}, 3, v{L}
    v_lshl_add_u32 v{t2}, v{t3}, 3, v{t2}
    v_lshrrev_b32 v{t0}, 1, v{t0}
    v_lshlrev_b32 v{t0}, 7, v{t0}
    v_xor_b32 v{b}, v{t2}, v{t0}
    """, a=vTrQ, b=vTrK)
    F("""
    v_and_b32 v{t0}, 7, v{L}
    v_mul_u32_u24 v{t0}, {row}, v{t0}
    v_lshrrev_b32 v{t1}, 4, v{L}
    v_lshl_add_u32 v{t0}, v{t1}, 2, v{t0}
    s_lshl_b32 s{T}, s{W}, 6
    v_add_u32 v{a}, s{T}, v{t0}
    v_bfe_u32 v{t0}, v{L}, 2, 2
    v_lshlrev_b32 v{t0}, 1, v{t0}
    v_and_b32 v{t2}, 1, v{L}
    v_add_u32 v{t0}, v{t0}, v{t2}
    v_mul_u32_u24 v{t0}, {row}, v{t0}
    v_lshl_add_u32 v{t0}, v{t1}, 5, v{t0}
    v_bfe_u32 v{t1}, v{L}, 1, 1
    v_lshl_add_u32 v{b}, v{t1}, 4, v{t0}
    """, a=vOW, b=vOR, row=OX_ROW)
    F("""
    s_lshl_b32 s{T}, s{W}, 15
    s_add_u32 s{T}, s{T}, 0x{wo:x}
    v_add_u32 v{a}, s{T}, v{l16}
    s_lshl_b32 s{T}, s{W}, 11
    v_add_u32 v{kx}, s{T}, v{l16}
    v_and_b32 v{t0}, 15, v{L}
    v_lshrrev_b32 v{t1}, 4, v{L}
    v_lshlrev_b32 v{t2}, 4, v{t0}
    v_lshl_add_u32 v{p}, v{t1}, 13, v{t2}
    s_lshl_b32 s{T1}, s{W}, 10
    v_add_u32 v{kp}, s{T1}, v{l16}
    v_bfe_u32 v{t2}, v{L}, 1, 1
    v_lshlrev_b32 v{t2}, 5, v{t2}
    v_lshrrev_b32 v{t0}, 5, v{L}
    v_lshl_add_u32 v{t2}, v{t0}, 4, v{t2}
    s_lshl_b32 s{T1}, s{W}, 6
    v_add_u32 v{m}, s{T1}, v{t2}
    v_bfe_u32 v{t2}, v{L}, 2, 2
    v_lshl_add_u32 v{t2}, v{t1}, 2, v{t2}
    v_lshlrev_b32 v{t2}, 8, v{t2}
    v_and_b32 v{t0}, 3, v{L}
    v_lshl_add_u32 v{t2}, v{t0}, 4, v{t2}
    v_add_u32 v{pl}, s{T1}, v{t2}
    ; vMlds = w*2048 + (16 l ^ (((l>>4)&1)<<7))
    v_bfe_u32 v{t0}, v{L}, 4, 1
    v_lshlrev_b32 v{t0}, 7, v{t0}
    v_xor_b32 v{t0}, v{t0}, v{l16}
    v_add_u32 v{ml}, s{T}, v{t0}
    """, a=vWO, wo=L_WO, kx=vKXw, p=vPst, m=vMst, ml=vMlds, kp=vKpub, pl=vPld)
    sPst = 66
    sPld, sMbase, sMst, sMld, sKV, sKM, sFKV, sFKM, sTag, sClr, sC, sFlagVal, sKMp, sFKMp = range(74, 88)
    vNeg1 = 17
    sFKMq = 58; sPld2 = 57; sExF = 54; sClrNow = sClr
    F("""
    s_mul_i32 s{T1}, s{LY}, 0x{pl:x}
    s_add_u32 s{T1}, s{T1}, 0x{op:x}
    s_lshl_b32 s{T}, s{H}, 8
    s_add_u32 s{T2}, s{T1}, s{T}
    s_lshl_b32 s{T}, s{W}, 16
    s_add_u32 s{p0}, s{T2}, s{T}
    s_lshl_b32 s{T}, s{H}, 13
    s_add_u32 s{pld}, s{T1}, s{T}
    s_mul_i32 s{mb}, s{LY}, 0x{ml:x}
    s_add_u32 s{mb}, s{mb}, 0x{om:x}
    s_mul_i32 s{T}, s{LY}, 0x{kvl:x}
    s_add_u32 s{T}, s{T}, 0x{okv:x}
    s_lshl_b32 s{T1}, s{H}, 20
    s_add_u32 s{kv}, s{T}, s{T1}
    s_mul_i32 s{T}, s{LY}, 0x{kml:x}
    s_add_u32 s{T}, s{T}, 0x{okm:x}
    s_lshl_b32 s{T1}, s{H}, 18
    s_add_u32 s{km}, s{T}, s{T1}
    s_lshl_b32 s{T}, s{LY}, 18
    s_lshl_b32 s{T1}, s{H}, 7
    s_add_u32 s{T}, s{T}, s{T1}
    s_add_u32 s{fkv}, s{T}, 0x{FKV:x}
    s_add_u32 s{fkm}, s{T}, 0x{FKM:x}
    s_mov_b32 s{c}, 0x{cc:x}
    """, pl=P_LSTRIDE, op=OFF_P, p0=sPst, pld=sPld, mb=sMbase, ml=M_LSTRIDE, om=OFF_M,
      kvl=KV_L, okv=OFF_KV, kv=sKV, kml=KM_L, okm=OFF_KM, km=sKM, fkv=sFKV, fkm=sFKM, FKV=F_KV, FKM=F_KM, c=sC, cc=f32(SCALE_LOG2E))
    k("s_add_u32 s%d, s%d, 32768" % (sPst + 1, sPst))
    k("s_mov_b32 s%d, 0x%x\ns_mov_b32 s%d, 0x%x" % (sFKMp, F_DUMMY, sFKMq, F_DUMMY))
    k("s_mov_b32 s%d, 0x%x" % (sKMp, F_DUMMY + 0x1000))
    k("s_mov_b32 s%d, 0x%x" % (sClr, F_DUMMY + 0x3000))
    k("v_mov_b32 v%d, -1" % vNeg1)
    k("s_add_u32 s%d, s%d, 4096" % (sPld2, sPld))
    k("s_cmp_eq_u32 s%d, 2\ns_cselect_b32 s%d, 1, 0\ns_mov_b32 s%d, 0" % (S_WAVE, sExF, sExF + 1))

    if gsync_fn:
        Lg = k.uid("L_cg")
        k("s_cmp_eq_u32 s%d, 0\ns_cbranch_scc1 %s" % (S_L, Lg))
        gsync_fn(k)
        k.label(Lg)
    vA, vR0, vR1 = 40, 41, 42
    sM0 = T + 3
    F("""
    v_and_b32 v{t0}, 3, v{L}
    v_bfe_u32 v{t1}, v{L}, 5, 1
    v_lshlrev_b32 v{t1}, 1, v{t1}
    v_xor_b32 v{t0}, v{t0}, v{t1}
    v_lshlrev_b32 v{t0}, 4, v{t0}
    v_lshrrev_b32 v{t1}, 2, v{L}
    v_lshl_add_u32 v{t0}, v{t1}, 13, v{t0}
    s_lshl_b32 s{T}, s{H}, 8
    s_lshl_b32 s{T1}, s{W}, 6
    s_add_u32 s{T}, s{T}, s{T1}
    v_add_u32 v{a}, s{T}, v{t0}
    v_lshrrev_b32 v{t0}, 4, v{L}
    v_bfe_u32 v{t1}, v{L}, 2, 1
    v_lshlrev_b32 v{t1}, 1, v{t1}
    v_bfe_u32 v{t3}, v{L}, 3, 1
    v_or_b32 v{t1}, v{t1}, v{t3}
    v_lshl_add_u32 v{t2}, v{t0}, 3, v{t1}
    v_lshlrev_b32 v{t2}, 6, v{t2}
    v_and_b32 v{t0}, 1, v{t0}
    v_lshlrev_b32 v{t0}, 1, v{t0}
    v_bfe_u32 v{t1}, v{L}, 1, 1
    v_xor_b32 v{t0}, v{t0}, v{t1}
    v_lshl_add_u32 v{t2}, v{t0}, 4, v{t2}
    v_and_b32 v{t1}, 1, v{L}
    v_lshl_add_u32 v{t2}, v{t1}, 3, v{t2}
    s_lshl_b32 s{M0}, s{W}, 15
    s_add_u32 s{M0}, s{M0}, 0x{wo:x}
    v_add_u32 v{r0}, s{M0}, v{t2}
    v_xor_b32 v{r1}, 32, v{r0}
    """, a=vA, r0=vR0, r1=vR1, M0=sM0, wo=L_WO)
    srds = {0: P_WQ, 1: P_WK, 2: P_WV}
    cur = [None]
    def issue_chunk(n, slot):
        m, b = divmod(n, 8)
        if cur[0] != m:
            build_srd(k, S_SRD2, srds[m], 512 * 8192); cur[0] = m
        for i in range(4):
            k("s_add_u32 s%d, s%d, %d" % (T, sM0, slot * 4096 + i * 1024))
            k("s_mov_b32 m0, s%d" % T)
            k("s_mov_b32 s%d, %d" % (T + 1, (64 * b + 16 * i) * 8192))
            k("buffer_load_dwordx4 v%d, s[%d:%d], s%d offen lds" % (vA, S_SRD2, S_SRD2 + 3, T + 1))
    vB0, vB1, vT0 = 43, 44, 45
    F("""
    v_lshrrev_b32 v{t0}, 4, v{L}
    v_bfe_u32 v{t1}, v{L}, 1, 3
    v_xor_b32 v{t1}, v{t1}, v{t0}
    v_lshlrev_b32 v{t1}, 5, v{t1}
    v_and_b32 v{t2}, 1, v{L}
    v_lshl_add_u32 v{t1}, v{t2}, 4, v{t1}
    v_lshl_add_u32 v{t1}, v{t0}, 10, v{t1}
    s_lshl_b32 s{T}, s{H}, 17
    s_lshl_b32 s{T1}, s{W}, 8
    s_add_u32 s{T}, s{T}, s{T1}
    v_add_u32 v{b0}, s{T}, v{t1}
    v_xor_b32 v{b1}, 128, v{b0}
    v_lshrrev_b32 v{t0}, 4, v{L}
    v_bfe_u32 v{t1}, v{L}, 2, 2
    v_lshl_add_u32 v{t2}, v{t0}, 3, v{t1}
    v_lshlrev_b32 v{t2}, 8, v{t2}
    v_and_b32 v{t0}, 1, v{t0}
    v_lshl_add_u32 v{t0}, v{t0}, 2, v{t1}
    v_lshl_add_u32 v{t2}, v{t0}, 5, v{t2}
    v_and_b32 v{t1}, 3, v{L}
    v_lshl_add_u32 v{t2}, v{t1}, 3, v{t2}
    v_add_u32 v{tt}, s{M0}, v{t2}
    """, b0=vB0, b1=vB1, tt=vT0, M0=sM0)
    def issue_wo(b):
        build_srd(k, S_SRD3, P_WO, 4096 * 1024)
        for i in range(16):
            k("s_add_u32 s%d, s%d, %d" % (T, sM0, b * 16384 + i * 1024))
            k("s_mov_b32 m0, s%d" % T)
            k("s_mov_b32 s%d, %d" % (T + 1, (64 * b + 4 * i) * 1024))
            k("buffer_load_dwordx4 v%d, s[%d:%d], s%d offen lds" % (vB1 if (i & 2) else vB0, S_SRD3, S_SRD3 + 3, T + 1))
    def read_chunk(n, slot):
        m, b = divmod(n, 8)
        for t in range(2):
            f = (m * 2 + t) * 8 + b
            base = 128 + 8 * f
            for j, dl in enumerate((0, 4, 32, 36)):
                k("ds_read_b64_tr_b16 %s, v%d offset:%d" % (ur(base + 2 * j, 2), vR1 if t else vR0, slot * 4096 + dl * 64))
    slot_of = {n: (n % 8 if n < 16 else 4 + (n % 4)) for n in range(24)}
    q = []
    def wait_for(tag):
        if not [1 for t, c in q if t == tag]: return
        idx = [i for i, (t, c) in enumerate(q) if t == tag][0]
        rem = sum(c for t, c in q[idx + 1:])
        k("s_waitcnt vmcnt(%d)" % rem)
        del q[:idx + 1]
    for n in range(8):
        issue_chunk(n, slot_of[n]); q.append((n, 4))
    for n in range(24):
        wait_for(n)
        read_chunk(n, slot_of[n])
        k("s_waitcnt lgkmcnt(0)")
        if n < 8:
            issue_chunk(n + 8, slot_of[n + 8]); q.append((n + 8, 4))
        elif n < 12:
            if n == 11:
                issue_wo(0); q.append(("wo0", 16))
        elif n < 20:
            issue_chunk(n + 4, slot_of[n + 4]); q.append((n + 4, 4))
        if n == 23:
            issue_wo(1); q.append(("wo1", 16))
    mark(1)
    def convert_wo(b):
        wait_for("wo%d" % b)
        base = 48
        for t in range(8):
            k("v_xor_b32 v%d, %d, v%d" % (t0, t * 32, vT0))
            for j, dl in enumerate((0, 4, 32, 36)):
                k("ds_read_b64_tr_b16 %s, v%d offset:%d" % (vr(base + 8 * t + 2 * j, 2), t0, b * 16384 + dl * 256))
        k("s_waitcnt lgkmcnt(0)")
        for t in range(8):
            for hf in range(2):
                k("ds_write_b128 v%d, %s offset:%d" % (vWO, vr(base + 8 * t + 4 * hf, 4), b * 16384 + (t * 2 + hf) * 1024))
        k("s_waitcnt lgkmcnt(0)")
    convert_wo(0)
    convert_wo(1)

    mark(2)
    if gsync_fn: gsync_fn(k)
    build_srd(k, S_SRD2, P_MEM, 8 * 1024)
    k("v_lshlrev_b32 v%d, 2, v0" % t0)
    for q_ in range(8):
        k("s_mov_b32 s%d, %d" % (T, q_ * 1024))
        k("buffer_load_dword v%d, v%d, s[%d:%d], s%d offen" % (48 + q_, t0, S_SRD2, S_SRD2 + 3, T))
    F("""
    s_mov_b32 s{T}, 0x05040100
    s_mov_b32 s{T1}, 0x07060302
    v_lshlrev_b32 v{t1}, 5, v0
    v_bfe_u32 v{t2}, v0, 3, 1
    v_lshlrev_b32 v{t2}, 7, v{t2}
    v_xor_b32 v{t1}, v{t1}, v{t2}
    v_mov_b32 v64, 0
    v_mov_b32 v65, 0
    v_mov_b32 v66, 0
    v_mov_b32 v67, 0
    v_lshlrev_b32 v{t3}, 4, v0
    ds_write_b128 v{t3}, v[64:67] offset:{kt}
    s_waitcnt vmcnt(0)
    """, kt=L_KT)
    for m in range(4):
        k("v_perm_b32 v%d, v%d, v%d, s%d" % (56 + 2 * m, 49 + 2 * m, 48 + 2 * m, T))
        k("v_perm_b32 v%d, v%d, v%d, s%d" % (57 + 2 * m, 49 + 2 * m, 48 + 2 * m, T + 1))
    k("ds_write_b128 v%d, v[56:59]\nds_write_b128 v%d, v[60:63] offset:16" % (t1, t1))

    def flag_spin(soff, dst):
        Lp = k.uid("L_fl")
        k.label(Lp)
        k("v_mov_b32 v%d, s%d\ns_mov_b64 exec, 1" % (t0, soff))
        k("buffer_load_dword v%d, v%d, %s, 0 offen sc1" % (t1, t0, WSR))
        k("s_mov_b64 exec, -1\ns_waitcnt vmcnt(0)")
        k("v_readfirstlane_b32 s%d, v%d" % (dst, t1))
        spin_check(k, abort)
        k("s_cmp_ge_u32 s%d, 4" % dst)
        k("s_cbranch_scc0 %s" % Lp)
    def kv_loads():
        return ["buffer_load_dwordx4 %s, v%d, %s, s%d offen sc1" % (vr(vKn, 4), vKXw, WSR, sKV),
                "buffer_load_dwordx4 %s, v%d, %s, s%d offen offset:1024 sc1" % (vr(vKn + 4, 4), vKXw, WSR, sKV),
                "s_add_u32 s%d, s%d, 8192" % (T + 4, sKV),
                "buffer_load_dwordx4 %s, v%d, %s, s%d offen sc1" % (vr(vVn, 4), vKXw, WSR, T + 4),
                "buffer_load_dwordx4 %s, v%d, %s, s%d offen offset:1024 sc1" % (vr(vVn + 4, 4), vKXw, WSR, T + 4)]
    def kv_writes():
        return ["ds_write_b128 v%d, %s offset:%d" % (vKXw, vr(vKn, 4), L_KX),
                "ds_write_b128 v%d, %s offset:%d" % (vKXw, vr(vKn + 4, 4), L_KX + 1024),
                "ds_write_b128 v%d, %s offset:%d" % (vKXw, vr(vVn, 4), L_VX),
                "ds_write_b128 v%d, %s offset:%d" % (vKXw, vr(vVn + 4, 4), L_VX + 1024)]
    k("s_mov_b32 s%d, 0" % S_STEP)
    flag_spin(sFKV, sFlagVal)
    for x in kv_loads(): k(x)
    k("s_waitcnt vmcnt(0)")
    for x in kv_writes(): k(x)
    k("s_add_u32 s%d, s%d, %d\ns_add_u32 s%d, s%d, 4096" % (sKV, sKV, 16384, sFKV, sFKV))
    k("v_mov_b32 v%d, s%d\ns_mov_b64 exec, 1\nbuffer_load_dword v%d, v%d, %s, 0 offen sc1\ns_mov_b64 exec, -1\ns_waitcnt vmcnt(0)\nv_readfirstlane_b32 s%d, v%d" % (t0, sFKV, t1, t0, WSR, sFlagVal, t1))

    vA0 = 36; vACC = 68; vQB = 92; vKA = 108
    vM2 = 1
    def zero(base, n): return ["v_mov_b64 %s, 0" % vr(base + 2 * i, 2) for i in range(n // 2)]
    for x in zero(vACC, 24): k(x)
    k("v_xor_b32 v%d, 128, v%d" % (vM2, vTrM))
    k("s_waitcnt lgkmcnt(0)\ns_barrier")
    if stamps:
        for i in range(13): k("s_mov_b32 s%d, 0" % (89 + i))
        k("s_memtime s[62:63]\ns_waitcnt lgkmcnt(0)\ns_mov_b32 s88, s62")
    def stamp(i):
        if cut == i:
            k("s_branch L_cutend" + sfx)
        if stamps and i < 10:
            k("s_memtime s[62:63]\ns_waitcnt lgkmcnt(0)\ns_sub_u32 s63, s62, s88\ns_add_u32 s%d, s%d, s63\ns_mov_b32 s88, s62" % (89 + i, 89 + i))
    def W(tau, b): return ur(128 + 8 * (tau * 8 + b), 8)
    def smf(acc, a, b): return "v_smfmac_f32_16x16x64_bf16 %s, %s, %s, v%d" % (vr(acc, 4), vr(a, 4), b, vIdx)
    def trM(b): return ["ds_read_b64_tr_b16 %s, v%d offset:%d" % (vr(vA0 + 4 * b, 2), vTrM, b * 1024),
                        "ds_read_b64_tr_b16 %s, v%d offset:%d" % (vr(vA0 + 4 * b + 2, 2), vM2, b * 1024)]
    gmark(k, 2)
    mark(3)
    k("s_memtime s[60:61]\ns_waitcnt lgkmcnt(0)\ns_mov_b32 s59, s60")
    k.label("L_step" + sfx)
    steplog(k, 124, 125, 0xF100000)
    for b in range(3):
        for x in trM(b): k(x)
    vKp = 92
    k("buffer_store_dwordx4 %s, v%d, %s, s%d offen sc1" % (vr(vKp, 4), vKpub, WSR, sKMp) if not (nopub or noimg) else "s_nop 0")
    k("s_cmp_ge_u32 s%d, 4\ns_cbranch_scc0 L_kvnotready%s" % (sFlagVal, sfx))
    k.label("L_kvready" + sfx)
    kvl = kv_loads()
    if nokv: kvl = ["s_nop 0"] * 5
    k(kvl.pop(2))
    k(kvl.pop(0))
    for b in range(8):
        k("s_waitcnt lgkmcnt(%d)" % (4 if b <= 5 else (2 if b == 6 else 0)))
        nx = trM(b + 3) if b + 3 < 8 else []
        k(smf(vACC + 0, vA0 + 4 * b, W(0, b)))
        if nx: k(nx[0])
        k(smf(vACC + 4, vA0 + 4 * b, W(1, b)))
        if nx: k(nx[1])
        if b in (1, 3, 5) and kvl: k(kvl.pop(0))
    assert not kvl
    stamp(0)
    order = [(t, ks) for ks in range(4) for t in range(2)]
    def halfsum(a): return ["v_add_f32 v%d, v%d, v%d" % (a, a, a + 2), "v_add_f32 v%d, v%d, v%d" % (a + 1, a + 1, a + 3), "v_cvt_pk_bf16_f32 v%d, v%d, v%d" % (a + 2, a, a + 1)]
    def kxread(i, dst):
        t, ks = order[i]
        return "ds_read_b128 %s, v%d offset:%d" % (vr(dst, 4), vL16, L_KX + (t * 4 + ks) * 1024)
    kx = [108, 112, 116, 120, 36, 40, 44, 48]
    slow = ["s_add_u32 s%d, s%d, 4096" % (sFKV, sFKV), "v_mov_b32 v127, s%d" % sFKV, "v_mov_b32 v124, s%d" % sFKMq, "v_mov_b32 v125, 4",
            "s_mov_b64 exec, 1", "buffer_load_dword v%d, v127, %s, 0 offen sc1" % (vFl, WSR),
            "s_mov_b64 exec, s[%d:%d]" % (sExF, sExF + 1), "buffer_store_dword v125, v124, %s, 0 offen sc1" % WSR, "s_mov_b64 exec, -1"]
    prim = []
    for b in range(8):
        prim += [smf(vACC + 8, vA0 + 4 * b, W(2, b)), smf(vACC + 12, vA0 + 4 * b, W(3, b))]
    fill = slow + halfsum(vACC + 0) + ["ds_write_b32 v%d, v%d offset:%d" % (vQW, vACC + 2, L_QT)] + halfsum(vACC + 4) + ["ds_write_b32 v%d, v%d offset:%d" % (vQW, vACC + 6, L_QT + 256)]
    for i, p in enumerate(prim):
        k(p)
        n = (2, 2, 2, 0, 2, 1, 0, 2, 2, 2, 2, 0, 0, 0, 0, 0)[i]
        for _ in range(n):
            if fill: k(fill.pop(0))
    assert not fill
    stamp(1)
    def vsm(b): return [smf(vACC + 16, vA0 + 4 * b, W(4, b)), smf(vACC + 20, vA0 + 4 * b, W(5, b))]
    kwr = ["ds_write_b32 v%d, v%d offset:%d" % (vKW, vACC + 10, L_KT), "ds_write_b32 v%d, v%d offset:%d" % (vKW, vACC + 14, L_KT + 512)]
    v0 = vsm(0)
    k(v0[0]); k(kxread(0, kx[0])); k(kxread(1, kx[1])); k(v0[1]); k(kxread(2, kx[2])); k(kxread(3, kx[3]))
    k("s_nop 1")
    for x in halfsum(vACC + 8): k(x)
    k(kwr[0])
    for x in halfsum(vACC + 12): k(x)
    k(kwr[1])
    for x in vsm(1) + vsm(2): k(x)
    k("s_waitcnt lgkmcnt(0)\ns_barrier")
    qreads = []
    for ks in range(4):
        qreads += ["ds_read_b64_tr_b16 %s, v%d offset:%d" % (vr(vQB + 4 * ks, 2), vTrQ, L_QT + ks * 512),
                   "ds_read_b64_tr_b16 %s, v%d offset:%d" % (vr(vQB + 4 * ks + 2, 2), vTrQ, L_QT + ks * 512 + 256)]
    vKA2 = vACC
    kar = []
    for ks in range(4):
        kar += ["ds_read_b64_tr_b16 %s, v%d offset:%d" % (vr(vKA2 + 4 * ks, 2), vTrK, L_KT + ks * 1024),
                "ds_read_b64_tr_b16 %s, v%d offset:%d" % (vr(vKA2 + 4 * ks + 2, 2), vTrK, L_KT + ks * 1024 + 512)]
    out = []
    def lwait(tag):
        if tag not in out: return
        idx = max(i for i, t in enumerate(out) if t == tag)
        k("s_waitcnt lgkmcnt(%d)" % min(15, len(out) - idx - 1))
        del out[:idx + 1]
    rest = []
    for b in range(3, 8): rest += vsm(b)
    reads = [(x, "q%d" % (i // 2)) for i, x in enumerate(qreads)] + [(x, "ka") for x in kar]
    late = [(kxread(4 + i, kx[4 + i]), "kx%d" % (4 + i)) for i in range(4)]
    for i, p in enumerate(rest):
        k(p)
        for _ in range(2):
            if reads:
                x, t = reads.pop(0); k(x); out.append(t)
        if i >= 7:
            for _ in range(2):
                if late and not reads:
                    x, t = late.pop(0); k(x); out.append(t)
    for x, t in reads + late: k(x); out.append(t)
    stamp(2)
    vS = 52
    def sx(i):
        t, ks = order[i]
        c = "0" if ks == 0 else vr(vS + 4 * t, 4)
        return "v_mfma_f32_16x16x32_bf16 %s, %s, %s, %s" % (vr(vS + 4 * t, 4), vr(kx[i], 4), vr(vQB + 4 * ks, 4), c)
    def woread(dst, t, b):
        return ["ds_read_b128 %s, v%d offset:%d" % (vr(dst, 4), vWO, b * 16384 + (t * 2) * 1024),
                "ds_read_b128 %s, v%d offset:%d" % (vr(dst + 4, 4), vWO, b * 16384 + (t * 2 + 1) * 1024)]
    wolist = [(t, b) for t in range(8) for b in range(2)]
    slots = [36, 44, 108, 116, 52, 60]
    ones = vACC + 12
    vPx = vQB + 8; vPm = vQB + 12; vVm0 = vQB + 14; vVm1 = 124
    vepi = ["v_add_f32 v%d, v%d, v%d" % (vACC + 16, vACC + 16, vACC + 18), "v_add_f32 v%d, v%d, v%d" % (vACC + 17, vACC + 17, vACC + 19),
            "v_add_f32 v%d, v%d, v%d" % (vACC + 20, vACC + 20, vACC + 22), "v_add_f32 v%d, v%d, v%d" % (vACC + 21, vACC + 21, vACC + 23),
            "v_cvt_pk_bf16_f32 v%d, v%d, v%d" % (vACC + 18, vACC + 16, vACC + 17), "v_cvt_pk_bf16_f32 v%d, v%d, v%d" % (vVm1, vACC + 20, vACC + 21),
            "ds_write_b32 v%d, v%d offset:%d" % (vKW, vACC + 18, L_KT + 4), "ds_write_b32 v%d, v%d offset:%d" % (vKW, vVm1, L_KT + 512 + 4),
            "v_mov_b32 v%d, 0" % (vVm1 + 1)]
    lwait("q0"); k(sx(0)); k(sx(1))
    lwait("q1"); k(sx(2)); k(sx(3))
    lwait("ka")
    w23 = woread(slots[2], *wolist[2]) + woread(slots[3], *wolist[3])
    for ks in range(4):
        if ks == 1: lwait("q2")
        c = "0" if ks == 0 else vr(vS + 8, 4)
        k("v_mfma_f32_16x16x32_bf16 %s, %s, %s, %s" % (vr(vS + 8, 4), vr(vKA2 + 4 * ks, 4), vr(vQB + 4 * ks, 4), c))
        if ks >= 1:
            for _ in range(3):
                if vepi:
                    f = vepi.pop(0); k(f)
                    if f.startswith("ds_"): out.append("vw")
        x = w23.pop(0); k(x); out.append("wo23")
    lwait("q3")
    onesl = ["v_mov_b32 v%d, 0x3f803f80" % (ones + i) for i in range(4)]
    for i in range(4, 8):
        lwait("kx%d" % i)
        k(sx(i))
        if i == 4: k(onesl[0]); k(onesl[1])
        if i == 5: k(onesl[2]); k(onesl[3])
    assert not vepi
    vVXf = vQB
    k("ds_read_b128 %s, v%d offset:%d" % (vr(vVXf, 4), vKXw, L_VX))
    k("ds_read_b128 %s, v%d offset:%d" % (vr(vVXf + 4, 4), vKXw, L_VX + 1024))
    k("v_mov_b32 v%d, v%d" % (vVm0, vACC + 18))
    k("v_mov_b32 v%d, 0\nv_mov_b32 v%d, 0" % (vPm + 1, vVm0 + 1))
    k("s_nop 2")
    stamp(10)
    vals = [vS + i for i in range(10)]
    m = 126; m2 = 127
    k("v_max3_f32 v%d, v%d, v%d, v%d" % (m, vals[0], vals[1], vals[2]))
    k("v_max3_f32 v%d, v%d, v%d, v%d" % (m2, vals[3], vals[4], vals[5]))
    k("v_max3_f32 v%d, v%d, v%d, v%d" % (m, m, vals[6], vals[7]))
    k("v_max3_f32 v%d, v%d, v%d, v%d" % (m2, m2, vals[8], vals[9]))
    k("v_max_f32 v%d, v%d, v%d" % (m, m, m2))
    k("v_mov_b32 v%d, v%d" % (m2, m))
    wo_pre = woread(slots[0], *wolist[0]) + woread(slots[1], *wolist[1]) + woread(slots[4], *wolist[4]) + woread(slots[5], *wolist[5])
    k(wo_pre.pop(0)); k(wo_pre.pop(0))
    k("v_permlane32_swap_b32 v%d, v%d\nv_max_f32 v%d, v%d, v%d\nv_mov_b32 v%d, v%d" % (m, m2, m, m, m2, m2, m))
    k(wo_pre.pop(0)); k(wo_pre.pop(0))
    k("v_permlane16_swap_b32 v%d, v%d\nv_max_f32 v%d, v%d, v%d" % (m, m2, m, m, m2))
    k("v_mul_f32 v%d, s%d, v%d" % (m, sC, m))
    k("v_mov_b32 v%d, s%d" % (m2, sC))
    for i in range(5):
        k("v_pk_fma_f32 %s, %s, v[126:127], v[126:127] op_sel:[0,1,0] op_sel_hi:[1,1,0] neg_lo:[0,0,1] neg_hi:[0,0,1]" % (vr(vals[2 * i], 2), vr(vals[2 * i], 2)))
    stamp(13)
    for v in vals: k("v_exp_f32 v%d, v%d" % (v, v))
    stamp(11)
    k("v_cvt_pk_bf16_f32 v%d, v%d, v%d" % (vPx + 0, vals[0], vals[1]))
    k("v_cvt_pk_bf16_f32 v%d, v%d, v%d" % (vPx + 1, vals[2], vals[3]))
    k("v_cvt_pk_bf16_f32 v%d, v%d, v%d" % (vPx + 2, vals[4], vals[5]))
    k("v_cvt_pk_bf16_f32 v%d, v%d, v%d" % (vPx + 3, vals[6], vals[7]))
    k("v_cvt_pk_bf16_f32 v%d, v%d, v%d" % (vPm, vals[8], vals[9]))
    vO = vACC + 16; vSum = vACC + 8
    k("s_waitcnt lgkmcnt(4)")
    k("v_mfma_f32_16x16x32_bf16 %s, %s, %s, 0" % (vr(vSum, 4), vr(ones, 4), vr(vPx, 4)))
    k(wo_pre.pop(0)); k(wo_pre.pop(0))
    k("v_mfma_f32_16x16x32_bf16 %s, %s, %s, 0" % (vr(vO, 4), vr(vVXf, 4), vr(vPx, 4)))
    k(wo_pre.pop(0)); k(wo_pre.pop(0))
    k("v_mfma_f32_16x16x16_bf16 %s, %s, %s, %s" % (vr(vSum, 4), vr(ones, 2), vr(vPm, 2), vr(vSum, 4)))
    k("v_mfma_f32_16x16x32_bf16 %s, %s, %s, 0" % (vr(vO + 4, 4), vr(vVXf + 4, 4), vr(vPx, 4)))
    k("v_mfma_f32_16x16x16_bf16 %s, %s, %s, %s" % (vr(vO, 4), vr(vVm0, 2), vr(vPm, 2), vr(vO, 4)))
    k("v_mfma_f32_16x16x16_bf16 %s, %s, %s, %s" % (vr(vO + 4, 4), vr(vVm1, 2), vr(vPm, 2), vr(vO + 4, 4)))
    assert not wo_pre
    stamp(12)
    k("s_cmp_eq_u32 s%d, %d\ns_cbranch_scc1 L_chain_fin%s" % (S_STEP, nsteps - 1, sfx))
    k("s_and_b32 s%d, s%d, 1" % (sTag, S_STEP))
    for x in zero(68, 8): k(x)
    k("v_rcp_f32 v126, v%d" % vSum)
    for x in zero(80, 4) + zero(92, 8): k(x)
    for i in range(4):
        k("v_pk_mul_f32 %s, %s, v[126:127] op_sel_hi:[1,0]" % (vr(vO + 2 * i, 2), vr(vO + 2 * i, 2)))
    vOc = 100
    for i in range(4): k("v_cvt_pk_bf16_f32 v%d, v%d, v%d" % (vOc + i, vO + 2 * i, vO + 2 * i + 1))
    for i in range(4): k("ds_write_b32 v%d, v%d offset:%d" % (vOW, vOc + i, L_OX + 16 * i))
    for x in zero(76, 4) + zero(84, 8): k(x)
    k("s_waitcnt lgkmcnt(0)\ns_barrier")
    stamp(3)
    accs = [68, 72, 76, 80, 84, 88, 92, 96]
    vAo = 100
    k("ds_read_b128 %s, v%d offset:%d" % (vr(vAo, 4), vOR, L_OX))
    k("ds_read_b128 %s, v%d offset:%d" % (vr(vAo + 4, 4), vOR, L_OX + 128))
    out = ["ao0", "ao1"]
    ns = len(slots)
    def epi(j):
        a = accs[4 * j:4 * j + 4]
        G = 124 if j == 0 else accs[0]
        if j == 0:
            L = []
            for t in range(4): L += ["v_add_f32 v%d, v%d, v%d" % (a[t], a[t], a[t] + 2), "v_add_f32 v%d, v%d, v%d" % (a[t] + 1, a[t] + 1, a[t] + 3)]
        else:
            L = ["v_pk_add_f32 %s, %s, %s" % (vr(a[t], 2), vr(a[t], 2), vr(a[t] + 2, 2)) for t in range(4)]
        L += ["v_cvt_pk_bf16_f32 v%d, v%d, v%d" % (G + t, a[t], a[t] + 1) for t in range(4)]
        L += ["s_nop 0",
              "v_permlane32_swap_b32 v%d, v%d" % (G + 0, G + 2), "v_permlane32_swap_b32 v%d, v%d" % (G + 1, G + 3),
              "s_nop 1",
              "v_permlane16_swap_b32 v%d, v%d" % (G + 0, G + 1), "v_permlane16_swap_b32 v%d, v%d" % (G + 2, G + 3),
              "v_and_or_b32 v%d, v%d, -2, s%d" % (G, G, sTag),
              "buffer_store_dwordx4 %s, v%d, %s, s%d offen%s" % (vr(G, 4), vPst, WSR, sPst + j, PL)]
        return L
    pend = []
    def need(tag):
        if tag in out:
            idx = max(j for j, x in enumerate(out) if x == tag)
            k("s_waitcnt lgkmcnt(%d)" % (len(out) - idx - 1)); del out[:idx + 1]
    for i in range(16):
        t, b = wolist[i]
        need("ao%d" % b)
        need(i)
        k("v_smfmac_f32_16x16x64_bf16 %s, %s, %s, v%d" % (vr(accs[t], 4), vr(vAo + 4 * b, 4), vr(slots[i % ns], 8), vIdx))
        if i + ns < 16:
            for x in woread(slots[i % ns], *wolist[i + ns]): k(x)
            out += [i + ns, i + ns]
        if i == 10: pend += epi(0)
        for _ in range(4):
            if pend: k(pend.pop(0))
    for x in pend: k(x)
    k("s_nop 4")
    for x in epi(1): k(x)
    stamp(4)
    k("s_waitcnt vmcnt(2)")
    for x in kv_writes(): k(x)
    k("v_readfirstlane_b32 s%d, v%d" % (sFlagVal, vFl))
    F("""
    s_add_u32 s{T}, s{st}, 1
    s_and_b32 s{T1}, s{T}, 3
    s_lshl_b32 s{T1}, s{T1}, 13
    s_add_u32 s{T2}, s{T1}, s{mb}
    s_add_u32 s{T}, s{st}, 3
    s_and_b32 s{T1}, s{T}, 3
    s_lshl_b32 s{clr}, s{T1}, 13
    s_add_u32 s{clr}, s{clr}, s{mb}
    s_lshl_b32 s{T}, s{H}, 8
    s_add_u32 s{mst}, s{T2}, s{T}
    s_add_u32 s{clr}, s{clr}, s{T}
    s_lshl_b32 s{T}, s{W}, 6
    s_add_u32 s{clr}, s{clr}, s{T}
    s_lshl_b32 s{T}, s{W}, 11
    s_add_u32 s{mld}, s{T2}, s{T}
    """, st=S_STEP, clr=sClr, mb=sMbase, mst=sMst, mld=sMld)
    vSel = 68
    PB = 36
    def pb_loads():
        k("buffer_load_dwordx4 %s, v%d, %s, s%d offen sc1" % (vr(PB, 4), vPld, WSR, sPld))
        k("buffer_load_dwordx4 %s, v%d, %s, s%d offen sc1" % (vr(PB + 4, 4), vPld, WSR, sPld2))
    def selbuild():
        k("""
        v_bfe_u32 v76, v{l16}, 6, 2
        v_bfe_u32 v77, v{l16}, 4, 1
        v_lshlrev_b32 v77, 4, v77
        v_mov_b32 v78, 0x3f80
        v_lshlrev_b32 v77, v77, v78
        v_bfe_u32 v78, v{l16}, 5, 1
        v_cmp_eq_u32 vcc, 0, v78
        v_mov_b32 v79, 0
        s_nop 0
        v_cndmask_b32 v77, v79, v77, vcc
        """.format(l16=vL16))
        for i in range(4):
            k("v_cmp_eq_u32 vcc, %d, v76\nv_mov_b32 v%d, 0\ns_nop 0\nv_cndmask_b32 v%d, v79, v77, vcc" % (i, vSel + i, vSel + i))
    def clearslot():
        k("v_mov_b64 v[96:97], -1\nv_mov_b64 v[98:99], -1\ns_mov_b64 exec, 15")
        k("buffer_store_dwordx4 v[96:99], v%d, %s, s%d offen%s\ns_mov_b64 exec, -1" % (vL16, WSR, sClrNow, PL))
    if natural:
        selbuild()
        if ackB: k("s_waitcnt vmcnt(0)")
        if d1: k.nop(d1)
        if not probe: stamp(9)
        pb_loads()
    elif earlyB:
        if d1: k.nop(d1)
        if not probe: stamp(9)
        pb_loads()
        selbuild()
        clearslot()
    else:
        selbuild()
        clearslot()
        if not probe: stamp(9)
        if waitack: k("s_waitcnt vmcnt(0)")
        if d1: k.nop(d1)
        pb_loads()
    Lpb = k.uid("L_pollB"); Lpb1 = k.uid("L_pollB1")
    k("s_branch %s" % Lpb1)
    k.label(Lpb)
    pb_loads()
    k("s_nop 0") if earlyB else None
    k.label(Lpb1)
    k("s_waitcnt vmcnt(0)")
    k("v_mfma_f32_16x16x32_bf16 v[72:75], %s, %s, 0" % (vr(vSel, 4), vr(PB, 4)))
    k("v_xor_b32 v76, s%d, v%d" % (sTag, PB))
    k("v_mfma_f32_16x16x32_bf16 v[72:75], %s, %s, v[72:75]" % (vr(vSel, 4), vr(PB + 4, 4)))
    k("v_xor_b32 v77, s%d, v%d\nv_or_b32 v76, v76, v77" % (sTag, PB + 4))
    k("v_and_b32 v76, 1, v76\nv_cmp_ne_u32 vcc, 0, v76")
    if stamps or marks: k("s_add_u32 s100, s100, 63")
    spin_check(k, abort)
    k("s_cbranch_vccnz %s" % Lpb if not nohop else "s_nop 0")
    stamp(5)
    if not stamps: k("s_nop 0")
    k("v_add_f32_dpp v72, v72, v72 row_ror:4 row_mask:0xf bank_mask:0xf")
    k("v_add_f32_dpp v73, v73, v73 row_ror:4 row_mask:0xf bank_mask:0xf")
    k("s_nop 0")
    k("v_add_f32_dpp v72, v72, v72 row_ror:8 row_mask:0xf bank_mask:0xf")
    k("v_add_f32_dpp v73, v73, v73 row_ror:8 row_mask:0xf bank_mask:0xf")
    k("v_cvt_pk_bf16_f32 v76, v72, v73")
    k("s_nop 1")
    k("v_mov_b32_dpp v77, v76 quad_perm:[1,0,3,2] row_mask:0xf bank_mask:0xf")
    k("v_mov_b32 v78, v76")
    k("s_nop 0")
    k("v_mov_b32 v79, v77")
    k("v_permlane16_swap_b32 v76, v78")
    k("s_nop 0")
    k("v_permlane16_swap_b32 v77, v79")
    k("s_mov_b32 exec_lo, 5\ns_mov_b32 exec_hi, 5")
    k("v_min_u32 v76, -2, v76")
    k("buffer_store_dwordx4 v[76:79], v%d, %s, s%d offen%s" % (vMst, WSR, sMst, PL))
    k("s_mov_b64 exec, -1")
    if not probe: stamp(6)
    k.label("L_cutend" + sfx)
    if cut < 99:
        k("s_and_b32 s%d, s%d, 1" % (sTag, S_STEP))
        k("s_cmp_eq_u32 s%d, %d\ns_cbranch_scc1 L_chain_fin%s" % (S_STEP, nsteps - 1, sfx))
    k("""
    s_add_u32 s{st}, s{st}, 1
    s_add_u32 s{kv}, s{kv}, {kvs}
    s_mov_b32 s{kmp}, s{km}
    s_add_u32 s{km}, s{km}, {kms}
    s_mov_b32 s{fq}, s{fp}
    s_mov_b32 s{fp}, s{fm}
    s_add_u32 s{fm}, s{fm}, 4096
    """.format(fp=sFKMp, fq=sFKMq, kmp=sKMp, st=S_STEP, kv=sKV, km=sKM, kvs=16384, kms=4096, fm=sFKM))
    for x in zero(vACC, 24): k(x)
    k("v_xor_b32 v%d, 128, v%d" % (vM2, vTrM))
    if cut < 99:
        k("s_waitcnt lgkmcnt(0)\ns_barrier\ns_branch L_step" + sfx)
    if natural: clearslot()
    if waitackC: k("s_waitcnt vmcnt(0)")
    if d2: k.nop(d2)
    Lg2 = k.uid("L_pollC")
    k.label(Lg2)
    for i in range(2):
        k("buffer_load_dwordx4 %s, v%d, %s, s%d offen offset:%d sc1" % (vr(36 + 4 * i, 4), vL16, WSR, sMld, i * 1024))
    k("s_waitcnt vmcnt(0)")
    k("v_cmp_eq_u32 vcc, -1, v36\nv_cmp_eq_u32 s[46:47], -1, v40\ns_or_b64 vcc, vcc, s[46:47]")
    if stamps or marks: k("s_add_u32 s101, s101, 63")
    spin_check(k, abort)
    k("s_cbranch_vccnz %s" % Lg2 if not nohop else "s_nop 0")
    if probe:
        stamp(7)
        for i in range(2):
            k("buffer_load_dwordx4 %s, v%d, %s, s%d offen offset:%d sc1" % (vr(36 + 4 * i, 4), vL16, WSR, sMld, i * 1024))
        k("s_waitcnt vmcnt(0)")
        stamp(6)
        for i in range(2):
            k("buffer_load_dwordx4 %s, v%d, %s, s%d offen offset:%d sc1" % (vr(36 + 4 * i, 4), vL16, WSR, sMld, i * 1024))
        k("s_waitcnt vmcnt(0)")
        stamp(9)
    for i in range(2):
        k("ds_write_b128 v%d, %s offset:%d" % (vMlds, vr(36 + 4 * i, 4), L_MEMT + i * 1024))
    k("ds_read_b128 v[92:95], v%d offset:%d" % (vKpub, L_KT))
    stamp(7)
    k("s_waitcnt lgkmcnt(0)\ns_barrier")
    stamp(8)
    k("s_branch L_step" + sfx)
    k.label("L_kvnotready" + sfx)
    k("s_cmp_ge_u32 s%d, %d\ns_cbranch_scc1 L_kvready%s" % (S_STEP, nsteps - 1, sfx))
    flag_spin(sFKV, sFlagVal)
    k("s_branch L_kvready" + sfx)
    k.label("L_chain_fin" + sfx)
    k("s_memtime s[60:61]\ns_waitcnt lgkmcnt(0)\ns_sub_u32 s59, s60, s59")
    k("s_waitcnt vmcnt(0) lgkmcnt(0)\ns_barrier")
    k("v_mov_b32 v124, s%d\nv_mov_b32 v125, 1\ns_mov_b64 exec, 1" % sFKMp)
    k("buffer_atomic_add v125, v124, %s, 0 offen sc1\ns_mov_b64 exec, -1" % WSR)
    k("ds_read_b128 v[72:75], v%d offset:%d\ns_waitcnt lgkmcnt(0)" % (vKpub, L_KT))
    k("buffer_store_dwordx4 v[72:75], v%d, %s, s%d offen sc1\ns_waitcnt vmcnt(0)" % (vKpub, WSR, sKM))
    k("v_mov_b32 v124, s%d\nv_mov_b32 v125, 1\ns_mov_b64 exec, 1" % sFKM)
    k("buffer_atomic_add v125, v124, %s, 0 offen sc1\ns_mov_b64 exec, -1\ns_waitcnt vmcnt(0)" % WSR)
    if dump:
        if not stamps:
            for i in range(11 if marks else 13): k("s_mov_b32 s%d, 0" % (89 + i))
        k("s_mov_b32 s99, s59")
        if marks:
            mark(4)
            for i in range(5): k("s_mov_b32 s%d, s%d" % (89 + i, 52 + i))
        k("s_lshl_b32 s%d, s%d, 5\ns_add_u32 s%d, s%d, s%d" % (T, S_L, T, T, S_RANK))
        k("s_lshl_b32 s%d, s%d, 2\ns_add_u32 s%d, s%d, s%d\ns_lshl_b32 s%d, s%d, 6" % (T, T, T, T, S_WAVE, T, T))
        k("s_add_u32 s%d, s%d, 0x%x" % (T, T, 0xF000000))
        for i in range(13):
            k("v_mov_b32 v%d, s%d" % (40 + i, 89 + i))
        k("v_mov_b32 v124, s%d" % T)
        k("s_mov_b64 exec, 1")
        for i in range(4):
            k("buffer_store_dwordx4 %s, v124, %s, 0 offen offset:%d" % (vr(40 + 4 * i, 4), WSR, 16 * i))
        k("s_waitcnt vmcnt(0)")
    gmark(k, 3)
    gdump(k)
    k("s_branch L_end")
```

```python
import sys, importlib
import gen, chain
from asmlib import check_hazards
def make(name, **kw):
    chain.DEV["marks"] = False
    t = gen.gen(enable=dict(chain_kw=kw))
    assert not check_hazards(t, verbose=False)
    open("var/%s.s" % name, "w").write(t)
import os
os.makedirs("var", exist_ok=True)
if __name__ == "__main__":
    make("q_def")
    make("q_ackB", ackB=True)
    make("q_d1", d1=10)
    make("q_d2", d2=8)
```

```python
from asmlib import *
from layout import *

S_WS   = 4
S_SRD2 = 8
S_SRD3 = 12
S_WAVE = 16
S_RANK = 17
S_XCC  = 18
S_L    = 19
S_PTR  = 20
P_X, P_MEM, P_WQ, P_WK, P_WV, P_WO, P_WG, P_WU, P_WD, P_OUT, P_DBG, P_WSP = [20 + 2 * i for i in range(12)]
S_FAST = 44
S_T0   = 45
S_SPIN = 64
S_STEP = 65

L_MEMT = 0; L_KX = 0x2000; L_VX = 0x4000; L_QT = 0x6000; L_OX = 0x6000; L_KT = 0x7000; L_WO = 0x8000
OX_ROW = 272

def build_srd(k, d, ptr, nbytes):
    k("s_mov_b32 s%d, s%d" % (d, ptr))
    k("s_and_b32 s%d, s%d, 0xffff" % (d + 1, ptr + 1))
    k("s_mov_b32 s%d, 0x%x" % (d + 2, nbytes))
    k("s_mov_b32 s%d, 0x20000" % (d + 3))

def spin_check(k, abort):
    k("s_sub_u32 s%d, s%d, 1" % (S_SPIN, S_SPIN))
    k("s_cbranch_scc1 %s" % abort)

DEV = {"marks": False, "chsleep": 4}
S_G = 102 - 2
def gmark(k, i):
    if DEV["marks"]:
        k("s_memrealtime s[62:63]\ns_waitcnt lgkmcnt(0)\ns_mov_b32 s%d, s62" % (88 + i))
def gdump(k):
    if DEV["marks"]:
        L = k.uid("L_nodump")
        k("s_cmp_eq_u32 s%d, 0\ns_cbranch_scc0 %s" % (S_WAVE, L))
        k("s_lshl_b32 s62, s100, 6\ns_add_u32 s62, s62, 0x%x" % 0xF000000)
        for i in range(12): k("v_mov_b32 v%d, s%d" % (40 + i, 88 + i))
        k("v_mov_b32 v39, s62\ns_mov_b64 exec, 1")
        for i in range(3): k("buffer_store_dwordx4 v[%d:%d], v39, s[4:7], 0 offen offset:%d" % (40 + 4 * i, 43 + 4 * i, 16 * i))
        k("s_waitcnt vmcnt(0)\ns_mov_b64 exec, -1")
        k.label(L)
def steplog(k, vt0, vt1, base):
    if DEV["marks"]:
        L = k.uid("L_nolog")
        k("s_cmp_eq_u32 s%d, 0\ns_cbranch_scc0 %s" % (S_WAVE, L))
        k("s_memrealtime s[62:63]\ns_lshl_b32 s61, s100, 10\ns_lshl_b32 s60, s%d, 2\ns_add_u32 s61, s61, s60\ns_add_u32 s61, s61, 0x%x\ns_waitcnt lgkmcnt(0)" % (S_STEP, base))
        k("v_mov_b32 v%d, s61\nv_mov_b32 v%d, s62\ns_mov_b64 exec, 1" % (vt0, vt1))
        k("buffer_store_dword v%d, v%d, s[4:7], 0 offen\ns_mov_b64 exec, -1" % (vt1, vt0))
        k.label(L)

SCALE_LOG2E = 0.08838834764831845 * 1.4426950408889634

import struct
def f32(x): return struct.unpack("<I", struct.pack("<f", x))[0]


def interleave(k, prim, fill, per=2, start=0):
    fill = list(fill)
    for i, p in enumerate(prim):
        k(p)
        if i >= start:
            for _ in range(per):
                if fill: k(fill.pop(0))
    for f in fill: k(f)


def chain_role(k, sfx='', gsync_fn=None, w0wait_fn=None, dump=False, stamps=False, nsteps=64, fast=True, d1=0, d2=0, probe=False, nopub=False, nokv=False, waitack=True, waitackC=True, marks=False, noimg=False, noatom=False, flagstore=True, earlyB=True, natural=True, ackB=False, clrfirst=False, nohop=False, cut=99):
    T = S_T0
    abort = "L_abort"
    WSR = "s[%d:%d]" % (S_WS, S_WS + 3)
    PL = "" if fast else " sc1"
    vL = 1
    vIdx, vTrM, vQW, vTrQ, vKW, vTrK, vL16, vOW, vOR, vWO, vPst, vMst, vMlds, vKXw, vKpub, _vneg = range(2, 18)
    vKn = 18
    vVn = 26
    vFl = 34
    vPld = 35
    t0, t1, t2, t3 = 124, 125, 126, 127
    def F(s, **kw):
        d = dict(t0=t0, t1=t1, t2=t2, t3=t3, L=vL, T=T, T1=T + 1, T2=T + 2, W=S_WAVE, H=S_RANK, LY=S_L, l16=vL16)
        d.update(kw); k(s.format(**d))
    if marks: k("s_mov_b32 s100, 0\ns_mov_b32 s101, 0")
    def mark(i):
        if marks: k("s_memrealtime s[60:61]\ns_waitcnt lgkmcnt(0)\ns_mov_b32 s%d, s60" % (52 + i))
    mark(0)
    F("v_and_b32 v{L}, 63, v0\nv_lshlrev_b32 v{l16}, 4, v{L}")
    F("""
    v_and_b32 v{t0}, 2, v{L}
    v_cmp_eq_u32 vcc, 0, v{t0}
    v_mov_b32 v{t1}, 0xeeee
    v_mov_b32 v{t2}, 0x4444
    v_cndmask_b32 v{a}, v{t1}, v{t2}, vcc
    """, a=vIdx)
    F("""
    v_lshrrev_b32 v{t0}, 4, v{L}
    v_bfe_u32 v{t1}, v{L}, 2, 2
    v_and_b32 v{t2}, 3, v{L}
    v_lshlrev_b32 v{t3}, 8, v{t0}
    v_lshl_add_u32 v{t3}, v{t1}, 5, v{t3}
    v_lshl_add_u32 v{t3}, v{t2}, 3, v{t3}
    v_and_b32 v{t0}, 1, v{t0}
    v_lshlrev_b32 v{t0}, 7, v{t0}
    v_xor_b32 v{a}, v{t3}, v{t0}
    """, a=vTrM)
    F("""
    v_and_b32 v{t0}, 15, v{L}
    s_lshl_b32 s{T}, s{W}, 5
    v_add_u32 v{t0}, s{T}, v{t0}
    v_lshlrev_b32 v{t1}, 4, v{t0}
    v_lshrrev_b32 v{t2}, 4, v{L}
    v_lshl_add_u32 v{a}, v{t2}, 2, v{t1}
    v_lshlrev_b32 v{t1}, 5, v{t0}
    v_lshl_add_u32 v{t1}, v{t2}, 3, v{t1}
    v_bfe_u32 v{t2}, v{L}, 3, 1
    v_lshlrev_b32 v{t2}, 7, v{t2}
    v_xor_b32 v{b}, v{t1}, v{t2}
    """, a=vQW, b=vKW)
    F("""
    v_lshrrev_b32 v{t0}, 4, v{L}
    v_bfe_u32 v{t1}, v{L}, 2, 2
    v_lshl_add_u32 v{t1}, v{t0}, 2, v{t1}
    v_lshlrev_b32 v{t2}, 4, v{t1}
    v_and_b32 v{t3}, 1, v{L}
    v_lshl_add_u32 v{a}, v{t3}, 3, v{t2}
    v_lshlrev_b32 v{t2}, 5, v{t1}
    v_and_b32 v{t3}, 3, v{L}
    v_lshl_add_u32 v{t2}, v{t3}, 3, v{t2}
    v_lshrrev_b32 v{t0}, 1, v{t0}
    v_lshlrev_b32 v{t0}, 7, v{t0}
    v_xor_b32 v{b}, v{t2}, v{t0}
    """, a=vTrQ, b=vTrK)
    F("""
    v_and_b32 v{t0}, 7, v{L}
    v_mul_u32_u24 v{t0}, {row}, v{t0}
    v_lshrrev_b32 v{t1}, 4, v{L}
    v_lshl_add_u32 v{t0}, v{t1}, 2, v{t0}
    s_lshl_b32 s{T}, s{W}, 6
    v_add_u32 v{a}, s{T}, v{t0}
    v_bfe_u32 v{t0}, v{L}, 2, 2
    v_lshlrev_b32 v{t0}, 1, v{t0}
    v_and_b32 v{t2}, 1, v{L}
    v_add_u32 v{t0}, v{t0}, v{t2}
    v_mul_u32_u24 v{t0}, {row}, v{t0}
    v_lshl_add_u32 v{t0}, v{t1}, 5, v{t0}
    v_bfe_u32 v{t1}, v{L}, 1, 1
    v_lshl_add_u32 v{b}, v{t1}, 4, v{t0}
    """, a=vOW, b=vOR, row=OX_ROW)
    F("""
    s_lshl_b32 s{T}, s{W}, 15
    s_add_u32 s{T}, s{T}, 0x{wo:x}
    v_add_u32 v{a}, s{T}, v{l16}
    s_lshl_b32 s{T}, s{W}, 11
    v_add_u32 v{kx}, s{T}, v{l16}
    v_and_b32 v{t0}, 15, v{L}
    v_lshrrev_b32 v{t1}, 4, v{L}
    v_lshlrev_b32 v{t2}, 4, v{t0}
    v_lshl_add_u32 v{p}, v{t1}, 13, v{t2}
    s_lshl_b32 s{T1}, s{W}, 10
    v_add_u32 v{kp}, s{T1}, v{l16}
    v_bfe_u32 v{t2}, v{L}, 1, 1
    v_lshlrev_b32 v{t2}, 5, v{t2}
    v_lshrrev_b32 v{t0}, 5, v{L}
    v_lshl_add_u32 v{t2}, v{t0}, 4, v{t2}
    s_lshl_b32 s{T1}, s{W}, 6
    v_add_u32 v{m}, s{T1}, v{t2}
    v_bfe_u32 v{t2}, v{L}, 2, 2
    v_lshl_add_u32 v{t2}, v{t1}, 2, v{t2}
    v_lshlrev_b32 v{t2}, 8, v{t2}
    v_and_b32 v{t0}, 3, v{L}
    v_lshl_add_u32 v{t2}, v{t0}, 4, v{t2}
    v_add_u32 v{pl}, s{T1}, v{t2}
    ; vMlds = w*2048 + (16 l ^ (((l>>4)&1)<<7))
    v_bfe_u32 v{t0}, v{L}, 4, 1
    v_lshlrev_b32 v{t0}, 7, v{t0}
    v_xor_b32 v{t0}, v{t0}, v{l16}
    v_add_u32 v{ml}, s{T}, v{t0}
    """, a=vWO, wo=L_WO, kx=vKXw, p=vPst, m=vMst, ml=vMlds, kp=vKpub, pl=vPld)
    sPst = 66
    sPld, sMbase, sMst, sMld, sKV, sKM, sFKV, sFKM, sTag, sClr, sC, sFlagVal, sKMp, sFKMp = range(74, 88)
    vNeg1 = 17
    sFKMq = 58; sPld2 = 57; sExF = 54; sClrNow = sClr
    F("""
    s_mul_i32 s{T1}, s{LY}, 0x{pl:x}
    s_add_u32 s{T1}, s{T1}, 0x{op:x}
    s_lshl_b32 s{T}, s{H}, 8
    s_add_u32 s{T2}, s{T1}, s{T}
    s_lshl_b32 s{T}, s{W}, 16
    s_add_u32 s{p0}, s{T2}, s{T}
    s_lshl_b32 s{T}, s{H}, 13
    s_add_u32 s{pld}, s{T1}, s{T}
    s_mul_i32 s{mb}, s{LY}, 0x{ml:x}
    s_add_u32 s{mb}, s{mb}, 0x{om:x}
    s_mul_i32 s{T}, s{LY}, 0x{kvl:x}
    s_add_u32 s{T}, s{T}, 0x{okv:x}
    s_lshl_b32 s{T1}, s{H}, 20
    s_add_u32 s{kv}, s{T}, s{T1}
    s_mul_i32 s{T}, s{LY}, 0x{kml:x}
    s_add_u32 s{T}, s{T}, 0x{okm:x}
    s_lshl_b32 s{T1}, s{H}, 18
    s_add_u32 s{km}, s{T}, s{T1}
    s_lshl_b32 s{T}, s{LY}, 18
    s_lshl_b32 s{T1}, s{H}, 7
    s_add_u32 s{T}, s{T}, s{T1}
    s_add_u32 s{fkv}, s{T}, 0x{FKV:x}
    s_add_u32 s{fkm}, s{T}, 0x{FKM:x}
    s_mov_b32 s{c}, 0x{cc:x}
    """, pl=P_LSTRIDE, op=OFF_P, p0=sPst, pld=sPld, mb=sMbase, ml=M_LSTRIDE, om=OFF_M,
      kvl=KV_L, okv=OFF_KV, kv=sKV, kml=KM_L, okm=OFF_KM, km=sKM, fkv=sFKV, fkm=sFKM, FKV=F_KV, FKM=F_KM, c=sC, cc=f32(SCALE_LOG2E))
    k("s_add_u32 s%d, s%d, 32768" % (sPst + 1, sPst))
    k("s_mov_b32 s%d, 0x%x\ns_mov_b32 s%d, 0x%x" % (sFKMp, F_DUMMY, sFKMq, F_DUMMY))
    k("s_mov_b32 s%d, 0x%x" % (sKMp, F_DUMMY + 0x1000))
    k("s_mov_b32 s%d, 0x%x" % (sClr, F_DUMMY + 0x3000))
    k("v_mov_b32 v%d, -1" % vNeg1)
    k("s_add_u32 s%d, s%d, 4096" % (sPld2, sPld))
    k("s_cmp_eq_u32 s%d, 2\ns_cselect_b32 s%d, 1, 0\ns_mov_b32 s%d, 0" % (S_WAVE, sExF, sExF + 1))

    if True:
        Lg = k.uid("L_cg")
        k("s_cmp_eq_u32 s%d, 0\ns_cbranch_scc1 %s" % (S_L, Lg))
        if gsync_fn: gsync_fn(k)
        if w0wait_fn: w0wait_fn(k)
        k.label(Lg)
    vA0q, vA1q, vR0, vR1, vRs = 40, 41, 42, 46, 47
    sM0 = T + 3
    sW12 = T + 5
    F("""
    v_lshrrev_b32 v{t0}, 4, v{L}
    v_bfe_u32 v{t1}, v{L}, 1, 3
    v_xor_b32 v{t1}, v{t1}, v{t0}
    v_lshlrev_b32 v{t1}, 5, v{t1}
    v_and_b32 v{t2}, 1, v{L}
    v_lshl_add_u32 v{t1}, v{t2}, 4, v{t1}
    v_lshl_add_u32 v{t1}, v{t0}, 13, v{t1}
    s_lshl_b32 s{T}, s{H}, 8
    v_add_u32 v{a0}, s{T}, v{t1}
    v_xor_b32 v{a1}, 128, v{a0}
    v_lshrrev_b32 v{t0}, 4, v{L}
    v_bfe_u32 v{t1}, v{L}, 2, 1
    v_lshlrev_b32 v{t1}, 1, v{t1}
    v_bfe_u32 v{t3}, v{L}, 3, 1
    v_or_b32 v{t1}, v{t1}, v{t3}          ; perm(j)
    v_lshl_add_u32 v{t2}, v{t0}, 3, v{t1}
    v_lshlrev_b32 v{t2}, 8, v{t2}
    v_and_b32 v{t0}, 1, v{t0}
    v_lshl_add_u32 v{t0}, v{t0}, 2, v{t1} ; f
    s_lshl_b32 s{T}, s{W}, 1
    v_xor_b32 v{t0}, s{T}, v{t0}
    v_lshl_add_u32 v{t2}, v{t0}, 5, v{t2}
    v_and_b32 v{t1}, 3, v{L}
    v_lshl_add_u32 v{r0}, v{t1}, 3, v{t2}
    v_xor_b32 v{r1}, 32, v{r0}
    s_lshl_b32 s{M0}, s{W}, 15
    s_add_u32 s{M0}, s{M0}, 0x{wo:x}
    s_lshl_b32 s{w12}, s{W}, 12
    """, a0=vA0q, a1=vA1q, r0=vR0, r1=vR1, M0=sM0, wo=L_WO, w12=sW12)
    srds = {0: P_WQ, 1: P_WK, 2: P_WV}
    cur = [None]
    def issue_chunk(n, slot):
        m, b = divmod(n, 8)
        if cur[0] != m:
            build_srd(k, S_SRD2, srds[m], 512 * 8192); cur[0] = m
        k("s_lshl_b32 s%d, s%d, 17" % (T + 2, S_WAVE))
        for i in range(4):
            k("s_add_u32 s%d, s%d, %d" % (T, sW12, L_WO + slot * 16384 + i * 1024))
            k("s_mov_b32 m0, s%d" % T)
            k("s_add_u32 s%d, s%d, %d" % (T + 1, T + 2, (64 * b + 4 * i) * 8192))
            k("buffer_load_dwordx4 v%d, s[%d:%d], s%d offen lds" % (vA1q if (i & 2) else vA0q, S_SRD2, S_SRD2 + 3, T + 1))
    vB0, vB1, vT0 = 43, 44, 45
    F("""
    v_lshrrev_b32 v{t0}, 4, v{L}
    v_bfe_u32 v{t1}, v{L}, 1, 3
    v_xor_b32 v{t1}, v{t1}, v{t0}
    v_lshlrev_b32 v{t1}, 5, v{t1}
    v_and_b32 v{t2}, 1, v{L}
    v_lshl_add_u32 v{t1}, v{t2}, 4, v{t1}
    v_lshl_add_u32 v{t1}, v{t0}, 10, v{t1}
    s_lshl_b32 s{T}, s{H}, 17
    v_add_u32 v{b0}, s{T}, v{t1}
    v_xor_b32 v{b1}, 128, v{b0}
    v_lshrrev_b32 v{t0}, 4, v{L}
    v_bfe_u32 v{t1}, v{L}, 2, 2
    v_lshl_add_u32 v{t2}, v{t0}, 3, v{t1}
    v_lshlrev_b32 v{t2}, 8, v{t2}
    v_and_b32 v{t0}, 1, v{t0}
    v_lshl_add_u32 v{t0}, v{t0}, 2, v{t1}
    v_lshl_add_u32 v{t2}, v{t0}, 5, v{t2}
    v_and_b32 v{t1}, 3, v{L}
    v_lshl_add_u32 v{t2}, v{t1}, 3, v{t2}
    v_add_u32 v{tt}, s{M0}, v{t2}
    """, b0=vB0, b1=vB1, tt=vT0, M0=sM0)
    def issue_wo_coop(slot):
        ow, b_ = divmod(slot, 2)
        build_srd(k, S_SRD3, P_WO, 4096 * 1024)
        k("s_lshl_b32 s%d, s%d, 14" % (T + 2, S_WAVE))
        for i in range(4):
            k("s_add_u32 s%d, s%d, %d" % (T, sW12, L_WO + slot * 16384 + i * 1024))
            k("s_mov_b32 m0, s%d" % T)
            k("s_add_u32 s%d, s%d, %d" % (T + 1, T + 2, (64 * b_ + 4 * i) * 1024 + ow * 256))
            k("buffer_load_dwordx4 v%d, s[%d:%d], s%d offen lds" % (vB1 if (i & 2) else vB0, S_SRD3, S_SRD3 + 3, T + 1))
    def read_chunk(n, slot):
        m, b = divmod(n, 8)
        for t in range(2):
            f = (m * 2 + t) * 8 + b
            base = 128 + 8 * f
            k("v_add_u32 v%d, 0x%x, v%d" % (vRs, L_WO + slot * 16384, vR1 if t else vR0))
            for j, dl in enumerate((0, 4, 32, 36)):
                k("ds_read_b64_tr_b16 %s, v%d offset:%d" % (ur(base + 2 * j, 2), vRs, dl * 256))
    q = []
    def wait_for(tag):
        if not [1 for t, c in q if t == tag]: return
        idx = [i for i, (t, c) in enumerate(q) if t == tag][0]
        rem = sum(c for t, c in q[idx + 1:])
        k("s_waitcnt vmcnt(%d)" % rem)
        del q[:idx + 1]
    for n in range(7):
        issue_chunk(n, n % 8); q.append((n, 4))
    for n in range(24):
        wait_for(n)
        k("s_barrier")
        if n + 7 < 24:
            issue_chunk(n + 7, (n + 7) % 8); q.append((n + 7, 4))
        else:
            issue_wo_coop((n - 1) % 8); q.append((("wo", (n - 1) % 8), 4))
        read_chunk(n, n % 8)
        k("s_waitcnt lgkmcnt(0)")
    k("s_barrier")
    issue_wo_coop(7)
    k("s_waitcnt vmcnt(0)\ns_barrier")
    mark(1)
    def convert_wo(b):
        base = 48
        for t in range(8):
            k("v_xor_b32 v%d, %d, v%d" % (t0, t * 32, vT0))
            for j, dl in enumerate((0, 4, 32, 36)):
                k("ds_read_b64_tr_b16 %s, v%d offset:%d" % (vr(base + 8 * t + 2 * j, 2), t0, b * 16384 + dl * 256))
        k("s_waitcnt lgkmcnt(0)")
        for t in range(8):
            for hf in range(2):
                k("ds_write_b128 v%d, %s offset:%d" % (vWO, vr(base + 8 * t + 4 * hf, 4), b * 16384 + (t * 2 + hf) * 1024))
        k("s_waitcnt lgkmcnt(0)")
    convert_wo(0)
    convert_wo(1)

    mark(2)
    if gsync_fn: gsync_fn(k)
    k("s_barrier")
    La = k.uid("L_w0")
    k("s_cmp_eq_u32 s%d, 0\ns_cbranch_scc0 %s\ns_cmp_eq_u32 s%d, 0\ns_cbranch_scc0 %s" % (S_L, La, S_WAVE, La))
    k("s_lshl_b32 s%d, s%d, 2\ns_add_u32 s%d, s%d, 0x%x\nv_mov_b32 v124, s%d\nv_mov_b32 v125, 1\ns_mov_b64 exec, 1" % (T, S_RANK, T, T, F_W0, T))
    k("buffer_store_dword v125, v124, %s, 0 offen sc1\ns_mov_b64 exec, -1" % WSR)
    k.label(La)
    build_srd(k, S_SRD2, P_MEM, 8 * 1024)
    k("v_lshlrev_b32 v%d, 2, v0" % t0)
    for q_ in range(8):
        k("s_mov_b32 s%d, %d" % (T, q_ * 1024))
        k("buffer_load_dword v%d, v%d, s[%d:%d], s%d offen" % (48 + q_, t0, S_SRD2, S_SRD2 + 3, T))
    F("""
    s_mov_b32 s{T}, 0x05040100
    s_mov_b32 s{T1}, 0x07060302
    v_lshlrev_b32 v{t1}, 5, v0
    v_bfe_u32 v{t2}, v0, 3, 1
    v_lshlrev_b32 v{t2}, 7, v{t2}
    v_xor_b32 v{t1}, v{t1}, v{t2}
    v_mov_b32 v64, 0
    v_mov_b32 v65, 0
    v_mov_b32 v66, 0
    v_mov_b32 v67, 0
    v_lshlrev_b32 v{t3}, 4, v0
    ds_write_b128 v{t3}, v[64:67] offset:{kt}
    s_waitcnt vmcnt(0)
    """, kt=L_KT)
    for m in range(4):
        k("v_perm_b32 v%d, v%d, v%d, s%d" % (56 + 2 * m, 49 + 2 * m, 48 + 2 * m, T))
        k("v_perm_b32 v%d, v%d, v%d, s%d" % (57 + 2 * m, 49 + 2 * m, 48 + 2 * m, T + 1))
    k("ds_write_b128 v%d, v[56:59]\nds_write_b128 v%d, v[60:63] offset:16" % (t1, t1))

    def flag_spin(soff, dst):
        Lp = k.uid("L_fl")
        k.label(Lp)
        k("v_mov_b32 v%d, s%d\ns_mov_b64 exec, 1" % (t0, soff))
        k("buffer_load_dword v%d, v%d, %s, 0 offen sc1" % (t1, t0, WSR))
        k("s_mov_b64 exec, -1\ns_waitcnt vmcnt(0)")
        k("v_readfirstlane_b32 s%d, v%d" % (dst, t1))
        spin_check(k, abort)
        Ld = k.uid("L_fld")
        k("s_cmp_ge_u32 s%d, 4\ns_cbranch_scc1 %s" % (dst, Ld))
        if DEV.get("chsleep", 0): k("s_sleep %d" % DEV["chsleep"])
        k("s_branch %s" % Lp)
        k.label(Ld)
    def kv_loads():
        return ["buffer_load_dwordx4 %s, v%d, %s, s%d offen sc1" % (vr(vKn, 4), vKXw, WSR, sKV),
                "buffer_load_dwordx4 %s, v%d, %s, s%d offen offset:1024 sc1" % (vr(vKn + 4, 4), vKXw, WSR, sKV),
                "s_add_u32 s%d, s%d, 8192" % (T + 4, sKV),
                "buffer_load_dwordx4 %s, v%d, %s, s%d offen sc1" % (vr(vVn, 4), vKXw, WSR, T + 4),
                "buffer_load_dwordx4 %s, v%d, %s, s%d offen offset:1024 sc1" % (vr(vVn + 4, 4), vKXw, WSR, T + 4)]
    def kv_writes():
        return ["ds_write_b128 v%d, %s offset:%d" % (vKXw, vr(vKn, 4), L_KX),
                "ds_write_b128 v%d, %s offset:%d" % (vKXw, vr(vKn + 4, 4), L_KX + 1024),
                "ds_write_b128 v%d, %s offset:%d" % (vKXw, vr(vVn, 4), L_VX),
                "ds_write_b128 v%d, %s offset:%d" % (vKXw, vr(vVn + 4, 4), L_VX + 1024)]
    k("buffer_load_dwordx4 v[48:51], v%d, %s, s%d offen sc1" % (vPld, WSR, sPld))
    k("buffer_load_dwordx4 v[52:55], v%d, %s, s%d offen sc1" % (vPld, WSR, sPld2))
    k("s_lshl_b32 s%d, s%d, 11\ns_add_u32 s%d, s%d, s%d" % (T, S_WAVE, T, T, sMbase))
    for sl in range(4):
        k("s_add_u32 s%d, s%d, %d" % (T + 1, T, sl * 8192))
        k("buffer_load_dwordx4 v[56:59], v%d, %s, s%d offen sc1" % (vL16, WSR, T + 1))
        k("buffer_load_dwordx4 v[60:63], v%d, %s, s%d offen offset:1024 sc1" % (vL16, WSR, T + 1))
    k("s_mov_b32 s%d, 0" % S_STEP)
    flag_spin(sFKV, sFlagVal)
    for x in kv_loads(): k(x)
    k("s_waitcnt vmcnt(0)")
    for x in kv_writes(): k(x)
    k("s_add_u32 s%d, s%d, %d\ns_add_u32 s%d, s%d, 4096" % (sKV, sKV, 16384, sFKV, sFKV))
    k("v_mov_b32 v%d, s%d\ns_mov_b64 exec, 1\nbuffer_load_dword v%d, v%d, %s, 0 offen sc1\ns_mov_b64 exec, -1\ns_waitcnt vmcnt(0)\nv_readfirstlane_b32 s%d, v%d" % (t0, sFKV, t1, t0, WSR, sFlagVal, t1))

    vA0 = 36; vACC = 68; vQB = 92; vKA = 108
    vM2 = 1
    def zero(base, n): return ["v_mov_b64 %s, 0" % vr(base + 2 * i, 2) for i in range(n // 2)]
    for x in zero(vACC, 24): k(x)
    k("v_xor_b32 v%d, 128, v%d" % (vM2, vTrM))
    k("s_waitcnt lgkmcnt(0)\ns_barrier")
    if stamps:
        for i in range(13): k("s_mov_b32 s%d, 0" % (89 + i))
        k("s_memtime s[62:63]\ns_waitcnt lgkmcnt(0)\ns_mov_b32 s88, s62")
    def stamp(i):
        if cut == i:
            k("s_branch L_cutend" + sfx)
        if stamps and i < 10:
            k("s_memtime s[62:63]\ns_waitcnt lgkmcnt(0)\ns_sub_u32 s63, s62, s88\ns_add_u32 s%d, s%d, s63\ns_mov_b32 s88, s62" % (89 + i, 89 + i))
    def W(tau, b): return ur(128 + 8 * (tau * 8 + b), 8)
    def smf(acc, a, b): return "v_smfmac_f32_16x16x64_bf16 %s, %s, %s, v%d" % (vr(acc, 4), vr(a, 4), b, vIdx)
    def trM(b): return ["ds_read_b64_tr_b16 %s, v%d offset:%d" % (vr(vA0 + 4 * b, 2), vTrM, b * 1024),
                        "ds_read_b64_tr_b16 %s, v%d offset:%d" % (vr(vA0 + 4 * b + 2, 2), vM2, b * 1024)]
    gmark(k, 2)
    mark(3)
    if dump: k("s_memtime s[60:61]\ns_waitcnt lgkmcnt(0)\ns_mov_b32 s59, s60")
    k.label("L_step" + sfx)
    steplog(k, 124, 125, 0xF100000)
    for b in range(3):
        for x in trM(b): k(x)
    vKp = 92
    k("buffer_store_dwordx4 %s, v%d, %s, s%d offen sc1" % (vr(vKp, 4), vKpub, WSR, sKMp) if not (nopub or noimg) else "s_nop 0")
    k("s_cmp_ge_u32 s%d, 4\ns_cbranch_scc0 L_kvnotready%s" % (sFlagVal, sfx))
    k.label("L_kvready" + sfx)
    kvl = kv_loads()
    if nokv: kvl = ["s_nop 0"] * 5
    k(kvl.pop(2))
    k(kvl.pop(0))
    for b in range(8):
        k("s_waitcnt lgkmcnt(%d)" % (4 if b <= 5 else (2 if b == 6 else 0)))
        nx = trM(b + 3) if b + 3 < 8 else []
        k(smf(vACC + 0, vA0 + 4 * b, W(0, b)))
        if nx: k(nx[0])
        k(smf(vACC + 4, vA0 + 4 * b, W(1, b)))
        if nx: k(nx[1])
        if b in (1, 3, 5) and kvl: k(kvl.pop(0))
    assert not kvl
    stamp(0)
    order = [(t, ks) for ks in range(4) for t in range(2)]
    def halfsum(a): return ["v_add_f32 v%d, v%d, v%d" % (a, a, a + 2), "v_add_f32 v%d, v%d, v%d" % (a + 1, a + 1, a + 3), "v_cvt_pk_bf16_f32 v%d, v%d, v%d" % (a + 2, a, a + 1)]
    def kxread(i, dst):
        t, ks = order[i]
        return "ds_read_b128 %s, v%d offset:%d" % (vr(dst, 4), vL16, L_KX + (t * 4 + ks) * 1024)
    kx = [108, 112, 116, 120, 36, 40, 44, 48]
    slow = ["s_add_u32 s%d, s%d, 4096" % (sFKV, sFKV), "v_mov_b32 v127, s%d" % sFKV, "v_mov_b32 v124, s%d" % sFKMq, "v_mov_b32 v125, 4",
            "s_mov_b64 exec, 1", "buffer_load_dword v%d, v127, %s, 0 offen sc1" % (vFl, WSR),
            "s_mov_b64 exec, s[%d:%d]" % (sExF, sExF + 1), "buffer_store_dword v125, v124, %s, 0 offen sc1" % WSR, "s_mov_b64 exec, -1"]
    prim = []
    for b in range(8):
        prim += [smf(vACC + 8, vA0 + 4 * b, W(2, b)), smf(vACC + 12, vA0 + 4 * b, W(3, b))]
    fill = slow + halfsum(vACC + 0) + ["ds_write_b32 v%d, v%d offset:%d" % (vQW, vACC + 2, L_QT)] + halfsum(vACC + 4) + ["ds_write_b32 v%d, v%d offset:%d" % (vQW, vACC + 6, L_QT + 256)]
    for i, p in enumerate(prim):
        k(p)
        n = (2, 2, 2, 0, 2, 1, 0, 2, 2, 2, 2, 0, 0, 0, 0, 0)[i]
        for _ in range(n):
            if fill: k(fill.pop(0))
    assert not fill
    stamp(1)
    def vsm(b): return [smf(vACC + 16, vA0 + 4 * b, W(4, b)), smf(vACC + 20, vA0 + 4 * b, W(5, b))]
    kwr = ["ds_write_b32 v%d, v%d offset:%d" % (vKW, vACC + 10, L_KT), "ds_write_b32 v%d, v%d offset:%d" % (vKW, vACC + 14, L_KT + 512)]
    v0 = vsm(0)
    k(v0[0]); k(kxread(0, kx[0])); k(kxread(1, kx[1])); k(v0[1]); k(kxread(2, kx[2])); k(kxread(3, kx[3]))
    k("s_nop 1")
    for x in halfsum(vACC + 8): k(x)
    k(kwr[0])
    for x in halfsum(vACC + 12): k(x)
    k(kwr[1])
    for x in vsm(1) + vsm(2): k(x)
    k("s_waitcnt lgkmcnt(0)\ns_barrier")
    qreads = []
    for ks in range(4):
        qreads += ["ds_read_b64_tr_b16 %s, v%d offset:%d" % (vr(vQB + 4 * ks, 2), vTrQ, L_QT + ks * 512),
                   "ds_read_b64_tr_b16 %s, v%d offset:%d" % (vr(vQB + 4 * ks + 2, 2), vTrQ, L_QT + ks * 512 + 256)]
    vKA2 = vACC
    kar = []
    for ks in range(4):
        kar += ["ds_read_b64_tr_b16 %s, v%d offset:%d" % (vr(vKA2 + 4 * ks, 2), vTrK, L_KT + ks * 1024),
                "ds_read_b64_tr_b16 %s, v%d offset:%d" % (vr(vKA2 + 4 * ks + 2, 2), vTrK, L_KT + ks * 1024 + 512)]
    out = []
    def lwait(tag):
        if tag not in out: return
        idx = max(i for i, t in enumerate(out) if t == tag)
        k("s_waitcnt lgkmcnt(%d)" % min(15, len(out) - idx - 1))
        del out[:idx + 1]
    rest = []
    for b in range(3, 8): rest += vsm(b)
    reads = [(x, "q%d" % (i // 2)) for i, x in enumerate(qreads)] + [(x, "ka") for x in kar]
    late = [(kxread(4 + i, kx[4 + i]), "kx%d" % (4 + i)) for i in range(4)]
    for i, p in enumerate(rest):
        k(p)
        for _ in range(2):
            if reads:
                x, t = reads.pop(0); k(x); out.append(t)
        if i >= 7:
            for _ in range(2):
                if late and not reads:
                    x, t = late.pop(0); k(x); out.append(t)
    for x, t in reads + late: k(x); out.append(t)
    stamp(2)
    vS = 52
    def sx(i):
        t, ks = order[i]
        c = "0" if ks == 0 else vr(vS + 4 * t, 4)
        return "v_mfma_f32_16x16x32_bf16 %s, %s, %s, %s" % (vr(vS + 4 * t, 4), vr(kx[i], 4), vr(vQB + 4 * ks, 4), c)
    def woread(dst, t, b):
        return ["ds_read_b128 %s, v%d offset:%d" % (vr(dst, 4), vWO, b * 16384 + (t * 2) * 1024),
                "ds_read_b128 %s, v%d offset:%d" % (vr(dst + 4, 4), vWO, b * 16384 + (t * 2 + 1) * 1024)]
    wolist = [(t, b) for t in range(8) for b in range(2)]
    slots = [36, 44, 108, 116, 52, 60]
    ones = vACC + 12
    vPx = vQB + 8; vPm = vQB + 12; vVm0 = vQB + 14; vVm1 = 124
    vepi = ["v_add_f32 v%d, v%d, v%d" % (vACC + 16, vACC + 16, vACC + 18), "v_add_f32 v%d, v%d, v%d" % (vACC + 17, vACC + 17, vACC + 19),
            "v_add_f32 v%d, v%d, v%d" % (vACC + 20, vACC + 20, vACC + 22), "v_add_f32 v%d, v%d, v%d" % (vACC + 21, vACC + 21, vACC + 23),
            "v_cvt_pk_bf16_f32 v%d, v%d, v%d" % (vACC + 18, vACC + 16, vACC + 17), "v_cvt_pk_bf16_f32 v%d, v%d, v%d" % (vVm1, vACC + 20, vACC + 21),
            "ds_write_b32 v%d, v%d offset:%d" % (vKW, vACC + 18, L_KT + 4), "ds_write_b32 v%d, v%d offset:%d" % (vKW, vVm1, L_KT + 512 + 4),
            "v_mov_b32 v%d, 0" % (vVm1 + 1)]
    lwait("q0"); k(sx(0)); k(sx(1))
    lwait("q1"); k(sx(2)); k(sx(3))
    lwait("ka")
    w23 = woread(slots[2], *wolist[2]) + woread(slots[3], *wolist[3])
    for ks in range(4):
        if ks == 1: lwait("q2")
        c = "0" if ks == 0 else vr(vS + 8, 4)
        k("v_mfma_f32_16x16x32_bf16 %s, %s, %s, %s" % (vr(vS + 8, 4), vr(vKA2 + 4 * ks, 4), vr(vQB + 4 * ks, 4), c))
        if ks >= 1:
            for _ in range(3):
                if vepi:
                    f = vepi.pop(0); k(f)
                    if f.startswith("ds_"): out.append("vw")
        x = w23.pop(0); k(x); out.append("wo23")
    lwait("q3")
    onesl = ["v_mov_b32 v%d, 0x3f803f80" % (ones + i) for i in range(4)]
    for i in range(4, 8):
        lwait("kx%d" % i)
        k(sx(i))
        if i == 4: k(onesl[0]); k(onesl[1])
        if i == 5: k(onesl[2]); k(onesl[3])
    assert not vepi
    vVXf = vQB
    k("ds_read_b128 %s, v%d offset:%d" % (vr(vVXf, 4), vKXw, L_VX))
    k("ds_read_b128 %s, v%d offset:%d" % (vr(vVXf + 4, 4), vKXw, L_VX + 1024))
    k("v_mov_b32 v%d, v%d" % (vVm0, vACC + 18))
    k("v_mov_b32 v%d, 0\nv_mov_b32 v%d, 0" % (vPm + 1, vVm0 + 1))
    k("s_nop 2")
    stamp(10)
    vals = [vS + i for i in range(10)]
    m = 126; m2 = 127
    k("v_max3_f32 v%d, v%d, v%d, v%d" % (m, vals[0], vals[1], vals[2]))
    k("v_max3_f32 v%d, v%d, v%d, v%d" % (m2, vals[3], vals[4], vals[5]))
    k("v_max3_f32 v%d, v%d, v%d, v%d" % (m, m, vals[6], vals[7]))
    k("v_max3_f32 v%d, v%d, v%d, v%d" % (m2, m2, vals[8], vals[9]))
    k("v_max_f32 v%d, v%d, v%d" % (m, m, m2))
    k("v_mov_b32 v%d, v%d" % (m2, m))
    wo_pre = woread(slots[0], *wolist[0]) + woread(slots[1], *wolist[1]) + woread(slots[4], *wolist[4]) + woread(slots[5], *wolist[5])
    k(wo_pre.pop(0)); k(wo_pre.pop(0))
    k("v_permlane32_swap_b32 v%d, v%d\nv_max_f32 v%d, v%d, v%d\nv_mov_b32 v%d, v%d" % (m, m2, m, m, m2, m2, m))
    k(wo_pre.pop(0)); k(wo_pre.pop(0))
    k("v_permlane16_swap_b32 v%d, v%d\nv_max_f32 v%d, v%d, v%d" % (m, m2, m, m, m2))
    k("v_mul_f32 v%d, s%d, v%d" % (m, sC, m))
    k("v_mov_b32 v%d, s%d" % (m2, sC))
    for i in range(5):
        k("v_pk_fma_f32 %s, %s, v[126:127], v[126:127] op_sel:[0,1,0] op_sel_hi:[1,1,0] neg_lo:[0,0,1] neg_hi:[0,0,1]" % (vr(vals[2 * i], 2), vr(vals[2 * i], 2)))
    stamp(13)
    for v in vals: k("v_exp_f32 v%d, v%d" % (v, v))
    stamp(11)
    k("v_cvt_pk_bf16_f32 v%d, v%d, v%d" % (vPx + 0, vals[0], vals[1]))
    k("v_cvt_pk_bf16_f32 v%d, v%d, v%d" % (vPx + 1, vals[2], vals[3]))
    k("v_cvt_pk_bf16_f32 v%d, v%d, v%d" % (vPx + 2, vals[4], vals[5]))
    k("v_cvt_pk_bf16_f32 v%d, v%d, v%d" % (vPx + 3, vals[6], vals[7]))
    k("v_cvt_pk_bf16_f32 v%d, v%d, v%d" % (vPm, vals[8], vals[9]))
    vO = vACC + 16; vSum = vACC + 8
    k("s_waitcnt lgkmcnt(4)")
    k("v_mfma_f32_16x16x32_bf16 %s, %s, %s, 0" % (vr(vSum, 4), vr(ones, 4), vr(vPx, 4)))
    k(wo_pre.pop(0)); k(wo_pre.pop(0))
    k("v_mfma_f32_16x16x32_bf16 %s, %s, %s, 0" % (vr(vO, 4), vr(vVXf, 4), vr(vPx, 4)))
    k(wo_pre.pop(0)); k(wo_pre.pop(0))
    k("v_mfma_f32_16x16x16_bf16 %s, %s, %s, %s" % (vr(vSum, 4), vr(ones, 2), vr(vPm, 2), vr(vSum, 4)))
    k("v_mfma_f32_16x16x32_bf16 %s, %s, %s, 0" % (vr(vO + 4, 4), vr(vVXf + 4, 4), vr(vPx, 4)))
    k("v_mfma_f32_16x16x16_bf16 %s, %s, %s, %s" % (vr(vO, 4), vr(vVm0, 2), vr(vPm, 2), vr(vO, 4)))
    k("v_mfma_f32_16x16x16_bf16 %s, %s, %s, %s" % (vr(vO + 4, 4), vr(vVm1, 2), vr(vPm, 2), vr(vO + 4, 4)))
    assert not wo_pre
    stamp(12)
    k("s_cmp_eq_u32 s%d, %d\ns_cbranch_scc1 L_chain_fin%s" % (S_STEP, nsteps - 1, sfx))
    k("s_and_b32 s%d, s%d, 1" % (sTag, S_STEP))
    for x in zero(68, 8): k(x)
    k("v_rcp_f32 v126, v%d" % vSum)
    for x in zero(80, 4) + zero(92, 8): k(x)
    for i in range(4):
        k("v_pk_mul_f32 %s, %s, v[126:127] op_sel_hi:[1,0]" % (vr(vO + 2 * i, 2), vr(vO + 2 * i, 2)))
    vOc = 100
    for i in range(4): k("v_cvt_pk_bf16_f32 v%d, v%d, v%d" % (vOc + i, vO + 2 * i, vO + 2 * i + 1))
    for i in range(4): k("ds_write_b32 v%d, v%d offset:%d" % (vOW, vOc + i, L_OX + 16 * i))
    for x in zero(76, 4) + zero(84, 8): k(x)
    k("s_waitcnt lgkmcnt(0)\ns_barrier")
    stamp(3)
    accs = [68, 72, 76, 80, 84, 88, 92, 96]
    vAo = 100
    k("ds_read_b128 %s, v%d offset:%d" % (vr(vAo, 4), vOR, L_OX))
    k("ds_read_b128 %s, v%d offset:%d" % (vr(vAo + 4, 4), vOR, L_OX + 128))
    out = ["ao0", "ao1"]
    ns = len(slots)
    def epi(j):
        a = accs[4 * j:4 * j + 4]
        G = 124 if j == 0 else accs[0]
        if j == 0:
            L = []
            for t in range(4): L += ["v_add_f32 v%d, v%d, v%d" % (a[t], a[t], a[t] + 2), "v_add_f32 v%d, v%d, v%d" % (a[t] + 1, a[t] + 1, a[t] + 3)]
        else:
            L = ["v_pk_add_f32 %s, %s, %s" % (vr(a[t], 2), vr(a[t], 2), vr(a[t] + 2, 2)) for t in range(4)]
        L += ["v_cvt_pk_bf16_f32 v%d, v%d, v%d" % (G + t, a[t], a[t] + 1) for t in range(4)]
        L += ["s_nop 0",
              "v_permlane32_swap_b32 v%d, v%d" % (G + 0, G + 2), "v_permlane32_swap_b32 v%d, v%d" % (G + 1, G + 3),
              "s_nop 1",
              "v_permlane16_swap_b32 v%d, v%d" % (G + 0, G + 1), "v_permlane16_swap_b32 v%d, v%d" % (G + 2, G + 3),
              "v_and_or_b32 v%d, v%d, -2, s%d" % (G, G, sTag),
              "buffer_store_dwordx4 %s, v%d, %s, s%d offen%s" % (vr(G, 4), vPst, WSR, sPst + j, PL)]
        return L
    pend = []
    def need(tag):
        if tag in out:
            idx = max(j for j, x in enumerate(out) if x == tag)
            k("s_waitcnt lgkmcnt(%d)" % (len(out) - idx - 1)); del out[:idx + 1]
    for i in range(16):
        t, b = wolist[i]
        need("ao%d" % b)
        need(i)
        k("v_smfmac_f32_16x16x64_bf16 %s, %s, %s, v%d" % (vr(accs[t], 4), vr(vAo + 4 * b, 4), vr(slots[i % ns], 8), vIdx))
        if i + ns < 16:
            for x in woread(slots[i % ns], *wolist[i + ns]): k(x)
            out += [i + ns, i + ns]
        if i == 10: pend += epi(0)
        for _ in range(4):
            if pend: k(pend.pop(0))
    for x in pend: k(x)
    k("s_nop 4")
    for x in epi(1): k(x)
    stamp(4)
    k("s_waitcnt vmcnt(2)")
    for x in kv_writes(): k(x)
    k("v_readfirstlane_b32 s%d, v%d" % (sFlagVal, vFl))
    F("""
    s_add_u32 s{T}, s{st}, 1
    s_and_b32 s{T1}, s{T}, 3
    s_lshl_b32 s{T1}, s{T1}, 13
    s_add_u32 s{T2}, s{T1}, s{mb}
    s_add_u32 s{T}, s{st}, 3
    s_and_b32 s{T1}, s{T}, 3
    s_lshl_b32 s{clr}, s{T1}, 13
    s_add_u32 s{clr}, s{clr}, s{mb}
    s_lshl_b32 s{T}, s{H}, 8
    s_add_u32 s{mst}, s{T2}, s{T}
    s_add_u32 s{clr}, s{clr}, s{T}
    s_lshl_b32 s{T}, s{W}, 6
    s_add_u32 s{clr}, s{clr}, s{T}
    s_lshl_b32 s{T}, s{W}, 11
    s_add_u32 s{mld}, s{T2}, s{T}
    """, st=S_STEP, clr=sClr, mb=sMbase, mst=sMst, mld=sMld)
    vSel = 68
    PB = 36
    def pb_loads():
        k("buffer_load_dwordx4 %s, v%d, %s, s%d offen sc1" % (vr(PB, 4), vPld, WSR, sPld))
        k("buffer_load_dwordx4 %s, v%d, %s, s%d offen sc1" % (vr(PB + 4, 4), vPld, WSR, sPld2))
    def selbuild():
        k("""
        v_bfe_u32 v76, v{l16}, 6, 2
        v_bfe_u32 v77, v{l16}, 4, 1
        v_lshlrev_b32 v77, 4, v77
        v_mov_b32 v78, 0x3f80
        v_lshlrev_b32 v77, v77, v78
        v_bfe_u32 v78, v{l16}, 5, 1
        v_cmp_eq_u32 vcc, 0, v78
        v_mov_b32 v79, 0
        s_nop 0
        v_cndmask_b32 v77, v79, v77, vcc
        """.format(l16=vL16))
        for i in range(4):
            k("v_cmp_eq_u32 vcc, %d, v76\nv_mov_b32 v%d, 0\ns_nop 0\nv_cndmask_b32 v%d, v79, v77, vcc" % (i, vSel + i, vSel + i))
    def clearslot():
        k("v_mov_b64 v[96:97], -1\nv_mov_b64 v[98:99], -1\ns_mov_b64 exec, 15")
        k("buffer_store_dwordx4 v[96:99], v%d, %s, s%d offen%s\ns_mov_b64 exec, -1" % (vL16, WSR, sClrNow, PL))
    if natural:
        selbuild()
        if ackB: k("s_waitcnt vmcnt(0)")
        if d1: k.nop(d1)
        if not probe: stamp(9)
        pb_loads()
    elif earlyB:
        if d1: k.nop(d1)
        if not probe: stamp(9)
        pb_loads()
        selbuild()
        clearslot()
    else:
        selbuild()
        clearslot()
        if not probe: stamp(9)
        if waitack: k("s_waitcnt vmcnt(0)")
        if d1: k.nop(d1)
        pb_loads()
    Lpb = k.uid("L_pollB"); Lpb1 = k.uid("L_pollB1")
    k("s_branch %s" % Lpb1)
    k.label(Lpb)
    pb_loads()
    k("s_nop 0") if earlyB else None
    k.label(Lpb1)
    k("s_waitcnt vmcnt(0)")
    k("v_mfma_f32_16x16x32_bf16 v[72:75], %s, %s, 0" % (vr(vSel, 4), vr(PB, 4)))
    k("v_xor_b32 v76, s%d, v%d" % (sTag, PB))
    k("v_mfma_f32_16x16x32_bf16 v[72:75], %s, %s, v[72:75]" % (vr(vSel, 4), vr(PB + 4, 4)))
    k("v_xor_b32 v77, s%d, v%d\nv_or_b32 v76, v76, v77" % (sTag, PB + 4))
    k("v_and_b32 v76, 1, v76\nv_cmp_ne_u32 vcc, 0, v76")
    if stamps or marks: k("s_add_u32 s100, s100, 63")
    spin_check(k, abort)
    k("s_cbranch_vccnz %s" % Lpb if not nohop else "s_nop 0")
    stamp(5)
    if not stamps: k("s_nop 0")
    k("v_add_f32_dpp v72, v72, v72 row_ror:4 row_mask:0xf bank_mask:0xf")
    k("v_add_f32_dpp v73, v73, v73 row_ror:4 row_mask:0xf bank_mask:0xf")
    k("s_nop 0")
    k("v_add_f32_dpp v72, v72, v72 row_ror:8 row_mask:0xf bank_mask:0xf")
    k("v_add_f32_dpp v73, v73, v73 row_ror:8 row_mask:0xf bank_mask:0xf")
    k("v_cvt_pk_bf16_f32 v76, v72, v73")
    k("s_nop 1")
    k("v_mov_b32_dpp v77, v76 quad_perm:[1,0,3,2] row_mask:0xf bank_mask:0xf")
    k("v_mov_b32 v78, v76")
    k("s_nop 0")
    k("v_mov_b32 v79, v77")
    k("v_permlane16_swap_b32 v76, v78")
    k("s_nop 0")
    k("v_permlane16_swap_b32 v77, v79")
    k("s_mov_b32 exec_lo, 5\ns_mov_b32 exec_hi, 5")
    k("v_min_u32 v76, -2, v76")
    k("buffer_store_dwordx4 v[76:79], v%d, %s, s%d offen%s" % (vMst, WSR, sMst, PL))
    k("s_mov_b64 exec, -1")
    if not probe: stamp(6)
    k.label("L_cutend" + sfx)
    if cut < 99:
        k("s_and_b32 s%d, s%d, 1" % (sTag, S_STEP))
        k("s_cmp_eq_u32 s%d, %d\ns_cbranch_scc1 L_chain_fin%s" % (S_STEP, nsteps - 1, sfx))
    k("""
    s_add_u32 s{st}, s{st}, 1
    s_add_u32 s{kv}, s{kv}, {kvs}
    s_mov_b32 s{kmp}, s{km}
    s_add_u32 s{km}, s{km}, {kms}
    s_mov_b32 s{fq}, s{fp}
    s_mov_b32 s{fp}, s{fm}
    s_add_u32 s{fm}, s{fm}, 4096
    """.format(fp=sFKMp, fq=sFKMq, kmp=sKMp, st=S_STEP, kv=sKV, km=sKM, kvs=16384, kms=4096, fm=sFKM))
    for x in zero(vACC, 24): k(x)
    k("v_xor_b32 v%d, 128, v%d" % (vM2, vTrM))
    if cut < 99:
        k("s_waitcnt lgkmcnt(0)\ns_barrier\ns_branch L_step" + sfx)
    if natural: clearslot()
    if waitackC: k("s_waitcnt vmcnt(0)")
    if d2: k.nop(d2)
    Lg2 = k.uid("L_pollC")
    k.label(Lg2)
    for i in range(2):
        k("buffer_load_dwordx4 %s, v%d, %s, s%d offen offset:%d sc1" % (vr(36 + 4 * i, 4), vL16, WSR, sMld, i * 1024))
    k("s_waitcnt vmcnt(0)")
    k("v_cmp_eq_u32 vcc, -1, v36\nv_cmp_eq_u32 s[46:47], -1, v40\ns_or_b64 vcc, vcc, s[46:47]")
    if stamps or marks: k("s_add_u32 s101, s101, 63")
    spin_check(k, abort)
    k("s_cbranch_vccnz %s" % Lg2 if not nohop else "s_nop 0")
    if probe:
        stamp(7)
        for i in range(2):
            k("buffer_load_dwordx4 %s, v%d, %s, s%d offen offset:%d sc1" % (vr(36 + 4 * i, 4), vL16, WSR, sMld, i * 1024))
        k("s_waitcnt vmcnt(0)")
        stamp(6)
        for i in range(2):
            k("buffer_load_dwordx4 %s, v%d, %s, s%d offen offset:%d sc1" % (vr(36 + 4 * i, 4), vL16, WSR, sMld, i * 1024))
        k("s_waitcnt vmcnt(0)")
        stamp(9)
    for i in range(2):
        k("ds_write_b128 v%d, %s offset:%d" % (vMlds, vr(36 + 4 * i, 4), L_MEMT + i * 1024))
    k("ds_read_b128 v[92:95], v%d offset:%d" % (vKpub, L_KT))
    stamp(7)
    k("s_waitcnt lgkmcnt(0)\ns_barrier")
    stamp(8)
    k("s_branch L_step" + sfx)
    k.label("L_kvnotready" + sfx)
    k("s_cmp_ge_u32 s%d, %d\ns_cbranch_scc1 L_kvready%s" % (S_STEP, nsteps - 1, sfx))
    flag_spin(sFKV, sFlagVal)
    k("s_branch L_kvready" + sfx)
    k.label("L_chain_fin" + sfx)
    if dump: k("s_memtime s[60:61]\ns_waitcnt lgkmcnt(0)\ns_sub_u32 s59, s60, s59")
    k("s_waitcnt vmcnt(0) lgkmcnt(0)\ns_barrier")
    k("v_mov_b32 v124, s%d\nv_mov_b32 v125, 4\ns_mov_b64 exec, s[%d:%d]" % (sFKMp, sExF, sExF + 1))
    k("buffer_store_dword v125, v124, %s, 0 offen sc1\ns_mov_b64 exec, -1" % WSR)
    k("ds_read_b128 v[72:75], v%d offset:%d\ns_waitcnt lgkmcnt(0)" % (vKpub, L_KT))
    k("buffer_store_dwordx4 v[72:75], v%d, %s, s%d offen sc1\ns_waitcnt vmcnt(0)\ns_barrier" % (vKpub, WSR, sKM))
    k("v_mov_b32 v124, s%d\nv_mov_b32 v125, 4\ns_mov_b64 exec, s[%d:%d]" % (sFKM, sExF, sExF + 1))
    k("buffer_store_dword v125, v124, %s, 0 offen sc1\ns_mov_b64 exec, -1\ns_waitcnt vmcnt(0)" % WSR)
    if dump:
        if not stamps:
            for i in range(11 if marks else 13): k("s_mov_b32 s%d, 0" % (89 + i))
        k("s_mov_b32 s99, s59")
        if marks:
            mark(4)
            for i in range(5): k("s_mov_b32 s%d, s%d" % (89 + i, 52 + i))
        k("s_lshl_b32 s%d, s%d, 5\ns_add_u32 s%d, s%d, s%d" % (T, S_L, T, T, S_RANK))
        k("s_lshl_b32 s%d, s%d, 2\ns_add_u32 s%d, s%d, s%d\ns_lshl_b32 s%d, s%d, 6" % (T, T, T, T, S_WAVE, T, T))
        k("s_add_u32 s%d, s%d, 0x%x" % (T, T, 0xF000000))
        for i in range(13):
            k("v_mov_b32 v%d, s%d" % (40 + i, 89 + i))
        k("v_mov_b32 v124, s%d" % T)
        k("s_mov_b64 exec, 1")
        for i in range(4):
            k("buffer_store_dwordx4 %s, v124, %s, 0 offen offset:%d" % (vr(40 + 4 * i, 4), WSR, 16 * i))
        k("s_waitcnt vmcnt(0)")
    gmark(k, 3)
    gdump(k)
    k("s_branch L_end")
```

```python
import sys
from asmlib import *
from layout import *
import chain as C
from chain import *
import roles as R
from roles import fmt, WSR, T
KN = "interleave_layers__memory_aug_recurrent_mem_tr__glu_gated_bilinear__prompt_kernel"
NWG = 256
HEADER = open("interleave_layers__memory_aug_recurrent_mem_tr__glu_gated_bilinear__prompt.s.ref").read().split("; Override launch")[0]

def prologue(k, spin):
    k("""
    s_cmp_ge_u32 s2, {n}
    s_cbranch_scc1 L_end
    s_load_dwordx8 s[20:27], s[0:1], 0
    s_load_dwordx4 s[28:31], s[0:1], 32
    s_load_dwordx4 s[32:35], s[0:1], 64
    s_load_dwordx2 s[36:37], s[0:1], 80
    s_load_dwordx2 s[38:39], s[0:1], 88
    s_load_dwordx4 s[40:43], s[0:1], 96
    s_getreg_b32 s{xcc}, hwreg(HW_REG_XCC_ID, 0, 4)
    v_lshrrev_b32 v1, 6, v0
    s_mov_b32 s{spin}, {sp}
    s_and_b32 s{xcc}, s{xcc}, 7
    v_readfirstlane_b32 s{wave}, v1
    s_waitcnt lgkmcnt(0)
    """.format(n=NWG, xcc=S_XCC, spin=S_SPIN, wave=S_WAVE, sp=spin))
    build_srd(k, S_WS, P_WSP, WS_BYTES)
    gmark(k, 0)
    fmt(k, """
    s_cmp_eq_u32 s{W}, 0
    s_cbranch_scc0 L_noticket
    s_lshl_b32 s{T}, s{xcc}, 2
    v_mov_b32 v3, s{T}
    v_mov_b32 v4, 1
    s_mov_b64 exec, 1
    global_atomic_add v5, v3, v4, s[{d}:{d1}] sc0 sc1
    s_waitcnt vmcnt(0)
    v_mov_b32 v3, 0x4000
    ds_write_b32 v3, v5
    s_mov_b64 exec, -1
    s_waitcnt lgkmcnt(0)
    L_noticket:
    """, xcc=S_XCC, d=P_DBG, d1=P_DBG + 1)
    build_srd(k, S_SRD3, P_WSP, FLAGS_BYTES)
    fmt(k, """
    s_lshl_b32 s{T}, s2, 12
    v_lshlrev_b32 v2, 4, v0
    v_add_u32 v2, s{T}, v2
    v_mov_b64 v[4:5], 0
    v_mov_b64 v[6:7], 0
    v_mov_b64 v[8:9], -1
    v_mov_b64 v[10:11], -1
    s_mov_b32 s{T}, 0x100000
    buffer_store_dwordx4 v[4:7], v2, s[{a}:{b}], 0 offen sc1
    buffer_store_dwordx4 v[4:7], v2, s[{a}:{b}], s{T} offen sc1
    """, a=S_SRD3, b=S_SRD3 + 3)
    assert FLAGS_BYTES <= 0x200000 and OFF_P == FLAGS_BYTES
    END1 = OFF_M + 2 * M_LSTRIDE
    assert END1 - OFF_P <= 0x100000
    build_srd(k, S_SRD2, P_WSP, END1)
    fmt(k, "s_mov_b32 s{T}, 0x{o:x}\nbuffer_store_dwordx4 v[8:11], v2, s[{a}:{b}], s{T} offen sc1", o=OFF_P, a=S_SRD2, b=S_SRD2 + 3)
    sTg, sRes, sXn = 66, 67, 68
    fmt(k, "s_and_b32 s{tg}, s2, 3", tg=sTg)
    R.f_lane_setup(k)
    build_srd(k, S_SRD2, P_X, S * D * 2)
    fmt(k, """
    s_lshl_b32 s{r}, s2, 13
    s_lshr_b32 s{T}, s2, 2
    s_lshl_b32 s{T}, s{T}, 15
    s_lshr_b32 s{T1}, s{tg}, 1
    s_lshl_b32 s{T1}, s{T1}, 14
    s_add_u32 s{T}, s{T}, s{T1}
    s_and_b32 s{T1}, s{tg}, 1
    s_lshl_b32 s{T1}, s{T1}, 7
    s_add_u32 s{T}, s{T}, s{T1}
    s_add_u32 s{x}, s{T}, 0x{o:x}
    """, r=sRes, tg=sTg, x=sXn, o=OFF_XN)
    R.f_compute(k, 0, None, "s[%d:%d]" % (S_SRD2, S_SRD2 + 3), sRes, dict(xn=sXn))
    k("s_waitcnt vmcnt(0)\ns_barrier")
    k("v_mov_b32 v3, 0x4000\nds_read_b32 v5, v3\ns_waitcnt lgkmcnt(0)\nv_readfirstlane_b32 s98, v5\ns_barrier")
    fmt(k, """
    s_cmp_eq_u32 s{W}, 0
    s_cbranch_scc0 L_noreg
    v_mov_b32 v4, 1
    v_mov_b32 v6, 32
    s_mov_b64 exec, 1
    global_atomic_add v6, v4, s[{d}:{d1}] sc1
    s_mov_b64 exec, -1
    L_noreg:
    """, d=P_DBG, d1=P_DBG + 1)
    k("s_mov_b32 s%d, 0\ns_mov_b32 s%d, 1" % (R.S_SYNC, S_FAST))
    k("s_lshl_b32 s%d, s%d, 5\ns_add_u32 s%d, s%d, s98" % (S_RANK, S_XCC, S_RANK, S_RANK))
    k("s_cmp_lt_u32 s98, 32\ns_cbranch_scc1 L_dispatch")
    R.gsync(k)
    k.label("L_dispatch")
    if DEV["marks"]: k("s_mov_b32 s100, s%d" % S_RANK)
    gmark(k, 1)

def dispatch(k, enable):
    G = S_RANK
    def rng(lo, hi, lab):
        k("s_cmp_lt_u32 s%d, %d\ns_cbranch_scc1 %s" % (G, hi, lab))
    rng(0, 64, "L_role_chain"); rng(64, 128, "L_role_qa"); rng(128, 160, "L_role_g3s"); rng(160, 188, "L_role_g4s"); rng(188, 192, "L_role_f3x")
    rng(192, 208, "L_role_g5s"); rng(208, 216, "L_role_f3s"); rng(216, 224, "L_role_f5s")
    k("s_sub_u32 s%d, s%d, 224\ns_branch L_role_kv" % (G, G))
    k.label("L_role_f3x")
    k("s_sub_u32 s%d, s%d, 188\ns_lshr_b32 s%d, s%d, 1\ns_and_b32 s%d, s%d, 1\ns_add_u32 s%d, s%d, 4\ns_branch L_role_f3" % (G, G, S_L, G, G, G, G, G))
    k.label("L_role_g3s")
    k("s_sub_u32 s%d, s%d, 128\ns_lshr_b32 s%d, s%d, 4\ns_and_b32 s%d, s%d, 15\ns_branch L_role_g3" % (G, G, S_L, G, G, G))
    k.label("L_role_g4s")
    k("s_sub_u32 s%d, s%d, 160\ns_cmp_ge_u32 s%d, 14\ns_cselect_b32 s%d, 1, 0\ns_mul_i32 s%d, s%d, 14\ns_sub_u32 s%d, s%d, s%d\ns_branch L_role_g4" % (G, G, G, S_L, T, S_L, G, G, T))
    k.label("L_role_g5s")
    k("s_sub_u32 s%d, s%d, 192\ns_lshr_b32 s%d, s%d, 3\ns_and_b32 s%d, s%d, 7\ns_branch L_role_g5" % (G, G, S_L, G, G, G))
    k.label("L_role_f3s")
    k("s_sub_u32 s%d, s%d, 208\ns_lshr_b32 s%d, s%d, 2\ns_and_b32 s%d, s%d, 3\ns_branch L_role_f3" % (G, G, S_L, G, G, G))
    k.label("L_role_f5s")
    k("s_sub_u32 s%d, s%d, 216\ns_lshr_b32 s%d, s%d, 2\ns_and_b32 s%d, s%d, 3\ns_branch L_role_f5" % (G, G, S_L, G, G, G))
    k.label("L_role_chain")
    k("s_lshr_b32 s%d, s%d, 5\ns_and_b32 s%d, s%d, 31" % (S_L, G, G, G))
    k("s_cmp_eq_u32 s%d, 1\ns_cbranch_scc0 L_chain_slow" % S_FAST)
    chain_role(k, sfx="_f", gsync_fn=R.gsync, w0wait_fn=R.w0wait, fast=True, **enable.get("chain_kw", {}))
    k.label("L_chain_slow")
    chain_role(k, sfx="_s", w0wait_fn=R.w0wait, fast=False)
    k.label("L_role_qa")
    k("s_sub_u32 s%d, s%d, 64\ns_lshr_b32 s%d, s%d, 5\ns_and_b32 s%d, s%d, 31" % (G, G, S_L, G, G, G))
    R.qa_role(k)
    k.label("L_role_kv")
    R.kv_role(k)
    k.label("L_role_g3")
    R.g3_role(k)
    k.label("L_role_g4")
    R.g4_role(k)
    k.label("L_role_g5")
    R.g5_role(k)
    k.label("L_role_f3")
    R.f_role(k, 3, 6)
    k.label("L_role_f5")
    R.f_role(k, 5, 4)

def gen(spin=200000, enable=None):
    enable = enable or {}
    k = Asm()
    for l in HEADER.strip().split("\n"): k.lines.append(l if l.startswith(";") else "; " + l)
    k.lines.append("; @launch grid=(%d,1,1) block=(256,1,1) lds=163840" % NWG)
    k('.amdgcn_target "amdgcn-amd-amdhsa--gfx950"')
    k(".text\n.globl %s\n.p2align 8\n.type %s,@function\n%s:" % (KN, KN, KN))
    prologue(k, spin)
    dispatch(k, enable)
    k("""
    L_abort:
    v_mov_b32 v2, 240
    v_mov_b32 v3, 1
    s_mov_b64 exec, 1
    global_atomic_add v2, v3, s[{dbg}:{dbg1}] sc1
    s_waitcnt vmcnt(0)
    L_end:
    s_endpgm
    """.format(dbg=P_DBG, dbg1=P_DBG + 1))
    k(""".section .rodata,"a"
    .p2align 6
    .amdhsa_kernel %s
    .amdhsa_next_free_vgpr 512
    .amdhsa_next_free_sgpr 102
    .amdhsa_accum_offset 256
    .amdhsa_group_segment_fixed_size 0
    .amdhsa_kernarg_size 112
    .amdhsa_user_sgpr_count 2
    .amdhsa_user_sgpr_kernarg_segment_ptr 1
    .amdhsa_system_sgpr_workgroup_id_x 1
    .end_amdhsa_kernel""" % KN)
    return k.text()
if __name__ == "__main__":
    t = gen()
    pr = check_hazards(t)
    open("full.s", "w").write(t)
    print(len(t), "bytes")
    DEV["marks"] = True
    t = gen()
    check_hazards(t)
    open("fullm.s", "w").write(t)
```

```python
from asmlib import *
from layout import *
from chain import (S_WS, S_SRD2, S_SRD3, S_WAVE, S_RANK, S_XCC, S_L, S_T0, S_SPIN, S_STEP, P_X, P_MEM, P_WQ, P_WK, P_WV, P_WO, P_WG, P_WU, P_WD,
                   P_OUT, P_DBG, P_WSP, build_srd, spin_check, f32, interleave, SCALE_LOG2E, gmark, gdump, steplog)
from chain import S_FAST
WSR = "s[%d:%d]" % (S_WS, S_WS + 3)
FOLD_DMA = 0
OPT = dict(w0wait=False, modeA=True, sleepN=True, nhelp=32, sl=4, slq=2, slfirst=16, earlyA=False, local=False)
T = S_T0
ABORT = "L_abort"

def fmt(k, _txt, **kw):
    d = dict(T=T, T1=T + 1, T2=T + 2, T3=T + 3, W=S_WAVE, R=S_RANK, LY=S_L)
    d.update(kw); k(_txt.format(**d))

def wait_flag(k, soff, target, va, vb, sleep=True):
    Lp = k.uid("L_wf")
    k("v_mov_b32 v%d, s%d" % (va, soff))
    k.label(Lp)
    k("s_mov_b64 exec, 1")
    k("buffer_load_dword v%d, v%d, %s, 0 offen sc1" % (vb, va, WSR))
    k("s_mov_b64 exec, -1\ns_waitcnt vmcnt(0)")
    k("v_readfirstlane_b32 s%d, v%d" % (T, vb))
    spin_check(k, ABORT)
    k("s_cmp_ge_u32 s%d, %d" % (T, target))
    Ld = k.uid("L_wfd")
    k("s_cbranch_scc1 %s" % Ld)
    if sleep: k("s_sleep %d" % (OPT["sl"] if sleep is True else sleep))
    k("s_branch %s" % Lp)
    k.label(Ld)

def poll_issue_n(k, soff, n, va, vb):
    k("v_and_b32 v%d, 63, v0\nv_lshlrev_b32 v%d, 2, v%d\nv_add_u32 v%d, s%d, v%d" % (va, va, va, va, soff, va))
    k("s_mov_b64 exec, 0x%x\nbuffer_load_dword v%d, v%d, %s, 0 offen sc1\ns_mov_b64 exec, -1" % ((1 << n) - 1, vb, va, WSR))
def poll_eval_n(k, n, vb, sdst):
    k("v_cmp_ne_u32 vcc, 0, v%d\ns_and_b32 s%d, vcc_lo, 0x%x\ns_cmp_eq_u32 s%d, 0x%x\ns_cselect_b32 s%d, 1, 0" % (vb, sdst, (1 << n) - 1, sdst, (1 << n) - 1, sdst))
def wait_n(k, soff, n, va, vb, sleep=True):
    Lp = k.uid("L_wn"); Ld = k.uid("L_wnd")
    k.label(Lp)
    poll_issue_n(k, soff, n, va, vb)
    k("s_waitcnt vmcnt(0)")
    poll_eval_n(k, n, vb, T)
    k("s_cmp_eq_u32 s%d, 1\ns_cbranch_scc1 %s" % (T, Ld))
    spin_check(k, ABORT)
    if sleep: k("s_sleep %d" % (OPT["sl"] if sleep is True else sleep))
    k("s_branch %s" % Lp)
    k.label(Ld)
def signal_set(k, soff, sexec, va, vb, local=False):
    k("v_mov_b32 v%d, s%d\nv_mov_b32 v%d, 1\ns_mov_b64 exec, s[%d:%d]" % (va, soff, vb, sexec, sexec + 1))
    if local:
        La = k.uid("L_sl"); Lb = k.uid("L_sl")
        k("s_cmp_eq_u32 s%d, 1\ns_cbranch_scc0 %s" % (S_FAST, La))
        k("buffer_store_dword v%d, v%d, %s, 0 offen\ns_branch %s" % (vb, va, WSR, Lb))
        k.label(La)
        k("buffer_store_dword v%d, v%d, %s, 0 offen sc1" % (vb, va, WSR))
        k.label(Lb)
        k("s_mov_b64 exec, -1")
    else:
        k("buffer_store_dword v%d, v%d, %s, 0 offen sc1\ns_mov_b64 exec, -1" % (vb, va, WSR))

def signal_add(k, soff, va, vb):
    Ls = k.uid("L_sg")
    k("s_cmp_eq_u32 s%d, 0\ns_cbranch_scc0 %s" % (S_WAVE, Ls))
    k("v_mov_b32 v%d, s%d\nv_mov_b32 v%d, 1\ns_mov_b64 exec, 1" % (va, soff, vb))
    k("buffer_atomic_add v%d, v%d, %s, 0 offen sc1\ns_mov_b64 exec, -1" % (vb, va, WSR))
    k.label(Ls)

def signal_store(k, soff, val, va, vb):
    Ls = k.uid("L_sg")
    k("s_cmp_eq_u32 s%d, 0\ns_cbranch_scc0 %s" % (S_WAVE, Ls))
    k("v_mov_b32 v%d, s%d\nv_mov_b32 v%d, %d\ns_mov_b64 exec, 1" % (va, soff, vb, val))
    k("buffer_store_dword v%d, v%d, %s, 0 offen sc1\ns_mov_b64 exec, -1" % (vb, va, WSR))
    k.label(Ls)

def load_weights(k, chunks, vL, vt, ring_base_sgpr, nslots=8):
    vA0, vA1, vB0, vB1, t0, t1, t2 = vt + 0, vt + 1, vt + 2, vt + 3, vt + 4, vt + 5, vt + 6
    vOffs = {}
    strides = sorted(set(c["stride"] for c in chunks))
    assert len(strides) == 1
    stride = strides[0]
    vOff = vt + 7
    fmt(k, """
    v_bfe_u32 v{t0}, v{L}, 4, 1
    v_bfe_u32 v{t1}, v{L}, 5, 1
    v_xor_b32 v{t0}, v{t0}, v{t1}
    v_lshlrev_b32 v{t0}, 1, v{t0}
    v_and_b32 v{t1}, 3, v{L}
    v_xor_b32 v{t0}, v{t0}, v{t1}
    v_lshlrev_b32 v{t0}, 4, v{t0}
    v_lshrrev_b32 v{t1}, 2, v{L}
    s_mov_b32 s{T}, {stride}
    v_mul_lo_u32 v{t1}, s{T}, v{t1}
    v_add_u32 v{o}, v{t0}, v{t1}
    ; natural: A0 = (8g+j)*64 + 8m + 32*(g&1)
    v_lshrrev_b32 v{t0}, 4, v{L}
    v_bfe_u32 v{t1}, v{L}, 2, 2
    v_lshl_add_u32 v{t2}, v{t0}, 3, v{t1}
    v_lshlrev_b32 v{t2}, 6, v{t2}
    v_and_b32 v{a0}, 3, v{L}
    v_lshl_add_u32 v{t2}, v{a0}, 3, v{t2}
    v_and_b32 v{a0}, 1, v{t0}
    v_lshl_add_u32 v{t2}, v{a0}, 5, v{t2}
    v_add_u32 v{a0}, s{rb}, v{t2}
    v_xor_b32 v{a1}, 32, v{a0}
    ; pi: B0 = (4g+j)*64 + 8m + 32*((g&1)^(g>>1))
    v_lshl_add_u32 v{t2}, v{t0}, 2, v{t1}
    v_lshlrev_b32 v{t2}, 6, v{t2}
    v_and_b32 v{b0}, 3, v{L}
    v_lshl_add_u32 v{t2}, v{b0}, 3, v{t2}
    v_lshrrev_b32 v{t1}, 1, v{t0}
    v_xor_b32 v{t1}, v{t1}, v{t0}
    v_and_b32 v{t1}, 1, v{t1}
    v_lshl_add_u32 v{t2}, v{t1}, 5, v{t2}
    v_add_u32 v{b0}, s{rb}, v{t2}
    v_xor_b32 v{b1}, 32, v{b0}
    """, L=vL, t0=t0, t1=t1, t2=t2, o=vOff, a0=vA0, a1=vA1, b0=vB0, b1=vB1, stride=stride, rb=ring_base_sgpr)
    cur = [None]
    def issue(n):
        c = chunks[n]; slot = n % nslots
        if cur[0] != c["ptr"]:
            build_srd(k, S_SRD2, c["ptr"], c["nbytes"]); cur[0] = c["ptr"]
        for i in range(4):
            k("s_add_u32 s%d, s%d, %d" % (T, ring_base_sgpr, slot * 4096 + i * 1024))
            k("s_mov_b32 m0, s%d" % T)
            k("s_add_u32 s%d, s%d, %d" % (T + 1, c["scol"], (c["row0"] + 16 * i) * stride))
            k("buffer_load_dwordx4 v%d, s[%d:%d], s%d offen lds" % (vOff, S_SRD2, S_SRD2 + 3, T + 1))
    def read(n):
        c = chunks[n]; slot = n % nslots
        for t in range(2):
            for ks2 in range(2):
                d = c["dest"][(t, ks2)]
                for hf in range(2):
                    if c["order"] == "n":
                        a = vA1 if (t ^ hf) else vA0; off = ks2 * 2048 + hf * 256
                    else:
                        a = vB1 if t else vB0; off = ks2 * 2048 + hf * 1024
                    k("ds_read_b64_tr_b16 %s, v%d offset:%d" % (ur(d + 2 * hf, 2), a, slot * 4096 + off))
    N = len(chunks)
    for n in range(min(nslots, N)): issue(n)
    for n in range(N):
        rem = min(N - 1 - n, nslots - 1) * 4
        k("s_waitcnt vmcnt(%d)" % rem)
        read(n)
        k("s_waitcnt lgkmcnt(0)")
        if n + nslots < N: issue(n + nslots)

def gemm_role(k, name, NK, NT, chunks_fn, in_off, in_lstride, in_sstride, in_kbase_fn, in_layout, wflag_fn, wtarget, epi_fn, sflag_fn, nseg=64, NC=4, local_out=False):
    vL = 1; vL16 = 2
    k("v_and_b32 v%d, 63, v0\nv_lshlrev_b32 v%d, 4, v%d" % (vL, vL16, vL))
    gsync(k)
    w0wait(k)
    sRing = T + 5
    fmt(k, "s_mul_i32 s{r}, s{W}, 40960", r=sRing)
    chunks = chunks_fn(k)
    load_weights(k, chunks, vL, 8, sRing)
    k("s_barrier")
    gmark(k, 2)
    BUF = 2 * NK * 1024
    sIn, sWf, sSf, sBuf, sIss, sFv, sEp = 66, 67, 68, 69, 70, 71, 72
    fmt(k, "s_mul_i32 s{i}, s{LY}, 0x{ls:x}\ns_add_u32 s{i}, s{i}, 0x{o:x}", i=sIn, ls=in_lstride, o=in_off)
    in_kbase_fn(k, sIn)
    wflag_fn(k, sWf); sflag_fn(k, sSf)
    epi_init, epi = epi_fn(k, sEp)
    nd = 2 * NK // 4
    assert (2 * NK) % 4 == 0 and NK % NC == 0
    per = NK // NC
    needs = [((c + 1) * per * 2 + 3) // 4 for c in range(NC)]
    NUP = nd if FOLD_DMA == 0 else needs[1]
    sDg, sDl = 81, 82
    def dma(sbase, sbuf):
        k("s_mov_b32 s%d, s%d\ns_mov_b32 s%d, s%d" % (sDg, sbase, sDl, sbuf))
        for j in range(NUP):
            k("s_add_u32 s%d, s%d, %d" % (T, sbuf, j * 4096))
            k("s_mov_b32 m0, s%d" % T)
            k("s_add_u32 s%d, s%d, %d" % (T + 1, sbase, j * 4096 if in_layout == "kt" else j * 2048))
            k("buffer_load_dwordx4 v%d, %s, s%d offen sc1 lds" % (vL16, WSR, T + 1))
    sWl, sWg, sDst = 73, 74, 75
    fmt(k, "s_lshl_b32 s{a}, s{W}, 10", a=sWl)
    if in_layout == "kt": fmt(k, "s_lshl_b32 s{a}, s{W}, 10", a=sWg)
    else: fmt(k, "s_and_b32 s{T}, s{W}, 1\ns_lshl_b32 s{T}, s{T}, 14\ns_lshr_b32 s{T1}, s{W}, 1\ns_lshl_b32 s{T1}, s{T1}, 10\ns_add_u32 s{a}, s{T}, s{T1}", a=sWg)
    def issue_dma(nextbuf_sgpr):
        k("s_add_u32 s%d, s%d, s%d" % (T + 2, sIn, sWg))
        k("s_add_u32 s%d, s%d, s%d" % (T + 3, nextbuf_sgpr, sWl))
        dma(T + 2, T + 3)
    vFa, vFb = 3, 4
    if DEVM(): k("s_mov_b32 s94, 0\ns_mov_b32 s95, 0")
    sPend, sSfp, sExF = 76, 77, 78
    sSfp2 = 83; sEarly = 84
    k("s_mov_b32 s%d, 0" % sEarly)
    DEC = 0x20000
    k("s_mov_b32 s%d, 0\ns_mov_b32 s%d, 0\ns_mov_b32 s%d, 0\ns_mov_b32 s%d, 0x%x\ns_mov_b32 s%d, 0x%x" % (S_STEP, sBuf, sPend, sSfp, F_DUMMY, sSfp2, F_DUMMY))
    k("s_cmp_eq_u32 s%d, 0\ns_cselect_b32 s%d, 1, 0\ns_mov_b32 s%d, 0" % (S_WAVE, sExF, sExF + 1))
    epi_init()
    wait_n(k, sWf, wtarget, vFa, vFb, sleep=OPT["slfirst"])
    issue_dma(sBuf)
    k("s_mov_b32 s%d, 0" % sIss)
    vRd = 5
    vSg = 6
    vB = 8
    vAcc = 32
    def signal(soff): signal_set(k, soff, sExF, vSg, vSg + 1, local=local_out)
    Lloop = "L_%s_loop" % name
    k.label(Lloop)
    steplog(k, 6, 7, 0xF100000)
    k("v_add_u32 v%d, s%d, v%d" % (vRd, sBuf, vL16))
    k("s_add_u32 s%d, s%d, %d" % (sIn, sIn, in_sstride))
    k("s_add_u32 s%d, s%d, %d" % (sWf, sWf, wflag_fn.stride))
    def rd(ks):
        s_ = vB + 8 * (ks % 3)
        return ["ds_read_b128 %s, v%d offset:%d" % (vr(s_, 4), vRd, (ks * 2) * 1024), "ds_read_b128 %s, v%d offset:%d" % (vr(s_ + 4, 4), vRd, (ks * 2 + 1) * 1024)]
    def chunk(c, extra):
        ks0 = c * per
        for x in rd(ks0): k(x)
        if per > 1:
            for x in rd(ks0 + 1): k(x)
        for ks in range(ks0, ks0 + per):
            nxt = ks + 2
            pend = 2 * (min(ks0 + per - 1, ks + 1) - ks)
            k("s_waitcnt lgkmcnt(%d)" % pend)
            s_ = vB + 8 * (ks % 3)
            mf = []
            for t in range(NT):
                for tt in range(2):
                    a = vAcc + (t * 2 + tt) * 4
                    mf.append("v_mfma_f32_16x16x32_bf16 %s, %s, %s, %s" % (vr(a, 4), ur(chunks_fn.frag(t, ks), 4), vr(s_ + 4 * tt, 4), "0" if ks == 0 else vr(a, 4)))
            fill = rd(nxt) if nxt < ks0 + per else []
            if extra: fill = fill + extra.pop(0)
            interleave(k, mf, fill, per=2 if extra is not None else 1, start=0)
    def dma_groups(sbase, sbuf):
        G = []
        for j in range(nd):
            G.append(["s_add_u32 s%d, s%d, %d" % (T, sbuf, j * 4096), "s_mov_b32 m0, s%d" % T,
                      "s_add_u32 s%d, s%d, %d" % (T + 1, sbase, j * 4096 if in_layout == "kt" else j * 2048),
                      "buffer_load_dwordx4 v%d, %s, s%d offen sc1 lds" % (vL16, WSR, T + 1)])
        return G
    def dgroup(j, sg, sl):
        return ["s_add_u32 s%d, s%d, %d" % (T, sl, j * 4096), "s_mov_b32 m0, s%d" % T,
                "s_add_u32 s%d, s%d, %d" % (T + 1, sg, j * 4096 if in_layout == "kt" else j * 2048),
                "buffer_load_dwordx4 v%d, %s, s%d offen sc1 lds" % (vL16, WSR, T + 1)]
    assert NC == 4
    def share(tag):
        Lw = k.uid("L_dec")
        k("v_mov_b32 v%d, s%d\nv_mov_b32 v%d, 0x%x" % (vFb, sFv, vSg, DEC + tag))
        k("s_cmp_eq_u32 s%d, 0\ns_cbranch_scc0 %s" % (S_WAVE, Lw))
        k("s_mov_b64 exec, 1\nds_write_b32 v%d, v%d\ns_mov_b64 exec, -1\ns_waitcnt lgkmcnt(0)" % (vSg, vFb))
        k.label(Lw)
    def fetch():
        k("ds_read_b32 v%d, v%d\ns_waitcnt lgkmcnt(0)\nv_readfirstlane_b32 s%d, v%d" % (vFb, vSg, sFv, vFb))
    def pending_signal(sreg):
        Ls = k.uid("L_ps")
        k("s_cmp_eq_u32 s%d, 0x%x\ns_cbranch_scc1 %s" % (sreg, F_DUMMY, Ls))
        signal(sreg)
        k("s_mov_b32 s%d, 0x%x" % (sreg, F_DUMMY))
        k.label(Ls)
    poll_issue_n(k, sWf, wtarget, vFa, vFb)
    LB = k.uid("L_varB"); Lni = k.uid("L_ni"); LB1 = k.uid("L_varB1"); Llate = k.uid("L_late")
    def decide(tag, no_label):
        k("s_waitcnt vmcnt(0)")
        poll_eval_n(k, wtarget, vFb, sFv)
        share(tag)
        k("s_barrier")
        pending_signal(sSfp2)
        fetch()
        k("s_cmp_ge_u32 s%d, %d\ns_cbranch_scc1 %s" % (S_STEP, nseg - 1, no_label))
        k("s_cmp_eq_u32 s%d, 1\ns_cbranch_scc0 %s" % (sFv, no_label))
        if not OPT["modeA"]: k("s_branch %s" % no_label)
    def mode_a(c0):
        if DEVM(): k("s_add_u32 s94, s94, 1")
        k("s_add_u32 s%d, s%d, s%d\ns_xor_b32 s%d, s%d, %d\ns_add_u32 s%d, s%d, s%d" % (sDg, sIn, sWg, sDl, sBuf, BUF, sDl, sDl, sWl))
        G = [dgroup(j, sDg, sDl) for j in range(nd)]
        n = (NC - c0) * per
        slots = [[] for _ in range(n)]
        for j, g in enumerate(G): slots[(j * n) // len(G)] += g
        for c in range(c0, NC):
            if OPT["earlyA"] and c == 2 and c0 == 1: k("s_barrier")
            chunk(c, slots[(c - c0) * per:(c - c0 + 1) * per])
        steplog(k, 6, 7, 0xF200000)
        epi(vAcc)
        k("s_xor_b32 s%d, s%d, %d\ns_add_u32 s%d, s%d, 1" % (sBuf, sBuf, BUF, S_STEP, S_STEP))
        k("s_mov_b32 s%d, s%d\ns_add_u32 s%d, s%d, %d\ns_mov_b32 s%d, 1\ns_branch %s" % (sSfp2, sSf, sSf, sSf, sflag_fn.stride, sEarly, Lloop))
    k("s_waitcnt vmcnt(%d)\ns_barrier" % (nd - needs[0] + 1))
    pending_signal(sSfp)
    chunk(0, None)
    if OPT["earlyA"]:
        k("s_cmp_eq_u32 s%d, 1\ns_cbranch_scc0 %s" % (sEarly, Llate))
        decide(0, LB1)
        mode_a(1)
        k.label(LB1)
        chunk(1, None)
        k("s_barrier")
        k("s_branch %s" % LB)
        k.label(Llate)
    k("s_waitcnt vmcnt(%d)\ns_barrier" % (nd - needs[1] + 1))
    chunk(1, None)
    decide(0, LB)
    mode_a(2)
    k.label(LB)
    k("s_mov_b32 s%d, 0" % sEarly)
    chunk(2, None)
    poll_issue_n(k, sWf, wtarget, vFa, vFb)
    chunk(3, None)
    steplog(k, 6, 7, 0xF200000)
    epi(vAcc)
    k("s_xor_b32 s%d, s%d, %d" % (sBuf, sBuf, BUF))
    k("s_add_u32 s%d, s%d, 1" % (S_STEP, S_STEP))
    k("s_waitcnt vmcnt(%d)" % epi.nstores)
    poll_eval_n(k, wtarget, vFb, sFv)
    share(4)
    k("s_barrier")
    fetch()
    k("s_cmp_ge_u32 s%d, %d\ns_cbranch_scc1 %s" % (S_STEP, nseg, Lni))
    k("s_cmp_eq_u32 s%d, 1\ns_cbranch_scc0 %s" % (sFv, Lni))
    if DEVM(): k("s_add_u32 s95, s95, 1")
    issue_dma(sBuf)
    k("s_mov_b32 s%d, s%d\ns_add_u32 s%d, s%d, %d\ns_branch %s" % (sSfp, sSf, sSf, sSf, sflag_fn.stride, Lloop))
    k.label(Lni)
    k("s_waitcnt vmcnt(0)\ns_barrier")
    signal(sSf)
    steplog(k, 6, 7, 0xF300000)
    k("s_add_u32 s%d, s%d, %d" % (sSf, sSf, sflag_fn.stride))
    Lfin = k.uid("L_gfin")
    k("s_cmp_ge_u32 s%d, %d\ns_cbranch_scc1 %s" % (S_STEP, nseg, Lfin))
    wait_n(k, sWf, wtarget, vFa, vFb, sleep=OPT["sleepN"])
    issue_dma(sBuf)
    k("s_branch %s" % Lloop)
    k.label(Lfin)
    k("s_waitcnt vmcnt(0)")
    gmark(k, 3); gdump(k)
    k("s_branch L_end")

def g3_role(k):
    def chunks_fn(k):
        sCol = T + 6
        fmt(k, "s_and_b32 s{T}, s{R}, 3\ns_lshl_b32 s{T}, s{T}, 8\ns_lshl_b32 s{T1}, s{W}, 6\ns_add_u32 s{c}, s{T}, s{T1}\ns_lshr_b32 s{T}, s{R}, 2\ns_lshl_b32 s{T}, s{T}, 20\ns_add_u32 s{c}, s{c}, s{T}", c=sCol)
        return [dict(ptr=P_WO, nbytes=4096 * 1024, stride=1024, scol=sCol, row0=64 * c, order="p",
                     dest={(t, ks2): chunks_fn.frag(t, 2 * c + ks2) for t in range(2) for ks2 in range(2)}) for c in range(16)]
    chunks_fn.frag = lambda t, ks: 256 + (t * 32 + ks) * 4
    def kbase(k, sIn): fmt(k, "s_lshr_b32 s{T}, s{R}, 2\ns_lshl_b32 s{T}, s{T}, 16\ns_add_u32 s{i}, s{i}, s{T}", i=sIn)
    def wflag(k, s): fmt(k, "s_lshl_b32 s{T}, s{LY}, 15\ns_lshr_b32 s{T1}, s{R}, 2\ns_lshl_b32 s{T1}, s{T1}, 7\ns_add_u32 s{T}, s{T}, s{T1}\ns_add_u32 s{s}, s{T}, 0x{F:x}", s=s, F=F_O)
    wflag.stride = 4 * FL
    def sflag(k, s): fmt(k, "s_lshl_b32 s{T}, s{LY}, 13\ns_lshl_b32 s{T1}, s{R}, 2\ns_add_u32 s{T}, s{T}, s{T1}\ns_add_u32 s{s}, s{T}, 0x{F:x}", s=s, F=F_P3)
    sflag.stride = FL
    return gemm_role(k, "g3", 32, 2, chunks_fn, OFF_O, O_L, O_SEG, kbase, "kt", wflag, 8, partial_epi(OFF_P3, P3_L, P3_SEG, 2), sflag, local_out=OPT["local"])

def partial_epi(off, lstride, sstride, shift):
    def epi_fn(k, sEp):
        def init():
            fmt(k, """
            s_mul_i32 s{e}, s{LY}, 0x{ls:x}
            s_add_u32 s{e}, s{e}, 0x{o:x}
            s_lshr_b32 s{T}, s{R}, 2
            s_lshl_b32 s{T}, s{T}, 16
            s_add_u32 s{e}, s{e}, s{T}
            s_and_b32 s{T}, s{R}, 3
            s_lshl_b32 s{T}, s{T}, 14
            s_add_u32 s{e}, s{e}, s{T}
            s_lshl_b32 s{T}, s{W}, 12
            s_add_u32 s{e}, s{e}, s{T}
            """, e=sEp, ls=lstride, o=off)
        def epi(vAcc):
            k("s_nop 7")
            def stores(fl):
                for t in range(2):
                    for tt in range(2):
                        a = vAcc + (t * 2 + tt) * 4
                        k("buffer_store_dwordx4 %s, v2, %s, s%d offen offset:%d%s" % (vr(a, 4), WSR, sEp, (t * 2 + tt) * 1024, fl))
            if OPT["local"]:
                La = k.uid("L_pe"); Lb = k.uid("L_pe")
                k("s_cmp_eq_u32 s%d, 1\ns_cbranch_scc0 %s" % (S_FAST, La))
                stores("")
                k("s_branch %s" % Lb)
                k.label(La)
                stores(" sc1")
                k.label(Lb)
            else:
                stores(" sc1")
            k("s_add_u32 s%d, s%d, %d" % (sEp, sEp, sstride))
        epi.nstores = 4
        return init, epi
    return epi_fn

def g5_role(k):
    def chunks_fn(k):
        sCol = T + 6
        fmt(k, "s_and_b32 s{T}, s{R}, 3\ns_lshl_b32 s{T}, s{T}, 8\ns_lshl_b32 s{T1}, s{W}, 6\ns_add_u32 s{c}, s{T}, s{T1}\ns_lshr_b32 s{T}, s{R}, 2\ns_mul_i32 s{T}, s{T}, {x}\ns_add_u32 s{c}, s{c}, s{T}", c=sCol, x=896 * 1024)
        return [dict(ptr=P_WD, nbytes=1792 * 1024, stride=1024, scol=sCol, row0=64 * c, order="p",
                     dest={(t, ks2): chunks_fn.frag(t, 2 * c + ks2) for t in range(2) for ks2 in range(2)}) for c in range(14)]
    chunks_fn.frag = lambda t, ks: 256 + (t * 28 + ks) * 4
    def kbase(k, sIn): fmt(k, "s_lshr_b32 s{T}, s{R}, 2\ns_mul_i32 s{T}, s{T}, {x}\ns_add_u32 s{i}, s{i}, s{T}", i=sIn, x=28 * 2048)
    def wflag(k, s): fmt(k, "s_lshl_b32 s{T}, s{LY}, 14\ns_lshr_b32 s{T1}, s{R}, 2\ns_lshl_b32 s{T1}, s{T1}, 7\ns_add_u32 s{T}, s{T}, s{T1}\ns_add_u32 s{s}, s{T}, 0x{F:x}", s=s, F=F_H)
    wflag.stride = 2 * FL
    def sflag(k, s): fmt(k, "s_lshl_b32 s{T}, s{LY}, 13\ns_lshl_b32 s{T1}, s{R}, 2\ns_add_u32 s{T}, s{T}, s{T1}\ns_add_u32 s{s}, s{T}, 0x{F:x}", s=s, F=F_P5)
    sflag.stride = FL
    return gemm_role(k, "g5", 28, 2, chunks_fn, OFF_H, H_L, H_SEG, kbase, "kt", wflag, 7, partial_epi(OFF_P5, P5_L, P5_SEG, 1), sflag, local_out=OPT["local"])

def g4_role(k):
    def chunks_fn(k):
        sCol = T + 6
        fmt(k, "s_lshl_b32 s{T}, s{R}, 8\ns_lshl_b32 s{T1}, s{W}, 6\ns_add_u32 s{c}, s{T}, s{T1}", c=sCol)
        L = []
        for m, ptr in enumerate((P_WG, P_WU)):
            L += [dict(ptr=ptr, nbytes=512 * 3584, stride=3584, scol=sCol, row0=64 * c, order="n",
                       dest={(t, ks2): chunks_fn.frag(2 * m + t, 2 * c + ks2) for t in range(2) for ks2 in range(2)}) for c in range(8)]
        return L
    chunks_fn.frag = lambda t, ks: 256 + (t * 16 + ks) * 4
    def kbase(k, sIn): pass
    def wflag(k, s): fmt(k, "s_lshl_b32 s{T}, s{LY}, 13\ns_add_u32 s{s}, s{T}, 0x{F:x}", s=s, F=F_XF)
    wflag.stride = FL
    def sflag(k, s): fmt(k, "s_lshl_b32 s{T}, s{LY}, 14\ns_cmp_ge_u32 s{R}, 7\ns_cselect_b32 s{T1}, 100, 0\ns_add_u32 s{T}, s{T}, s{T1}\ns_lshl_b32 s{T1}, s{R}, 2\ns_add_u32 s{T}, s{T}, s{T1}\ns_add_u32 s{s}, s{T}, 0x{F:x}", s=s, F=F_H)
    sflag.stride = 2 * FL
    def epi_fn(k, sEp):
        def init():
            fmt(k, """
            s_mul_i32 s{e}, s{LY}, 0x{ls:x}
            s_add_u32 s{e}, s{e}, 0x{o:x}
            s_lshl_b32 s{T}, s{R}, 2
            s_add_u32 s{T}, s{T}, s{W}
            s_lshl_b32 s{T}, s{T}, 11
            s_add_u32 s{e}, s{e}, s{T}
            """, e=sEp, ls=H_L, o=OFF_H)
        def epi(vAcc):
            k("s_nop 7")
            for tt in range(2):
                g0, g1, u0, u1 = [vAcc + (t * 2 + tt) * 4 for t in range(4)]
                for r in range(4):
                    k("v_mul_f32 v%d, v%d, v%d" % (g0 + r, g0 + r, u0 + r))
                    k("v_mul_f32 v%d, v%d, v%d" % (g1 + r, g1 + r, u1 + r))
                k("v_cvt_pk_bf16_f32 v%d, v%d, v%d" % (u0 + 0, g0, g0 + 1))
                k("v_cvt_pk_bf16_f32 v%d, v%d, v%d" % (u0 + 1, g0 + 2, g0 + 3))
                k("v_cvt_pk_bf16_f32 v%d, v%d, v%d" % (u0 + 2, g1, g1 + 1))
                k("v_cvt_pk_bf16_f32 v%d, v%d, v%d" % (u0 + 3, g1 + 2, g1 + 3))
                k("buffer_store_dwordx4 %s, v2, %s, s%d offen offset:%d sc1" % (vr(u0, 4), WSR, sEp, tt * 1024))
            k("s_add_u32 s%d, s%d, %d" % (sEp, sEp, H_SEG))
        epi.nstores = 2
        return init, epi
    return gemm_role(k, "g4", 16, 4, chunks_fn, OFF_XF, XN_L, 32768, kbase, "tk", wflag, 4, epi_fn, sflag)

def f_loads(k, NK, sP, srdRes, sRes, vbase, native=False):
    vP = vbase; vR = vbase + 64
    if native:
        k("buffer_load_dwordx4 %s, v8, %s, s%d offen sc1" % (vr(vR, 4), srdRes, sRes))
        k("buffer_load_dwordx4 %s, v9, %s, s%d offen sc1" % (vr(vR + 4, 4), srdRes, sRes))
    else:
        k("buffer_load_dwordx4 %s, v2, %s, s%d offen sc1" % (vr(vR, 4), srdRes, sRes))
        k("buffer_load_dwordx4 %s, v2, %s, s%d offen offset:16 sc1" % (vr(vR + 4, 4), srdRes, sRes))
    for kq in range(NK):
        if kq: k("s_add_u32 s%d, s%d, %d" % (T + 4, sP, kq * 65536))
        for g in range(4):
            k("buffer_load_dwordx4 %s, v1, %s, s%d offen offset:%d sc1" % (vr(vP + (kq * 4 + g) * 4, 4), WSR, (T + 4) if kq else sP, g * 256))

def f_math(k, NK, outs, vbase, vw, pre_stats=None, post_stats=None):
    vP = vbase; vR = vbase + 64
    vX = vw; t0, t1, t2, t3 = vw + 16, vw + 17, vw + 18, vw + 19
    k("s_mov_b32 s%d, 0xffff0000" % (T + 4))
    for i in range(8):
        k("v_lshlrev_b32 v%d, 16, v%d" % (vX + 2 * i, vR + i))
        k("v_and_b32 v%d, s%d, v%d" % (vX + 2 * i + 1, T + 4, vR + i))
    for kq in range(NK):
        for c in range(16):
            k("v_add_f32 v%d, v%d, v%d" % (vX + c, vX + c, vP + kq * 16 + c))
    if NK:
        for i in range(8): k("v_cvt_pk_bf16_f32 v%d, v%d, v%d" % (vR + i, vX + 2 * i, vX + 2 * i + 1))
    if outs.get("x"):
        srd, so, fl = outs["x"]
        if outs.get("xnative"):
            k("buffer_store_dwordx4 %s, v8, %s, s%d offen %s" % (vr(vR, 4), srd, so, fl))
            k("buffer_store_dwordx4 %s, v9, %s, s%d offen %s" % (vr(vR + 4, 4), srd, so, fl))
        else:
            k("buffer_store_dwordx4 %s, v2, %s, s%d offen %s" % (vr(vR, 4), srd, so, fl))
            k("buffer_store_dwordx4 %s, v2, %s, s%d offen offset:16 %s" % (vr(vR + 4, 4), srd, so, fl))
    if outs.get("xn") is None:
        if post_stats: post_stats()
        return
    if NK:
        for i in range(8):
            k("v_lshlrev_b32 v%d, 16, v%d" % (vX + 2 * i, vR + i))
            k("v_and_b32 v%d, s%d, v%d" % (vX + 2 * i + 1, T + 4, vR + i))
    def reduce_all(v, slot, pre=None):
        k("s_nop 1")
        k("v_add_f32_dpp v%d, v%d, v%d row_ror:8 row_mask:0xf bank_mask:0xf" % (v, v, v))
        k("v_mov_b32 v%d, v%d\ns_nop 1\nv_permlane16_swap_b32 v%d, v%d\nv_add_f32 v%d, v%d, v%d" % (t1, v, v, t1, v, v, t1))
        k("v_mov_b32 v%d, v%d\ns_nop 1\nv_permlane32_swap_b32 v%d, v%d\nv_add_f32 v%d, v%d, v%d" % (t1, v, v, t1, v, v, t1))
        k("ds_write_b32 v4, v%d offset:%d" % (v, slot * 1024))
        if pre: pre()
        k("s_waitcnt lgkmcnt(0)\ns_barrier")
        k("ds_read_b32 v%d, v5 offset:%d" % (v, slot * 1024))
        k("ds_read_b32 v%d, v5 offset:%d" % (t1, slot * 1024 + 256))
        k("ds_read_b32 v%d, v5 offset:%d" % (t2, slot * 1024 + 512))
        k("ds_read_b32 v%d, v5 offset:%d" % (t3, slot * 1024 + 768))
        k("s_waitcnt lgkmcnt(0)")
        k("v_add_f32 v%d, v%d, v%d\nv_add_f32 v%d, v%d, v%d\nv_add_f32 v%d, v%d, v%d" % (v, v, t1, t2, t2, t3, v, v, t2))
    k("v_add_f32 v%d, v%d, v%d\nv_add_f32 v%d, v%d, v%d" % (t0, vX, vX + 1, t1, vX + 2, vX + 3))
    for c in range(4, 16, 2): k("v_add_f32 v%d, v%d, v%d\nv_add_f32 v%d, v%d, v%d" % (t0, t0, vX + c, t1, t1, vX + c + 1))
    k("v_add_f32 v%d, v%d, v%d" % (t0, t0, t1))
    reduce_all(t0, 0, pre_stats)
    if post_stats: post_stats()
    k("v_mul_f32 v%d, 0x%x, v%d" % (t0, f32(1.0 / 512), t0))
    for c in range(16): k("v_sub_f32 v%d, v%d, v%d" % (vX + c, vX + c, t0))
    k("v_mul_f32 v%d, v%d, v%d\nv_mul_f32 v%d, v%d, v%d" % (t0, vX, vX, t1, vX + 1, vX + 1))
    for c in range(2, 16, 2): k("v_fmac_f32 v%d, v%d, v%d\nv_fmac_f32 v%d, v%d, v%d" % (t0, vX + c, vX + c, t1, vX + c + 1, vX + c + 1))
    k("v_add_f32 v%d, v%d, v%d" % (t0, t0, t1))
    reduce_all(t0, 1)
    k("v_mov_b32 v%d, 0x%x" % (t1, f32(1e-5)))
    k("v_fmac_f32 v%d, 0x%x, v%d" % (t1, f32(1.0 / 512), t0))
    k("v_rsq_f32 v%d, v%d\ns_nop 0" % (t0, t1))
    for c in range(16): k("v_mul_f32 v%d, v%d, v%d" % (vX + c, vX + c, t0))
    for i in range(8): k("v_cvt_pk_bf16_f32 v%d, v%d, v%d" % (vR + i, vX + 2 * i, vX + 2 * i + 1))
    so = outs["xn"]
    k("buffer_store_dwordx4 %s, v3, %s, s%d offen sc1" % (vr(vR, 4), WSR, so))
    k("buffer_store_dwordx4 %s, v3, %s, s%d offen offset:256 sc1" % (vr(vR + 4, 4), WSR, so))

def f_compute(k, NK, sP, srdRes, sRes, outs, vbase=8):
    f_loads(k, NK, sP, srdRes, sRes, vbase)
    k("s_waitcnt vmcnt(0)")
    f_math(k, NK, outs, vbase, vbase + 72)

def f_lane_setup(k):
    fmt(k, """
    v_and_b32 v6, 7, v0
    v_lshrrev_b32 v7, 3, v0
    v_lshlrev_b32 v5, 4, v6
    v_lshl_add_u32 v1, v7, 11, v5
    v_lshlrev_b32 v2, 10, v6
    v_lshl_add_u32 v2, v7, 5, v2
    v_lshrrev_b32 v3, 1, v7
    v_lshlrev_b32 v3, 10, v3
    v_and_b32 v4, 1, v7
    v_lshl_add_u32 v3, v4, 9, v3
    v_add_u32 v3, v3, v5
    v_and_b32 v4, 63, v0
    v_lshlrev_b32 v4, 2, v4
    s_lshl_b32 s{T}, s{W}, 8
    v_add_u32 v4, s{T}, v4
    v_lshlrev_b32 v5, 2, v6
    v_lshlrev_b32 v8, 4, v0
    v_add_u32 v9, 0x1000, v8
    """)

def f_role(k, kind, nF):
    name = "f%d" % kind
    gsync(k)
    f_lane_setup(k)
    sN, sP, sRes, sWf = 66, 67, 68, 69
    sXo, sXn, sSf = 70, 71, 72
    sNXo, sNXn, sNSf = 73, 74, 75
    sSfp, sFv, sIss, sExF = 76, 77, 78, 80
    off, ls, ss, NK, wF, wT = (OFF_P3, P3_L, P3_SEG, 4, F_P3, 16) if kind == 3 else (OFF_P5, P5_L, P5_SEG, 2, F_P5, 8)
    build_srd(k, S_SRD2, P_X, S * D * 2)
    build_srd(k, S_SRD3, P_OUT, S * D * 2)
    SR2 = "s[%d:%d]" % (S_SRD2, S_SRD2 + 3); SR3 = "s[%d:%d]" % (S_SRD3, S_SRD3 + 3)
    L0 = k.uid("L_f0"); L1 = k.uid("L_f1")
    k("s_cmp_eq_u32 s%d, 0\ns_cbranch_scc0 %s" % (S_L, L1))
    for ly, lab in ((0, L0), (1, L1)):
        k.label(lab)
        if kind == 3:
            res = (SR2, 0) if ly == 0 else (WSR, OFF_X2)
            xo = (WSR, OFF_X1 + ly * X_L, "sc1")
            rnat = (ly == 1); onat = True
            xn = OFF_XF + ly * XN_L; sig = F_XF + ly * 64 * FL
        else:
            res = (WSR, OFF_X1 + ly * X_L)
            xo = (WSR, OFF_X2, "sc1") if ly == 0 else (SR3, 0, "")
            rnat = True; onat = (ly == 0)
            xn = (OFF_XN + XN_L) if ly == 0 else None; sig = (F_XN + 64 * FL) if ly == 0 else None
        def bind_next():
            fmt(k, """
            s_lshr_b32 s{T}, s{n}, 2
            s_and_b32 s{T1}, s{n}, 3
            s_mul_i32 s{T2}, s{T}, 0x{ss:x}
            s_lshr_b32 s{T3}, s{T1}, 1
            s_lshl_b32 s{T4}, s{T3}, 10
            s_add_u32 s{T2}, s{T2}, s{T4}
            s_and_b32 s{T4}, s{T1}, 1
            s_lshl_b32 s{T4}, s{T4}, 7
            s_add_u32 s{T2}, s{T2}, s{T4}
            s_add_u32 s{p}, s{T2}, 0x{pb:x}
            s_lshl_b32 s{T2}, s{n}, 13
            s_add_u32 s{r}, s{T2}, 0x{rb:x}
            s_add_u32 s{xo}, s{T2}, 0x{xb:x}
            s_lshl_b32 s{T2}, s{T}, 7
            s_add_u32 s{wf}, s{T2}, 0x{wb:x}
            """, n=sN, ss=ss, T4=T + 4, p=sP, pb=off + ly * ls, r=sRes, rb=res[1], xo=sNXo, xb=xo[1], wf=sWf, wb=wF + ly * 64 * FL)
            if xn is not None:
                fmt(k, """
                s_lshl_b32 s{T3}, s{T3}, 14
                s_add_u32 s{T3}, s{T3}, s{T4}
                s_lshl_b32 s{T4}, s{T}, 15
                s_add_u32 s{T3}, s{T3}, s{T4}
                s_add_u32 s{xn}, s{T3}, 0x{nb:x}
                s_lshl_b32 s{T1}, s{T1}, 2
                s_add_u32 s{T1}, s{T1}, s{T2}
                s_add_u32 s{sf}, s{T1}, 0x{sb:x}
                """, T4=T + 4, xn=sNXn, nb=xn, sf=sNSf, sb=sig)
        def take_next():
            k("s_mov_b32 s%d, s%d" % (sXo, sNXo))
            if xn is not None: k("s_mov_b32 s%d, s%d\ns_mov_b32 s%d, s%d" % (sXn, sNXn, sSf, sNSf))
            k("s_add_u32 s%d, s%d, %d" % (sN, sN, nF))
            bind_next()
        k("s_mov_b32 s%d, s%d\ns_mov_b32 s%d, 0x%x" % (sN, S_RANK, sSfp, F_DUMMY))
        k("s_cmp_eq_u32 s%d, 0\ns_cselect_b32 s%d, 1, 0\ns_mov_b32 s%d, 0" % (S_WAVE, sExF, sExF + 1))
        k("s_mov_b32 s%d, 0" % S_STEP)
        SETS = (16, 96); vW = 176
        vFa, vFb, vSg = 6, 7, 10
        DEC = 0x1000
        def signal(soff): signal_set(k, soff, sExF, vSg, vSg + 1)
        bind_next()
        wait_n(k, sWf, wT, vFa, vFb, sleep=OPT["slfirst"])
        f_loads(k, NK, sP, res[0], sRes, SETS[0], rnat)
        Ll = "L_%s_l%d" % (name, ly)
        k.label(Ll)
        for par in range(2):
            cur, nxt = SETS[par], SETS[1 - par]
            if DEVM(): k("s_lshr_b32 s%d, s%d, 2" % (S_STEP, sN))
            steplog(k, vFa, vFb, 0xF100000)
            take_next()
            k("s_waitcnt vmcnt(0)")
            poll_issue_n(k, sWf, wT, vFa, vFb)
            if xn is not None:
                k("s_barrier")
                signal(sSfp)
                k("s_mov_b32 s%d, 0x%x" % (sSfp, F_DUMMY))
            def pre():
                Lw = k.uid("L_fw")
                k("s_waitcnt vmcnt(3)\nv_mov_b32 v%d, 0x%x" % (vSg, DEC))
                poll_eval_n(k, wT, vFb, sFv)
                k("v_mov_b32 v%d, s%d" % (vFb, sFv))
                k("s_cmp_eq_u32 s%d, 0\ns_cbranch_scc0 %s" % (S_WAVE, Lw))
                k("s_mov_b64 exec, 1\nds_write_b32 v%d, v%d\ns_mov_b64 exec, -1" % (vSg, vFb))
                k.label(Lw)
            def post():
                if xn is not None:
                    k("ds_read_b32 v%d, v%d\ns_waitcnt lgkmcnt(0)" % (vFb, vSg))
                    k("v_readfirstlane_b32 s%d, v%d" % (sFv, vFb))
                else:
                    k("s_waitcnt vmcnt(2)")
                    poll_eval_n(k, wT, vFb, sFv)
                k("s_mov_b32 s%d, 0" % sIss)
                Ln = k.uid("L_fn")
                k("s_cmp_lt_u32 s%d, 256\ns_cbranch_scc0 %s" % (sN, Ln))
                k("s_cmp_eq_u32 s%d, 1\ns_cbranch_scc0 %s" % (sFv, Ln))
                f_loads(k, NK, sP, res[0], sRes, nxt, rnat)
                k("s_mov_b32 s%d, 1" % sIss)
                k.label(Ln)
            f_math(k, NK, dict(x=(xo[0], sXo, xo[2]), xnative=onat, xn=(sXn if xn is not None else None)), cur, vW, pre_stats=pre, post_stats=post)
            if xn is not None: k("s_mov_b32 s%d, s%d" % (sSfp, sSf))
            Lni = k.uid("L_fni"); Lgo = k.uid("L_fgo")
            k("s_cmp_eq_u32 s%d, 1\ns_cbranch_scc1 %s" % (sIss, Lgo))
            k("s_waitcnt vmcnt(0)")
            if xn is not None:
                k("s_barrier")
                signal(sSfp)
                k("s_mov_b32 s%d, 0x%x" % (sSfp, F_DUMMY))
            k("s_cmp_ge_u32 s%d, 256\ns_cbranch_scc1 %s_fin" % (sN, Ll))
            wait_n(k, sWf, wT, vFa, vFb)
            f_loads(k, NK, sP, res[0], sRes, nxt, rnat)
            k.label(Lgo)
            if par == 1: k("s_branch %s" % Ll)
        k.label(Ll + "_fin")
        k("s_waitcnt vmcnt(0)")
        gmark(k, 3); gdump(k)
        k("s_branch L_end")

S_SYNC = 99
NWG = 256
def gsync(k):
    from chain import S_FAST
    Ld = k.uid("L_gs_done"); Lw = k.uid("L_gs_w"); Lp = k.uid("L_gs_p"); Lq = k.uid("L_gs_q")
    k("s_cmp_eq_u32 s%d, 1\ns_cbranch_scc1 %s" % (S_SYNC, Ld))
    k("s_cmp_eq_u32 s%d, 0\ns_cbranch_scc0 %s" % (S_WAVE, Lw))
    k("v_mov_b32 v100, 32")
    k.label(Lp)
    fmt(k, """
    s_mov_b64 exec, 1
    global_load_dword v101, v100, s[{d}:{d1}] sc1
    s_mov_b64 exec, -1
    s_waitcnt vmcnt(0)
    v_readfirstlane_b32 s{T}, v101
    s_sub_u32 s{spin}, s{spin}, 1
    s_cbranch_scc1 L_abort
    s_cmp_ge_u32 s{T}, {n}
    s_cbranch_scc1 {q}
    s_sleep 4
    s_branch {p}
    """, d=P_DBG, d1=P_DBG + 1, spin=S_SPIN, n=NWG, q=Lq, p=Lp)
    k.label(Lq)
    fmt(k, """
    v_and_b32 v102, 63, v0
    v_lshlrev_b32 v102, 2, v102
    s_mov_b64 exec, 0xff
    global_load_dword v101, v102, s[{d}:{d1}] sc1
    s_waitcnt vmcnt(0)
    ds_write_b32 v102, v101
    s_mov_b64 exec, -1
    s_waitcnt lgkmcnt(0)
    """, d=P_DBG, d1=P_DBG + 1)
    k.label(Lw)
    k("s_barrier\nv_mov_b32 v100, 0\nds_read_b128 v[104:107], v100\nds_read_b128 v[108:111], v100 offset:16\ns_waitcnt lgkmcnt(0)")
    k("s_mov_b32 s%d, 1\ns_mov_b32 s%d, 0" % (S_FAST, T + 1))
    for x in range(8):
        k("v_readfirstlane_b32 s%d, v%d" % (T, 104 + x))
        k("s_cmp_eq_u32 s%d, 32\ns_cselect_b32 s%d, s%d, 0" % (T, S_FAST, S_FAST))
        k("s_cmp_gt_u32 s%d, %d\ns_cselect_b32 s%d, s%d, 0\ns_add_u32 s%d, s%d, s%d" % (S_XCC, x, T, T, T + 1, T + 1, T))
    k("s_barrier")
    k("s_mov_b32 s%d, 1" % S_SYNC)
    k("s_cmp_eq_u32 s%d, 1\ns_cbranch_scc1 %s" % (S_FAST, Ld))
    k("s_add_u32 s%d, s%d, s98\ns_branch L_dispatch" % (S_RANK, T + 1))
    k.label(Ld)

def w0wait(k):
    if not OPT["w0wait"]: return
    k("s_mov_b32 s%d, 0x%x" % (T + 4, F_W0))
    Lp = k.uid("L_w0w"); Ld = k.uid("L_w0d")
    k.label(Lp)
    k("v_and_b32 v100, 63, v0\nv_lshlrev_b32 v100, 2, v100\nv_add_u32 v100, s%d, v100" % (T + 4))
    k("s_mov_b32 exec_lo, -1\ns_mov_b32 exec_hi, 0\nbuffer_load_dword v101, v100, %s, 0 offen sc1\ns_mov_b64 exec, -1\ns_waitcnt vmcnt(0)" % WSR)
    k("v_cmp_ne_u32 vcc, 0, v101\ns_cmp_eq_u32 vcc_lo, -1\ns_cbranch_scc1 %s" % Ld)
    spin_check(k, ABORT)
    k("s_sleep 16\ns_branch %s" % Lp)
    k.label(Ld)

def lane_consts_attn(k, vL, vL16, vW16, vTrK, vVm, vMk, vH16, vWH, t0, t1, t2, t3, kmb):
    fmt(k, """
    s_lshl_b32 s{T}, s{W}, 10
    v_add_u32 v{w16}, s{T}, v{l16}
    v_lshrrev_b32 v{t0}, 4, v{L}
    v_bfe_u32 v{t1}, v{L}, 2, 2
    v_lshl_add_u32 v{t1}, v{t0}, 2, v{t1}
    v_lshlrev_b32 v{t2}, 5, v{t1}
    v_and_b32 v{t3}, 3, v{L}
    v_lshl_add_u32 v{t2}, v{t3}, 3, v{t2}
    v_lshrrev_b32 v{t1}, 1, v{t0}
    v_lshlrev_b32 v{t1}, 7, v{t1}
    v_xor_b32 v{trk}, v{t2}, v{t1}
    v_add_u32 v{trk}, 0x{kmb:x}, v{trk}
    v_add_u32 v{h16}, 0x10000, v{l16}
    v_add_u32 v{wh}, 0x10000, v{w16}
    v_and_b32 v{t1}, 15, v{L}
    v_lshlrev_b32 v{t2}, 5, v{t1}
    v_lshl_add_u32 v{t2}, v{t0}, 3, v{t2}
    v_bfe_u32 v{t3}, v{L}, 3, 1
    v_lshlrev_b32 v{t3}, 7, v{t3}
    v_xor_b32 v{t2}, v{t2}, v{t3}
    s_lshr_b32 s{T}, s{W}, 1
    s_lshl_b32 s{T}, s{T}, 11
    s_add_u32 s{T}, s{T}, 0x{kmb4:x}
    v_add_u32 v{vm}, s{T}, v{t2}
    v_lshlrev_b32 v{t0}, 2, v{t0}
    s_and_b32 s{T1}, s{W}, 1
    """, L=vL, l16=vL16, w16=vW16, trk=vTrK, vm=vVm, t0=t0, t1=t1, t2=t2, t3=t3, h16=vH16, wh=vWH, kmb=kmb, kmb4=kmb + 4)
    for r in range(4):
        fmt(k, """
        v_add_u32 v{t2}, {r}, v{t0}
        v_cmp_gt_u32 vcc, v{t2}, v{t1}
        v_mov_b32 v{t3}, 0
        v_mov_b32 v{t2}, 0xff800000
        v_cndmask_b32 v{t3}, v{t3}, v{t2}, vcc
        s_cmp_eq_u32 s{T1}, 0
        s_cselect_b64 vcc, -1, 0
        v_mov_b32 v{a}, 0
        s_nop 1
        v_cndmask_b32 v{a}, v{a}, v{t3}, vcc
        v_cndmask_b32 v{b}, v{t3}, v{t2}, vcc
        """, r=r, t0=t0, t1=t1, t2=t2, t3=t3, a=vMk + r, b=vMk + 4 + r)

def dma_lin(k, vW16, soff, lds_s, lds_imm, n):
    for j in range(n):
        k("s_add_u32 s%d, s%d, %d\ns_mov_b32 m0, s%d" % (T, lds_s, lds_imm + j * 4096, T))
        k("s_add_u32 s%d, s%d, %d" % (T + 1, soff, j * 4096))
        k("buffer_load_dwordx4 v%d, %s, s%d offen sc1 lds" % (vW16, WSR, T + 1))

KV_DUMMY = 0xF800000
def kv_epi_list(vAcc, vG, vW16, sOut, sW10):
    L = []
    for tt in range(2):
        a0 = vAcc + (0 * 2 + tt) * 4; a1 = vAcc + (1 * 2 + tt) * 4; g = vG + 4 * tt
        L += ["v_cvt_pk_bf16_f32 v%d, v%d, v%d" % (g, a0, a0 + 1), "v_cvt_pk_bf16_f32 v%d, v%d, v%d" % (g + 1, a0 + 2, a0 + 3),
              "v_cvt_pk_bf16_f32 v%d, v%d, v%d" % (g + 2, a1, a1 + 1), "v_cvt_pk_bf16_f32 v%d, v%d, v%d" % (g + 3, a1 + 2, a1 + 3),
              "s_add_u32 s%d, s%d, %d" % (T, sOut, tt * 4096),
              "buffer_store_dwordx4 %s, v%d, %s, s%d offen sc1" % (vr(g, 4), vW16, WSR, T)]
    for t in range(2):
        a0 = vAcc + 16 + (t * 2 + 0) * 4; a1 = vAcc + 16 + (t * 2 + 1) * 4; g = vG + 8 + 4 * t
        L += ["v_cvt_pk_bf16_f32 v%d, v%d, v%d" % (g, a0, a0 + 1), "v_cvt_pk_bf16_f32 v%d, v%d, v%d" % (g + 1, a0 + 2, a0 + 3),
              "v_cvt_pk_bf16_f32 v%d, v%d, v%d" % (g + 2, a1, a1 + 1), "v_cvt_pk_bf16_f32 v%d, v%d, v%d" % (g + 3, a1 + 2, a1 + 3),
              "s_add_u32 s%d, s%d, s%d" % (T, sW10, sOut), "s_add_u32 s%d, s%d, %d" % (T, T, 8192 + t * 1024),
              "buffer_store_dwordx4 %s, v%d, %s, s%d offen sc1" % (vr(g, 4), vW16, WSR, T)]
    return L
def kv_body(k, frag, vX, vAccCur, vAccPrev, vG, vXr, vW16, sW10, sOutPrev, sXnext, sBufNext, mid_fn):
    seq = [(tt, ks) for tt in range(2) for ks in range(16)]
    def rd(i):
        tt, ks = seq[i]
        return "ds_read_b128 %s, v%d offset:%d" % (vr(vX + 4 * (i % 3), 4), vXr, (tt * 16 + ks) * 1024)
    epi = kv_epi_list(vAccPrev, vG, vW16, sOutPrev, sW10)
    dma = []
    for j in range(8):
        dma.append(["s_add_u32 s%d, s%d, %d" % (T + 2, sBufNext, j * 4096), "s_mov_b32 m0, s%d" % (T + 2), "s_add_u32 s%d, s%d, %d" % (T + 3, sXnext, j * 4096),
                    "buffer_load_dwordx4 v%d, %s, s%d offen sc1 lds" % (vW16, WSR, T + 3)])
    k(rd(0)); k(rd(1))
    for i, (tt, ks) in enumerate(seq):
        k("s_waitcnt lgkmcnt(%d)" % (1 if i + 1 < len(seq) else 0))
        x = vr(vX + 4 * (i % 3), 4)
        mf = []
        for t in range(2):
            a = vAccCur + (t * 2 + tt) * 4
            mf.append("v_mfma_f32_16x16x32_bf16 %s, %s, %s, %s" % (vr(a, 4), ur(frag(0, t, ks), 4), x, "0" if ks == 0 else vr(a, 4)))
        for t in range(2):
            a = vAccCur + 16 + (t * 2 + tt) * 4
            mf.append("v_mfma_f32_16x16x32_bf16 %s, %s, %s, %s" % (vr(a, 4), x, ur(frag(1, t, ks), 4), "0" if ks == 0 else vr(a, 4)))
        fill = [rd(i + 2)] if i + 2 < len(seq) else []
        if 2 <= i < 10:
            n = 4 if i < 9 else len(epi)
            fill += [epi.pop(0) for _ in range(min(n, len(epi)))]
        if 10 <= i < 18: fill += dma.pop(0)
        interleave(k, mf, fill, per=2, start=0)
        if i == 25:
            k("s_waitcnt vmcnt(8)\ns_barrier")
            mid_fn()
    assert not epi and not dma
def kv_flush(k, vAcc, vG, vW16, sOut, sW10):
    k("s_nop 7")
    for x in kv_epi_list(vAcc, vG, vW16, sOut, sW10): k(x)

NHELP = 32
def kv_role(k, nseg=64):
    vL = 1; vL16 = 2; vW16 = 3
    k("v_and_b32 v%d, 63, v0\nv_lshlrev_b32 v%d, 4, v%d" % (vL, vL16, vL))
    sRing = T + 5; sCol = T + 6
    fmt(k, "s_mul_i32 s{r}, s{W}, 40960\ns_lshl_b32 s{T}, s{R}, 8\ns_lshl_b32 s{T1}, s{W}, 6\ns_add_u32 s{c}, s{T}, s{T1}", r=sRing, c=sCol)
    frag = lambda m, t, ks: 256 + ((m * 2 + t) * 16 + ks) * 4
    chunks = []
    for m, ptr in ((0, P_WK), (1, P_WV)):
        chunks += [dict(ptr=ptr, nbytes=512 * 8192, stride=8192, scol=sCol, row0=64 * c, order="n",
                        dest={(t, ks2): frag(m, t, 2 * c + ks2) for t in range(2) for ks2 in range(2)}) for c in range(8)]
    load_weights(k, chunks, vL, 8, sRing)
    k("s_barrier")
    gsync(k)
    gmark(k, 2)
    sX = (66, 67); sKV = (68, 69); sFK = (70, 71); sN = (72, 73)
    sFX1, sW10, sBuf, sDec, sExF = 74, 75, 76, 77, 78
    sOutP, sCFP, sOutC, sCFC, sOutN, sCFN, sXn, sNL, sBn, sSt = 80, 81, 82, 83, 84, 85, 86, 87, 60, 61
    fmt(k, """
    s_lshl_b32 s{w10}, s{W}, 10
    v_add_u32 v{w16}, s{w10}, v{l16}
    s_mov_b32 s{x0}, 0x{ox:x}
    s_mov_b32 s{x1}, 0x{ox1:x}
    s_lshl_b32 s{T}, s{R}, 20
    s_add_u32 s{k0}, s{T}, 0x{okv:x}
    s_add_u32 s{k1}, s{k0}, 0x{kvl:x}
    s_lshl_b32 s{T}, s{R}, 7
    s_add_u32 s{f0}, s{T}, 0x{FKV:x}
    s_add_u32 s{f1}, s{f0}, 0x40000
    s_mov_b32 s{n0}, 0
    s_mov_b32 s{n1}, 0
    s_mov_b32 s{fx}, 0x{FX1:x}
    s_mov_b32 s{op}, 0x{KD:x}
    s_mov_b32 s{cp}, 0x{FD:x}
    s_mov_b32 s{dec}, 0
    s_cmp_eq_u32 s{W}, 0
    s_cselect_b32 s{ex}, 1, 0
    s_mov_b32 s{ex1}, 0
    """, w10=sW10, w16=vW16, l16=vL16, x0=sX[0], x1=sX[1], ox=OFF_XN, ox1=OFF_XN + XN_L, k0=sKV[0], k1=sKV[1], okv=OFF_KV, kvl=KV_L,
       f0=sFK[0], f1=sFK[1], FKV=F_KV, n0=sN[0], n1=sN[1], fx=sFX1, FX1=F_XN + 64 * FL, op=sOutP, KD=KV_DUMMY, cp=sCFP, FD=F_DUMMY, dec=sDec, ex=sExF, ex1=sExF + 1)
    DEC = 0x10000
    vFa, vFb, vD, vXr, vS1, vS2 = 4, 5, 6, 7, 8, 9
    vX = 12; ACC = (32, 64); vG = 96
    def pick(ly):
        k("s_mov_b32 s%d, s%d\ns_mov_b32 s%d, s%d\ns_mov_b32 s%d, s%d\ns_mov_b32 s%d, %d" % (sXn, sX[ly], sOutN, sKV[ly], sCFN, sFK[ly], sNL, ly))
        if ly == 1:
            k("s_add_u32 s%d, s%d, 32768\ns_add_u32 s%d, s%d, 1\ns_add_u32 s%d, s%d, %d" % (sX[1], sX[1], sN[1], sN[1], sFX1, sFX1, FL))
            k("s_add_u32 s%d, s%d, 16384\ns_add_u32 s%d, s%d, 4096" % (sKV[1], sKV[1], sFK[1], sFK[1]))
        else:
            k("s_cmp_lt_u32 s%d, %d\ns_cselect_b32 s%d, 2, 1" % (sN[0], 2 * NHELP, sSt))
            k("s_add_u32 s%d, s%d, s%d\ns_lshl_b32 s%d, s%d, 15\ns_add_u32 s%d, s%d, s%d" % (sN[0], sN[0], sSt, T, sSt, sX[0], sX[0], T))
            k("s_lshl_b32 s%d, s%d, 14\ns_add_u32 s%d, s%d, s%d\ns_lshl_b32 s%d, s%d, 12\ns_add_u32 s%d, s%d, s%d" % (T, sSt, sKV[0], sKV[0], T, T, sSt, sFK[0], sFK[0], T))
    def signal_prev():
        k("v_mov_b32 v%d, s%d\nv_mov_b32 v%d, 4\ns_mov_b64 exec, s[%d:%d]" % (vS1, sCFP, vS2, sExF, sExF + 1))
        k("buffer_store_dword v%d, v%d, %s, 0 offen sc1\ns_mov_b64 exec, -1" % (vS2, vS1, WSR))
    def share_poll():
        L = k.uid("L_sh")
        poll_eval_n(k, 4, vFb, sDec)
        k("v_mov_b32 v%d, s%d\nv_mov_b32 v%d, 0x%x" % (vFb, sDec, vD, DEC))
        k("s_cmp_eq_u32 s%d, 0\ns_cbranch_scc0 %s" % (S_WAVE, L))
        k("s_mov_b64 exec, 1\nds_write_b32 v%d, v%d\ns_mov_b64 exec, -1\ns_waitcnt lgkmcnt(0)" % (vD, vFb))
        k.label(L)
        k("s_barrier\nds_read_b32 v%d, v%d\ns_waitcnt lgkmcnt(0)\nv_readfirstlane_b32 s%d, v%d" % (vS1, vD, sDec, vS1))
    def load_current():
        k("s_add_u32 s%d, s%d, s%d" % (T + 2, sBuf, sW10))
        dma_lin(k, vW16, sXn, T + 2, 0, 8)
        k("s_mov_b32 s%d, s%d\ns_mov_b32 s%d, s%d" % (sOutC, sOutN, sCFC, sCFN))
        k("s_waitcnt vmcnt(0)\ns_barrier")
    k("s_mov_b32 s%d, 0" % sBuf)
    pick(0)
    load_current()
    LT = ["L_kv_top0", "L_kv_top1"]
    for par in range(2):
        k.label(LT[par])
        if DEVM():
            k("s_mov_b32 s%d, 0" % S_STEP) if False else None
        L0 = k.uid("L_n0"); Ln = k.uid("L_nn"); Lz = k.uid("L_nz")
        k("s_cmp_lt_u32 s%d, %d\ns_cbranch_scc0 %s" % (sN[1], nseg, L0))
        k("s_cmp_eq_u32 s%d, 1\ns_cbranch_scc0 %s" % (sDec, L0))
        pick(1)
        k("s_branch %s" % Ln)
        k.label(L0)
        k("s_cmp_lt_u32 s%d, %d\ns_cbranch_scc0 %s" % (sN[0], nseg, Lz))
        pick(0)
        k("s_branch %s" % Ln)
        k.label(Lz)
        k("s_mov_b32 s%d, 2\ns_mov_b32 s%d, 0x%x" % (sNL, sXn, OFF_XN))
        k.label(Ln)
        k("v_add_u32 v%d, s%d, v%d" % (vXr, sBuf, vL16))
        k("s_xor_b32 s%d, s%d, 0x8000\ns_add_u32 s%d, s%d, s%d" % (sBn, sBuf, sBn, sBn, sW10))
        def mid():
            poll_issue_n(k, sFX1, 4, vFa, vFb)
            signal_prev()
        kv_body(k, frag, vX, ACC[par], ACC[1 - par], vG, vXr, vW16, sW10, sOutP, sXn, sBn, mid)
        k("s_waitcnt vmcnt(1)")
        share_poll()
        k("s_mov_b32 s%d, s%d\ns_mov_b32 s%d, s%d" % (sOutP, sOutC, sCFP, sCFC))
        k("s_mov_b32 s%d, s%d\ns_mov_b32 s%d, s%d" % (sOutC, sOutN, sCFC, sCFN))
        k("s_xor_b32 s%d, s%d, 0x8000" % (sBuf, sBuf))
        k("s_cmp_eq_u32 s%d, 2\ns_cbranch_scc0 %s" % (sNL, LT[1 - par]))
        kv_flush(k, ACC[par], vG, vW16, sOutP, sW10)
        k("s_waitcnt vmcnt(0)\ns_barrier")
        signal_prev()
        k("s_mov_b32 s%d, 0x%x\ns_mov_b32 s%d, 0x%x" % (sOutP, KV_DUMMY, sCFP, F_DUMMY))
        k("s_cmp_lt_u32 s%d, %d\ns_cbranch_scc0 L_kv_fin" % (sN[1], nseg))
        wait_n(k, sFX1, 4, vFa, vFb)
        pick(1)
        poll_issue_n(k, sFX1, 4, vFa, vFb)
        load_current()
        share_poll()
        k("s_branch %s" % LT[1 - par])
    k.label("L_kv_fin")
    k("s_waitcnt vmcnt(0)")
    gmark(k, 3); gdump(k)
    k("s_branch L_end")

def DEVM():
    import chain
    return chain.DEV["marks"]

def kv_helper(k, frag, vL16):
    vW16 = 3; vS1, vS2, vXr = 4, 5, 6
    vX = 12; ACC = (32, 64); vG = 96
    sX, sOutC, sOutP, sF, sPF, sW10, sBuf, sExF, sI, sBn = 66, 67, 68, 69, 70, 71, 72, 74, 76, 77
    fmt(k, """
    s_lshl_b32 s{w10}, s{W}, 10
    v_add_u32 v{w16}, s{w10}, v{l16}
    s_mov_b32 s{x}, 0x{ox:x}
    s_lshl_b32 s{T}, s{R}, 20
    s_add_u32 s{o}, s{T}, 0x{okv:x}
    s_mov_b32 s{op}, 0x{KD:x}
    s_lshl_b32 s{T}, s{R}, 7
    s_add_u32 s{f}, s{T}, 0x{FKV:x}
    s_mov_b32 s{pf}, 0x{FD:x}
    s_mov_b32 s{b}, 0
    s_mov_b32 s{i}, 0
    s_cmp_eq_u32 s{W}, 0
    s_cselect_b32 s{ex}, 1, 0
    s_mov_b32 s{ex1}, 0
    """, w10=sW10, w16=vW16, l16=vL16, x=sX, ox=OFF_XN + 32768, o=sOutC, op=sOutP, KD=KV_DUMMY, okv=OFF_KV + 16384, f=sF, FKV=F_KV + 4096, pf=sPF, FD=F_DUMMY,
       b=sBuf, i=sI, ex=sExF, ex1=sExF + 1)
    def signal_prev():
        k("v_mov_b32 v%d, s%d\nv_mov_b32 v%d, 4\ns_mov_b64 exec, s[%d:%d]" % (vS1, sPF, vS2, sExF, sExF + 1))
        k("buffer_store_dword v%d, v%d, %s, 0 offen sc1\ns_mov_b64 exec, -1" % (vS2, vS1, WSR))
    dma_lin(k, vW16, sX, sW10, 0, 8)
    k("s_waitcnt vmcnt(0)\ns_barrier")
    Lt = k.uid("L_help")
    k.label(Lt)
    assert NHELP % 2 == 0
    for par in range(2):
        k("s_add_u32 s%d, s%d, 65536\ns_xor_b32 s%d, s%d, 0x8000\ns_add_u32 s%d, s%d, s%d" % (sX, sX, sBn, sBuf, sBn, sBn, sW10))
        k("v_add_u32 v%d, s%d, v%d" % (vXr, sBuf, vL16))
        kv_body(k, frag, vX, ACC[par], ACC[1 - par], vG, vXr, vW16, sW10, sOutP, sX, sBn, signal_prev)
        k("s_waitcnt vmcnt(1)\ns_barrier")
        k("s_mov_b32 s%d, s%d\ns_mov_b32 s%d, s%d\ns_add_u32 s%d, s%d, 8192\ns_add_u32 s%d, s%d, 32768\ns_xor_b32 s%d, s%d, 0x8000" % (sOutP, sOutC, sPF, sF, sF, sF, sOutC, sOutC, sBuf, sBuf))
    k("s_add_u32 s%d, s%d, 2\ns_cmp_lt_u32 s%d, %d\ns_cbranch_scc1 %s" % (sI, sI, sI, NHELP, Lt))
    kv_flush(k, ACC[1], vG, vW16, sOutP, sW10)
    k("s_waitcnt vmcnt(0)\ns_barrier")
    signal_prev()
    k("s_waitcnt vmcnt(0)\ns_barrier")

def qa_role(k, nseg=64):
    vL = 1; vL16 = 2
    k("v_and_b32 v%d, 63, v0\nv_lshlrev_b32 v%d, 4, v%d" % (vL, vL16, vL))
    sRing = T + 5; sCol = T + 6
    fmt(k, "s_mul_i32 s{r}, s{W}, 40960\ns_lshl_b32 s{T}, s{R}, 8\ns_lshl_b32 s{T1}, s{W}, 6\ns_add_u32 s{c}, s{T}, s{T1}", r=sRing, c=sCol)
    frag = lambda t, ks: 128 + (t * 16 + ks) * 4
    fragkv = lambda m, t, ks: 256 + ((m * 2 + t) * 16 + ks) * 4
    Lq = k.uid("L_qonly")
    k("s_cmp_eq_u32 s%d, 1\ns_cbranch_scc0 %s" % (S_L, Lq))
    chunks = []
    for m, ptr in ((0, P_WK), (1, P_WV)):
        chunks += [dict(ptr=ptr, nbytes=512 * 8192, stride=8192, scol=sCol, row0=64 * c, order="n",
                        dest={(t, ks2): fragkv(m, t, 2 * c + ks2) for t in range(2) for ks2 in range(2)}) for c in range(8)]
    load_weights(k, chunks, vL, 8, sRing)
    k("s_barrier")
    gsync(k)
    kv_helper(k, fragkv, vL16)
    fmt(k, "s_mul_i32 s{r}, s{W}, 40960\ns_lshl_b32 s{T}, s{R}, 8\ns_lshl_b32 s{T1}, s{W}, 6\ns_add_u32 s{c}, s{T}, s{T1}", r=sRing, c=sCol)
    k.label(Lq)
    chunks = [dict(ptr=P_WQ, nbytes=512 * 8192, stride=8192, scol=sCol, row0=64 * c, order="n",
                   dest={(t, ks2): frag(t, 2 * c + ks2) for t in range(2) for ks2 in range(2)}) for c in range(8)]
    load_weights(k, chunks, vL, 8, sRing)
    k("s_barrier")
    gsync(k)
    gmark(k, 2)
    HI = 0x10000; KMB = 0x18000; QX = 0x19000
    vW16, vTrK, vVm, vMk = 3, 4, 5, 6
    vH16 = 17; vWH = 18; vXr = 19
    t0, t1, t2, t3 = 120, 121, 122, 123
    lane_consts_attn(k, vL, vL16, vW16, vTrK, vVm, vMk, vH16, vWH, t0, t1, t2, t3, KMB)
    sXb, sKVi, sKM, sO, sFKV, sFKM, sFO, sC, sFOp, sW10, sBx, sBk = range(66, 78)
    fmt(k, """
    s_lshl_b32 s{w10}, s{W}, 10
    s_mul_i32 s{T}, s{LY}, 0x{xl:x}
    s_add_u32 s{xb}, s{T}, 0x{ox:x}
    s_mul_i32 s{T}, s{LY}, 0x{kvl:x}
    s_add_u32 s{T}, s{T}, 0x{okv:x}
    s_lshl_b32 s{T1}, s{R}, 20
    s_add_u32 s{kvi}, s{T}, s{T1}
    s_mul_i32 s{T}, s{LY}, 0x{kml:x}
    s_add_u32 s{T}, s{T}, 0x{okm:x}
    s_lshl_b32 s{T1}, s{R}, 18
    s_add_u32 s{km}, s{T}, s{T1}
    s_mul_i32 s{T}, s{LY}, 0x{ol:x}
    s_add_u32 s{T}, s{T}, 0x{oo:x}
    s_lshl_b32 s{T1}, s{R}, 13
    s_add_u32 s{T}, s{T}, s{T1}
    s_lshr_b32 s{T1}, s{W}, 1
    s_lshl_b32 s{T1}, s{T1}, 12
    s_add_u32 s{T}, s{T}, s{T1}
    s_and_b32 s{T1}, s{W}, 1
    s_lshl_b32 s{T1}, s{T1}, 10
    s_add_u32 s{o}, s{T}, s{T1}
    s_lshl_b32 s{T}, s{LY}, 18
    s_lshl_b32 s{T1}, s{R}, 7
    s_add_u32 s{T}, s{T}, s{T1}
    s_add_u32 s{fkv}, s{T}, 0x{FKV:x}
    s_add_u32 s{fkm}, s{T}, 0x{FKM:x}
    s_lshl_b32 s{T}, s{LY}, 15
    s_lshr_b32 s{T1}, s{R}, 3
    s_lshl_b32 s{T1}, s{T1}, 7
    s_add_u32 s{T}, s{T}, s{T1}
    s_and_b32 s{T1}, s{R}, 7
    s_lshl_b32 s{T1}, s{T1}, 2
    s_add_u32 s{T}, s{T}, s{T1}
    s_add_u32 s{fo}, s{T}, 0x{FO:x}
    s_cmp_eq_u32 s{W}, 0
    s_cselect_b32 s78, 1, 0
    s_mov_b32 s79, 0
    s_mov_b32 s{c}, 0x{cc:x}
    s_mov_b32 s{fop}, 0x{FD:x}
    s_mov_b32 s{bx}, 0
    s_mov_b32 s{bk}, 0
    """, w10=sW10, xl=XN_L, ox=OFF_XN, xb=sXb, kvl=KV_L, okv=OFF_KV, kvi=sKVi, kml=KM_L, okm=OFF_KM, km=sKM, ol=O_L, oo=OFF_O, o=sO,
       fkv=sFKV, FKV=F_KV, fkm=sFKM, FKM=F_KM, fo=sFO, FO=F_O, c=sC, cc=f32(SCALE_LOG2E), fop=sFOp, FD=F_DUMMY, bx=sBx, bk=sBk)
    vFa, vFb = 14, 15
    def fetch_inputs():
        wait_flag(k, sFKV, 4, vFa, vFb, sleep=OPT["slfirst"])
        k("s_add_u32 s%d, s%d, s%d" % (T + 2, sW10, sBx))
        dma_lin(k, vW16, sXb, T + 2, 0, 8)
        k("s_add_u32 s%d, s%d, s%d" % (T + 2, sW10, sBk))
        dma_lin(k, vW16, sKVi, T + 2, 0x10000, 4)
        k("s_add_u32 s%d, s%d, 32768\ns_add_u32 s%d, s%d, 16384\ns_add_u32 s%d, s%d, 4096" % (sXb, sXb, sKVi, sKVi, sFKV, sFKV))
    k("s_mov_b32 s%d, 0" % S_STEP)
    fetch_inputs()
    wait_flag(k, sFKV, 4, vFa, vFb)
    k("s_waitcnt vmcnt(0)\ns_barrier")
    vX = 20; vAcc = 32; vFc = 16
    k.label("L_qa_loop")
    steplog(k, 14, 15, 0xF100000)
    k("s_waitcnt vmcnt(2)\ns_barrier")
    k("v_add_u32 v%d, s%d, v%d" % (vXr, sBx, vL16))
    vKc = 124
    k("v_add_u32 v%d, s%d, v%d" % (vKc, sBk, vH16))
    k("s_xor_b32 s%d, s%d, 0x8000\ns_xor_b32 s%d, s%d, 0x4000" % (sBx, sBx, sBk, sBk))
    k("v_mov_b32 v%d, s%d\ns_mov_b64 exec, 1\nbuffer_load_dword v%d, v%d, %s, 0 offen sc1\ns_mov_b64 exec, -1" % (vFa, sFKM, vFc, vFa, WSR))
    sDx, sDk = 80, 81
    k("s_add_u32 s%d, s%d, s%d\ns_add_u32 s%d, s%d, s%d\ns_add_u32 s%d, s%d, 0x10000" % (sDx, sW10, sBx, sDk, sW10, sBk, sDk, sDk))
    dm = []
    for j in range(8):
        dm.append(["s_add_u32 s%d, s%d, %d" % (T, sDx, j * 4096), "s_mov_b32 m0, s%d" % T, "s_add_u32 s%d, s%d, %d" % (T + 1, sXb, j * 4096),
                   "buffer_load_dwordx4 v%d, %s, s%d offen sc1 lds" % (vW16, WSR, T + 1)])
    for j in range(4):
        dm.append(["s_add_u32 s%d, s%d, %d" % (T, sDk, j * 4096), "s_mov_b32 m0, s%d" % T, "s_add_u32 s%d, s%d, %d" % (T + 1, sKVi, j * 4096),
                   "buffer_load_dwordx4 v%d, %s, s%d offen sc1 lds" % (vW16, WSR, T + 1)])
    seq = [(tt, ks) for tt in range(2) for ks in range(16)]
    def rdq(i):
        tt, ks = seq[i]
        return "ds_read_b128 %s, v%d offset:%d" % (vr(vX + 4 * (i % 3), 4), vXr, (tt * 16 + ks) * 1024)
    k(rdq(0)); k(rdq(1))
    for i, (tt, ks) in enumerate(seq):
        k("s_waitcnt lgkmcnt(%d)" % (1 if i + 1 < len(seq) else 0))
        x = vr(vX + 4 * (i % 3), 4)
        mf = ["v_mfma_f32_16x16x32_bf16 %s, %s, %s, %s" % (vr(vAcc + (t * 2 + tt) * 4, 4), ur(frag(t, ks), 4), x, "0" if ks == 0 else vr(vAcc + (t * 2 + tt) * 4, 4)) for t in range(2)]
        fill = [rdq(i + 2)] if i + 2 < len(seq) else []
        if i % 2 == 1 and dm and i >= 3: fill += dm.pop(0)
        interleave(k, mf, fill, per=3, start=0)
    assert not dm
    k("s_cmp_lt_u32 s%d, %d\ns_cselect_b32 s%d, 32768, 0\ns_cselect_b32 s%d, 16384, 0" % (S_STEP, nseg - 2, T, T + 1))
    k("s_add_u32 s%d, s%d, s%d\ns_add_u32 s%d, s%d, s%d" % (sXb, sXb, T, sKVi, sKVi, T + 1))
    k("s_nop 3")
    for tt in range(2):
        a0 = vAcc + (0 * 2 + tt) * 4; a1 = vAcc + (1 * 2 + tt) * 4; g = 64 + 4 * tt
        k("v_cvt_pk_bf16_f32 v%d, v%d, v%d\nv_cvt_pk_bf16_f32 v%d, v%d, v%d" % (g, a0, a0 + 1, g + 1, a0 + 2, a0 + 3))
        k("v_cvt_pk_bf16_f32 v%d, v%d, v%d\nv_cvt_pk_bf16_f32 v%d, v%d, v%d" % (g + 2, a1, a1 + 1, g + 3, a1 + 2, a1 + 3))
        k("ds_write_b128 v%d, %s offset:%d" % (vWH, vr(g, 4), QX - HI + tt * 4096))
    k("s_waitcnt vmcnt(12) lgkmcnt(0)\ns_barrier")
    signal_set(k, sFOp, 78, vFa, vFb)
    steplog(k, vFa, vFb, 0xF400000)
    vQ = 64
    fmt(k, "s_and_b32 s{T}, s{W}, 1\ns_lshl_b32 s{T}, s{T}, 12\nv_add_u32 v{t0}, s{T}, v{l16}", t0=t0, l16=vH16)
    for ks in range(4): k("ds_read_b128 %s, v%d offset:%d" % (vr(vQ + 4 * ks, 4), t0, QX - HI + ks * 1024))
    Lok = k.uid("L_kmok")
    k("v_readfirstlane_b32 s%d, v%d\ns_cmp_ge_u32 s%d, 4\ns_cbranch_scc1 %s" % (T + 2, vFc, T + 2, Lok))
    wait_flag(k, sFKM, 4, vFa, vFb, sleep=(OPT["slq"] or False))
    k.label(Lok)
    steplog(k, vFa, vFb, 0xF200000)
    dma_lin(k, vW16, sKM, sW10, KMB, 1)
    order = [(t, ks) for ks in range(4) for t in range(2)]
    kf = [104, 108, 112, 116, 80, 84, 44, 48]
    for i, (t, ks) in enumerate(order): k("ds_read_b128 %s, v%d offset:%d" % (vr(kf[i], 4), vKc, (t * 4 + ks) * 1024))
    vS = 32
    k("s_waitcnt lgkmcnt(0)")
    for i, (t, ks) in enumerate(order):
        c = vr(vMk + 4 * t, 4) if ks == 0 else vr(vS + 4 * t, 4)
        k("v_mfma_f32_16x16x32_bf16 %s, %s, %s, %s" % (vr(vS + 4 * t, 4), vr(kf[i], 4), vr(vQ + 4 * ks, 4), c))
    vVf = 88; vVmr = 104; vKm = 80
    fmt(k, "s_lshr_b32 s{T}, s{W}, 1\ns_lshl_b32 s{T}, s{T}, 12\nv_add_u32 v{t0}, s{T}, v{kc}", t0=t0, kc=vKc)
    for i in range(4): k("ds_read_b128 %s, v%d offset:%d" % (vr(vVf + 4 * i, 4), t0, 8192 + i * 1024))
    k("s_waitcnt vmcnt(0)\ns_barrier")
    vKm = 52
    vKm = 104
    for ks in range(4):
        k("ds_read_b64_tr_b16 %s, v%d offset:%d" % (vr(vKm + 4 * ks, 2), vTrK, ks * 1024))
        k("ds_read_b64_tr_b16 %s, v%d offset:%d" % (vr(vKm + 4 * ks + 2, 2), vTrK, ks * 1024 + 512))
    vVmr = 44
    for i in range(4): k("ds_read_b32 v%d, v%d offset:%d" % (vVmr + 2 * i, vVm, i * 512))
    for i in range(4): k("v_mov_b32 v%d, 0" % (vVmr + 2 * i + 1))
    k("s_waitcnt lgkmcnt(4)")
    for ks in range(4):
        k("v_mfma_f32_16x16x32_bf16 %s, %s, %s, %s" % (vr(vS + 8, 4), vr(vKm + 4 * ks, 4), vr(vQ + 4 * ks, 4), "0" if ks == 0 else vr(vS + 8, 4)))
    k("s_nop 7")
    vals = [vS + i for i in range(10)]
    m = 120; m2 = 121
    k("v_max3_f32 v%d, v%d, v%d, v%d" % (m, vals[0], vals[1], vals[2]))
    k("v_max3_f32 v%d, v%d, v%d, v%d" % (m2, vals[3], vals[4], vals[5]))
    k("v_max3_f32 v%d, v%d, v%d, v%d" % (m, m, vals[6], vals[7]))
    k("v_max3_f32 v%d, v%d, v%d, v%d" % (m2, m2, vals[8], vals[9]))
    k("v_max_f32 v%d, v%d, v%d" % (m, m, m2))
    k("v_mov_b32 v%d, v%d\ns_nop 1\nv_permlane32_swap_b32 v%d, v%d\nv_max_f32 v%d, v%d, v%d" % (m2, m, m, m2, m, m, m2))
    k("v_mov_b32 v%d, v%d\ns_nop 1\nv_permlane16_swap_b32 v%d, v%d\nv_max_f32 v%d, v%d, v%d" % (m2, m, m, m2, m, m, m2))
    k("v_mul_f32 v%d, s%d, v%d" % (m, sC, m))
    for v in vals: k("v_fma_f32 v%d, v%d, s%d, -v%d" % (v, v, sC, m))
    for v in vals: k("v_exp_f32 v%d, v%d" % (v, v))
    vPx = 112; vPm = 116; ones = 80
    for i in range(4): k("v_mov_b32 v%d, 0x3f803f80" % (ones + i))
    for i in range(4): k("v_cvt_pk_bf16_f32 v%d, v%d, v%d" % (vPx + i, vals[2 * i], vals[2 * i + 1]))
    k("v_cvt_pk_bf16_f32 v%d, v%d, v%d\nv_mov_b32 v%d, 0" % (vPm, vals[8], vals[9], vPm + 1))
    vO = 52; vSum = 68
    k("s_waitcnt lgkmcnt(0)\ns_nop 0")
    k("v_mfma_f32_16x16x32_bf16 %s, %s, %s, 0" % (vr(vSum, 4), vr(ones, 4), vr(vPx, 4)))
    for i in range(4): k("v_mfma_f32_16x16x32_bf16 %s, %s, %s, 0" % (vr(vO + 4 * i, 4), vr(vVf + 4 * i, 4), vr(vPx, 4)))
    k("v_mfma_f32_16x16x16_bf16 %s, %s, %s, %s" % (vr(vSum, 4), vr(ones, 2), vr(vPm, 2), vr(vSum, 4)))
    for i in range(4): k("v_mfma_f32_16x16x16_bf16 %s, %s, %s, %s" % (vr(vO + 4 * i, 4), vr(vVmr + 2 * i, 2), vr(vPm, 2), vr(vO + 4 * i, 4)))
    k("s_nop 3")
    k("v_rcp_f32 v%d, v%d\ns_nop 3" % (m, vSum))
    for i in range(16): k("v_mul_f32 v%d, v%d, v%d" % (vO + i, vO + i, m))
    for i2 in range(2):
        g = 72 + 4 * i2; a0 = vO + 8 * i2; a1 = a0 + 4
        k("v_cvt_pk_bf16_f32 v%d, v%d, v%d\nv_cvt_pk_bf16_f32 v%d, v%d, v%d" % (g, a0, a0 + 1, g + 1, a0 + 2, a0 + 3))
        k("v_cvt_pk_bf16_f32 v%d, v%d, v%d\nv_cvt_pk_bf16_f32 v%d, v%d, v%d" % (g + 2, a1, a1 + 1, g + 3, a1 + 2, a1 + 3))
        k("buffer_store_dwordx4 %s, v%d, %s, s%d offen offset:%d sc1" % (vr(g, 4), vL16, WSR, sO, i2 * 2048))
    steplog(k, vFa, vFb, 0xF300000)
    k("s_mov_b32 s%d, s%d" % (sFOp, sFO))
    k("s_add_u32 s%d, s%d, %d\ns_add_u32 s%d, s%d, %d" % (sFO, sFO, 4 * FL, sO, sO, O_SEG))
    k("s_add_u32 s%d, s%d, 4096\ns_add_u32 s%d, s%d, 4096" % (sKM, sKM, sFKM, sFKM))
    k("s_add_u32 s%d, s%d, 1\ns_cmp_lt_u32 s%d, %d\ns_cbranch_scc1 L_qa_loop" % (S_STEP, S_STEP, S_STEP, nseg))
    k("s_waitcnt vmcnt(0)\ns_barrier")
    signal_set(k, sFOp, 78, vFa, vFb)
    k("s_waitcnt vmcnt(0)")
    gmark(k, 3); gdump(k)
    k("s_branch L_end")
```

```python
import sys, importlib
import gen, chain
from asmlib import check_hazards
import roles
def make(name, opt=None, **kw):
    base = dict(w0wait=False, modeA=True, sleepN=True, nhelp=32, sl=4, slq=2, slfirst=16, earlyA=False, local=False)
    chain.DEV['chsleep'] = kw.pop('chsleep', 4)
    base.update(opt or {}); roles.OPT.update(base)
    chain.DEV["marks"] = False
    t = gen.gen(enable=dict(chain_kw=kw))
    assert not check_hazards(t, verbose=False)
    open("var/%s.s" % name, "w").write(t)
import os
os.makedirs("var", exist_ok=True)
if __name__ == "__main__":
    make("x_a")
```
